```python
import torch

def _softmax(x, axis=-1):
    return torch.softmax(x, dim=axis)
def _gelu(x):
    return torch.nn.functional.gelu(x, approximate="tanh")
def _silu(x):
    return torch.nn.functional.silu(x)
def _sigmoid(x):
    return torch.sigmoid(x)
def _layernorm(x, axis=-1, eps=1e-5):
    m = x.mean(dim=axis, keepdim=True)
    v = x.var(dim=axis, keepdim=True, unbiased=False)
    return (x - m) / torch.sqrt(v + eps)
def _scatter_add(tgt, idx, src, axis=0):
    return tgt.clone().index_add_(axis, idx, src)
def _segment_sum(src, seg, n):
    out = torch.zeros((n,) + src.shape[1:], dtype=src.dtype)
    return out.index_add_(0, seg, src)
def _pad(x, pw):
    flat = tuple(v for pair in reversed(pw) for v in pair)
    return torch.nn.functional.pad(x, flat)

kernel_name = 'gated_mix__softmax_full_mha__dense_activation_mish__prompt'

def setup_inputs():

    _w = (lambda a: (lambda t: t.to(torch.bfloat16) if t.is_floating_point() else t)(torch.as_tensor(a)))
    def _A_setup():
        B, S, D = 1, 2048, 448
        return {
            "x": _w((lambda *s: torch.randn(*s, dtype=torch.bfloat16) * 0.05)(B, S, D)),
            "wqkv": _w((lambda *s: torch.randn(*s, dtype=torch.bfloat16) * 0.8)(D, 3 * D)),
            "wo": _w((lambda *s: torch.randn(*s, dtype=torch.bfloat16) * 0.05)(D, D)),
        }
    _A_in = _A_setup()

    def _B_setup():
        B, S, D, F = 1, 2048, 448, 1792
        return {
            "x": _w((lambda *s: torch.randn(*s, dtype=torch.bfloat16) * 0.05)(B, S, D)),
            "w1": _w((lambda *s: torch.randn(*s, dtype=torch.bfloat16) * 12.8)(D, F) * (D ** -0.5)),
            "b1": _w((lambda *s: torch.randn(*s, dtype=torch.bfloat16) * 0.1)(F)),
            "w2": _w((lambda *s: torch.randn(*s, dtype=torch.bfloat16) * 0.1)(F, D) * (F ** -0.5)),
        }
    _B_in = _B_setup()

    return {
        "A_x": _A_in["x"],
        "A_wqkv": _A_in["wqkv"],
        "A_wo": _A_in["wo"],
        "B_x": _B_in["x"],
        "B_w1": _B_in["w1"],
        "B_b1": _B_in["b1"],
        "B_w2": _B_in["w2"],
        "gate_w": _w((lambda *s: torch.randn(*s, dtype=torch.bfloat16) * 0.05)(448) * 16.0),
    }

def reference(A_x, A_wqkv, A_wo, B_x, B_w1, B_b1, B_w2, gate_w):
    def _A_ref(x, wqkv, wo):
        B, S, D = x.shape
        H = 16; Dh = D // H
        qkv = (lambda x, *d: x.permute(*d))((x @ wqkv).reshape(B, S, 3, H, Dh), 2, 0, 3, 1, 4)
        q, k, v = qkv[0], qkv[1], qkv[2]
        scale = Dh ** -0.5
        scores = torch.einsum("bhqd,bhkd->bhqk", q, k) * scale
        p = _softmax(scores, axis=-1)
        o = torch.einsum("bhqk,bhkd->bhqd", p, v)
        return (lambda x, *d: x.permute(*d))(o, 0, 2, 1, 3).reshape(B, S, D) @ wo

    def _B_ref(x, w1, b1, w2):
        h = torch.einsum("bsd,df->bsf", x, w1) + b1
        sp = torch.log1p(torch.exp(-torch.abs(h))) + torch.where(h > 0, h, torch.zeros_like(h))
        act = h * torch.tanh(sp)
        return torch.einsum("bsf,fd->bsd", act, w2)

    x = A_x
    g = _sigmoid((x * gate_w).sum(-1, keepdims=True))
    a = _A_ref(x, A_wqkv, A_wo)
    b = _B_ref(x, B_w1, B_b1, B_w2)
    return g * a + (1 - g) * b
```

```python
import re

TRANS = ("v_exp_f32", "v_rcp_f32", "v_log_f32", "v_rsq_f32", "v_sqrt_f32", "v_sin_f32", "v_cos_f32")
RMW = ("v_fmac_f32", "v_mac_f32", "v_dot2c", "v_pk_fmac", "v_writelane_b32")


def regs_of(tok):
    tok = tok.strip()
    if tok.startswith("-"):
        tok = tok[1:]
    if tok.startswith("|") and tok.endswith("|"):
        tok = tok[1:-1]
    if tok.startswith("abs(") and tok.endswith(")"):
        tok = tok[4:-1]
    m = re.fullmatch(r"([vsa])(\d+)", tok)
    if m:
        return [(m.group(1), int(m.group(2)))]
    m = re.fullmatch(r"([vsa])\[(\d+):(\d+)\]", tok)
    if m:
        return [(m.group(1), i) for i in range(int(m.group(2)), int(m.group(3)) + 1)]
    if tok == "vcc":
        return [("s", "vcc_lo"), ("s", "vcc_hi")]
    if tok in ("vcc_lo", "vcc_hi"):
        return [("s", tok)]
    if tok == "exec":
        return [("s", "exec_lo"), ("s", "exec_hi")]
    if tok in ("exec_lo", "exec_hi"):
        return [("s", tok)]
    if tok == "m0":
        return [("s", "m0")]
    return []


class Ins:
    def __init__(self, text, wr_tags=(), rd_tags=()):
        self.text = text.strip()
        self.wr_tags = tuple(wr_tags)
        self.rd_tags = tuple(rd_tags)
        self.need_vm = None
        self.need_lgkm = None
        body = self.text.split(";")[0].strip()
        parts = body.split(None, 1)
        self.op = op = parts[0] if parts else ""
        rest = parts[1] if len(parts) > 1 else ""
        rest = re.sub(r"\s+(op_sel|op_sel_hi|neg_lo|neg_hi):\[[^\]]*\]", "", rest)
        toks = [t.strip() for t in rest.split(",")] if rest else []
        mods = []
        if toks:
            last = toks[-1].split()
            toks[-1] = last[0] if last else ""
            mods = last[1:]
        self.toks, self.mods = toks, mods
        R = [regs_of(t) for t in toks]
        self.defs, self.uses = set(), set()
        self.kind = "other"
        self.cnt = None
        self.srcA = self.srcB = self.srcC = ()
        self.store_data = ()
        self.wide_store = False
        self.is_trans = False
        self.ldsdma = False
        flat = lambda L: [r for x in L for r in x]
        if op.startswith("v_mfma") or op.startswith("v_smfmac"):
            self.kind = "mfma"
            self.defs = set(R[0])
            self.srcA, self.srcB = tuple(R[1]), tuple(R[2])
            if op.startswith("v_smfmac"):
                self.srcC = tuple(R[0])
                self.srcA = self.srcA + tuple(R[3])
            else:
                self.srcC = tuple(R[3])
            self.uses = set(self.srcA) | set(self.srcB) | set(self.srcC)
            self.passes = 8 if "32x32" in op else 4
            self.dreg = tuple(R[0])
        elif op.startswith("v_"):
            self.kind = "valu"
            base = op.replace("_e32", "").replace("_e64", "").replace("_dpp", "").replace("_sdwa", "")
            self.is_trans = base in TRANS
            if base == "v_nop":
                self.kind = "other"
            elif base.startswith("v_permlane") and "swap" in base or base == "v_swap_b32":
                self.defs = set(R[0] + R[1])
                self.uses = set(R[0] + R[1])
            elif re.match(r"v_(add|sub|subrev)_co_u32", base):
                self.defs = set(R[0] + R[1])
                self.uses = set(flat(R[2:]))
            elif re.match(r"v_(addc|subb|subbrev)_co_u32", base):
                self.defs = set(R[0] + R[1])
                self.uses = set(flat(R[2:]))
            elif base.startswith("v_cmpx"):
                raise ValueError("v_cmpx not supported by asmlib")
            else:
                self.defs = set(R[0])
                self.uses = set(flat(R[1:]))
                if any(base.startswith(x) for x in RMW):
                    self.uses |= set(R[0])
            self.dpp = any(m.startswith(("quad_perm", "row_", "wave_")) for m in mods)
            if self.dpp:
                self.uses |= set(R[0])
        elif op.startswith("ds_"):
            self.kind = "ds"
            self.cnt = "lds"
            if op.startswith(("ds_read", "ds_bpermute", "ds_permute", "ds_swizzle")) or "_rtn" in op:
                self.defs = set(R[0])
                self.uses = set(flat(R[1:]))
            else:
                self.uses = set(flat(R))
        elif op.startswith("buffer_"):
            self.kind = "vmem"
            self.cnt = "vm"
            if op in ("buffer_wbl2", "buffer_inv"):
                pass
            elif "lds" in mods:
                self.ldsdma = True
                self.uses = set(flat(R)) | {("s", "m0")}
            elif op.startswith("buffer_load"):
                self.defs = set(R[0])
                self.uses = set(flat(R[1:]))
            elif op.startswith("buffer_atomic"):
                self.uses = set(flat(R))
                if "sc0" in mods:
                    self.defs = set(R[0])
            else:
                self.uses = set(flat(R))
                self.store_data = tuple(R[0])
                self.wide_store = op.endswith(("x3", "x4"))
        elif op.startswith("global_"):
            self.kind = "vmem"
            self.cnt = "vm"
            if op.startswith("global_load_lds"):
                self.ldsdma = True
                self.uses = set(flat(R)) | {("s", "m0")}
            elif op.startswith("global_load"):
                self.defs = set(R[0])
                self.uses = set(flat(R[1:]))
            elif op.startswith("global_atomic"):
                if "sc0" in mods:
                    self.defs = set(R[0])
                    self.uses = set(flat(R[1:]))
                else:
                    self.uses = set(flat(R))
            else:
                self.uses = set(flat(R))
                self.store_data = tuple(R[1])
                self.wide_store = op.endswith(("x3", "x4"))
        elif op.startswith(("s_load", "s_buffer_load", "s_memtime", "s_memrealtime")):
            self.kind = "smem"
            self.cnt = "smem"
            self.defs = set(R[0])
            self.uses = set(flat(R[1:]))
        elif op == "s_waitcnt":
            self.kind = "wait"
            m = re.search(r"vmcnt\((\d+)\)", body)
            self.w_vm = int(m.group(1)) if m else None
            m = re.search(r"lgkmcnt\((\d+)\)", body)
            self.w_lgkm = int(m.group(1)) if m else None
        elif op == "s_nop":
            self.kind = "nop"
            self.nops = int(toks[0], 0) + 1
        elif op.startswith(("s_cbranch", "s_branch")):
            self.kind = "branch"
            self.target = toks[0]
        elif op in ("s_barrier", "s_endpgm", "s_setprio", "s_sleep", "s_sendmsg"):
            self.kind = "other"
        elif op.startswith(("s_cmp", "s_bitcmp")):
            self.kind = "salu"
            self.uses = set(flat(R))
        elif op.startswith("s_"):
            self.kind = "salu"
            self.defs = set(R[0])
            self.uses = set(flat(R[1:]))
            if "saveexec" in op:
                self.defs |= set(regs_of("exec"))
        elif op == "@need":
            self.kind = "pseudo"
        else:
            raise ValueError("unknown instruction: " + text)

    def states(self):
        if self.kind == "nop":
            return self.nops
        if self.kind == "pseudo":
            return 0
        return 1


class Label:
    def __init__(self, name, align=None):
        self.name, self.align = name, align


class Loop:
    def __init__(self, label, trips):
        self.label, self.trips, self.body = label, trips, []


class If:
    def __init__(self, br, lab_else, lab_end):
        self.br, self.lab_else, self.lab_end = br, lab_else, lab_end
        self.then, self.els = [], []


class Prog:
    _uid = 0

    def __init__(self, name):
        self.name = name
        self.top = []
        self.stack = [self.top]

    def uid(self, p="L"):
        Prog._uid += 1
        return f"{p}_{self.name[:3]}{Prog._uid}"

    def __call__(self, text, wr=(), rd=()):
        for line in text.strip().split("\n"):
            line = line.strip()
            if not line or line.startswith(";"):
                continue
            self.stack[-1].append(Ins(line, wr, rd))

    def need(self, *tags):
        self.stack[-1].append(Ins("@need", (), tags))

    def label(self, name, align=None):
        self.stack[-1].append(Label(name, align))

    def loop(self, trips, align=None):
        prog = self

        class Ctx:
            def __enter__(s):
                s.node = Loop(Label(prog.uid("LP"), align), trips)
                prog.stack[-1].append(s.node)
                prog.stack.append(s.node.body)
                return s

            def back(s, br):
                prog(f"{br} {s.node.label.name}")

            def __exit__(s, *a):
                prog.stack.pop()
        return Ctx()

    def if_(self, br_to_else):
        prog = self

        class Ctx:
            def __enter__(s):
                le, ld = prog.uid("EL"), prog.uid("EN")
                s.node = If(Ins(f"{br_to_else} {le}"), le, ld)
                prog.stack[-1].append(s.node)
                prog.stack.append(s.node.then)
                return s

            def else_(s):
                prog.stack.pop()
                prog.stack.append(s.node.els)

            def __exit__(s, *a):
                prog.stack.pop()
        return Ctx()

    def _sim_ins(self, ins, st):
        vm, lg = st
        if ins.kind == "wait":
            if ins.w_vm is not None and len(vm) > ins.w_vm:
                vm = vm[len(vm) - ins.w_vm:]
            if ins.w_lgkm is not None:
                if ins.w_lgkm == 0:
                    lg = ()
                elif not any(e[1] for e in lg) and len(lg) > ins.w_lgkm:
                    lg = lg[len(lg) - ins.w_lgkm:]
            return (vm, lg)
        touched = set(ins.uses) | set(ins.rd_tags)
        tv = touched | (set(ins.defs) if ins.cnt != "vm" else set())
        tl = touched | (set(ins.defs) if ins.cnt != "lds" else set())
        idx = -1
        for i, e in enumerate(vm):
            if e[0] & tv:
                idx = i
        if idx >= 0:
            n = min(len(vm) - 1 - idx, 63)
            ins.need_vm = n if ins.need_vm is None else min(ins.need_vm, n)
        if ins.need_vm is not None and len(vm) > ins.need_vm:
            vm = vm[len(vm) - ins.need_vm:] if ins.need_vm else ()
        idx = -1
        for i, e in enumerate(lg):
            if e[0] & (tl | (set(ins.defs) if e[1] else set())):
                idx = i
        if idx >= 0:
            n = 0 if any(e[1] for e in lg) else min(len(lg) - 1 - idx, 15)
            ins.need_lgkm = n if ins.need_lgkm is None else min(ins.need_lgkm, n)
        if ins.need_lgkm is not None:
            if ins.need_lgkm == 0:
                lg = ()
            elif not any(e[1] for e in lg) and len(lg) > ins.need_lgkm:
                lg = lg[len(lg) - ins.need_lgkm:]
        if ins.cnt == "vm":
            vm = vm + ((frozenset(ins.defs) | frozenset(ins.wr_tags), False),)
        elif ins.cnt == "lds":
            lg = lg + ((frozenset(ins.defs) | frozenset(ins.wr_tags), False),)
        elif ins.cnt == "smem":
            lg = lg + ((frozenset(ins.defs) | frozenset(ins.wr_tags), True),)
        return (vm, lg)

    def _sim(self, nodes, states):
        for n in nodes:
            if not states:
                return states
            if isinstance(n, Ins):
                if n.op == "s_endpgm":
                    return set()
                states = {self._sim_ins(n, s) for s in states}
            elif isinstance(n, Loop):
                trips = n.trips if isinstance(n.trips, (list, tuple)) else [n.trips]
                out = set()
                for t in range(1, max(trips) + 1):
                    states = self._sim(n.body, states)
                    if t in trips:
                        out |= states
                states = out
            elif isinstance(n, If):
                states = self._sim(n.then, set(states)) | self._sim(n.els, set(states))
        return states

    def _ends(self, nodes):
        for n in reversed(nodes):
            if isinstance(n, Ins):
                if n.kind == "pseudo":
                    continue
                return n.op in ("s_endpgm", "s_branch")
            if isinstance(n, If):
                return bool(n.els) and self._ends(n.then) and self._ends(n.els)
            return False
        return False

    def _flatten(self, nodes, out):
        for n in nodes:
            if isinstance(n, Ins):
                w = []
                if n.need_vm is not None:
                    w.append(f"vmcnt({n.need_vm})")
                if n.need_lgkm is not None:
                    w.append(f"lgkmcnt({n.need_lgkm})")
                if w:
                    out.append(Ins("s_waitcnt " + " ".join(w)))
                if n.kind != "pseudo":
                    out.append(n)
            elif isinstance(n, Label):
                out.append(n)
            elif isinstance(n, Loop):
                out.append(n.label)
                self._flatten(n.body, out)
            elif isinstance(n, If):
                out.append(n.br)
                self._flatten(n.then, out)
                if n.els:
                    if not self._ends(n.then):
                        out.append(Ins(f"s_branch {n.lab_end}"))
                    out.append(Label(n.lab_else))
                    self._flatten(n.els, out)
                    out.append(Label(n.lab_end))
                else:
                    out.append(Label(n.lab_else))

    @staticmethod
    def _req(p, c):
        r = 0
        isv = lambda S: {x for x in S if x[0] in "va"}
        iss = lambda S: {x for x in S if x[0] == "s"}
        if p.kind == "valu":
            pv, ps = isv(p.defs), iss(p.defs)
            if c.kind == "mfma" and pv & c.uses:
                r = max(r, 2)
            if c.kind == "valu":
                if c.op.startswith("v_permlane") and pv & c.uses:
                    r = max(r, 2)
                if c.dpp and pv & c.uses:
                    r = max(r, 2)
                if c.op.startswith(("v_readlane", "v_readfirstlane")) and pv & c.uses:
                    r = max(r, 1)
                if p.is_trans and not c.is_trans and pv & (c.uses | c.defs):
                    r = max(r, 1)
                if p.is_trans and c.is_trans and pv & c.uses:
                    r = max(r, 1)
                if ps & c.uses:
                    r = max(r, 4 if c.op.startswith(("v_readlane", "v_writelane")) else 2)
            if p.is_trans and c.kind in ("vmem", "ds") and pv & c.uses:
                r = max(r, 1)
            if c.kind == "vmem" and ps & c.uses:
                r = max(r, 5)
            if c.kind in ("salu", "smem") and ps & c.uses:
                r = max(r, 1)
            if c.kind == "branch" and "vcc" in c.op and ps & {("s", "vcc_lo"), ("s", "vcc_hi")}:
                r = max(r, 5)
        elif p.kind == "salu":
            if ("s", "m0") in p.defs and c.ldsdma:
                r = max(r, 1)
        elif p.kind == "vmem":
            if p.wide_store and set(p.store_data) & c.defs:
                r = max(r, 2)
        elif p.kind == "mfma":
            big = p.passes == 8
            D = p.defs
            if c.kind == "mfma":
                if D & set(c.srcC):
                    same = tuple(c.srcC) == p.dreg and c.passes == p.passes
                    if not same:
                        r = max(r, 10 if big else 6)
                if D & (set(c.srcA) | set(c.srcB)):
                    r = max(r, 12 if big else 8)
            elif c.kind in ("valu", "vmem", "ds"):
                if D & (c.uses | c.defs):
                    r = max(r, 12 if big else 8)
                if c.kind == "valu" and set(p.srcC) & c.defs:
                    r = max(r, 7 if big else 3)
        return r

    def _hazards(self, flat):
        MAXD = 12
        out = list(flat)
        nins = 0
        i = 0
        while i < len(out):
            c = out[i]
            if isinstance(c, Ins) and c.kind in ("mfma", "valu", "vmem", "ds", "salu", "smem", "branch"):
                targets = {}
                for j, x in enumerate(out):
                    if isinstance(x, Ins) and x.kind == "branch":
                        targets.setdefault(x.target, []).append(j)
                need = 0
                stack = [(i - 1, 0, True)]
                seen = set()
                while stack:
                    j, d, fall = stack.pop()
                    if j < 0 or d >= MAXD or (j, d, fall) in seen:
                        continue
                    seen.add((j, d, fall))
                    x = out[j]
                    if isinstance(x, Label):
                        stack.append((j - 1, d, True))
                        for b in targets.get(x.name, []):
                            stack.append((b, d, False))
                        continue
                    if fall and x.op in ("s_branch", "s_endpgm"):
                        continue
                    need = max(need, self._req(x, c) - d)
                    stack.append((j - 1, d + x.states(), True))
                if need > 0:
                    out.insert(i, Ins(f"s_nop {need - 1}"))
                    nins += 1
                    i += 1
            i += 1
        self.nops_inserted = nins
        return out

    def finish(self):
        for _ in range(2):
            self._sim(self.top, {((), ())})
        flat = []
        self._flatten(self.top, flat)
        flat = self._hazards_fast(flat)
        lines = []
        for x in flat:
            if isinstance(x, Label):
                if x.align:
                    lines.append(f".p2align {x.align}")
                lines.append(f"{x.name}:")
            else:
                lines.append("  " + x.text)
        self.flat = flat
        return "\n".join(lines)

    def _hazards_fast(self, flat):
        MAXD = 12
        nodes = list(flat)
        pre = [0] * len(nodes)
        targets = {}
        for j, x in enumerate(nodes):
            if isinstance(x, Ins) and x.kind == "branch":
                targets.setdefault(x.target, []).append(j)
        for i, c in enumerate(nodes):
            if not (isinstance(c, Ins) and c.kind in ("mfma", "valu", "vmem", "ds", "salu", "smem", "branch")):
                continue
            need = 0
            stack = [(i - 1, 0, True)]
            seen = set()
            while stack:
                j, d, fall = stack.pop()
                if j < 0 or d >= MAXD or (j, d, fall) in seen:
                    continue
                seen.add((j, d, fall))
                x = nodes[j]
                if isinstance(x, Label):
                    stack.append((j - 1, d, True))
                    for b in targets.get(x.name, []):
                        stack.append((b, d, False))
                    continue
                if fall and x.op in ("s_branch", "s_endpgm"):
                    continue
                need = max(need, self._req(x, c) - d)
                stack.append((j - 1, d + x.states() + pre[j], True))
            pre[i] = need
        out = []
        self.nops_inserted = 0
        for i, c in enumerate(nodes):
            if pre[i] > 0:
                out.append(Ins(f"s_nop {pre[i] - 1}"))
                self.nops_inserted += 1
            out.append(c)
        return out


def v(a, n=1):
    return f"v{a}" if n == 1 else f"v[{a}:{a + n - 1}]"


def s(a, n=1):
    return f"s{a}" if n == 1 else f"s[{a}:{a + n - 1}]"


class Alloc:
    def __init__(self, start, limit):
        self.p, self.limit = start, limit

    def __call__(self, n=1, align=1):
        self.p = (self.p + align - 1) // align * align
        r = self.p
        self.p += n
        assert self.p <= self.limit, f"out of registers: {self.p} > {self.limit}"
        return r
```

```python
from gen import *


def tr_lane_parts(k, vL, r, p):
    k(f"""
    v_bfe_u32 v{p}, v{vL}, 4, 1
    v_and_b32 v{r}, 3, v{vL}
    v_lshl_add_u32 v{p}, v{p}, 2, v{r}
    v_bfe_u32 v{r}, v{vL}, 2, 2
    """)


def gen_k2(code_size):
    k = Prog("k2")
    sWS, sK, sV, sW2 = 8, 12, 16, 20
    sWv, sH, sQB, sKQ, sNG, sOff, sIt, sT0, sT1, sM0, sPC = 24, 25, 26, 27, 28, 29, 30, 31, 32, 33, 34
    RED = 114688
    k("s_load_dwordx2 s[4:5], s[0:1], 48")
    k("s_load_dwordx2 s[6:7], s[0:1], 80")
    k("s_cmp_ge_u32 s2, 256")
    with k.if_("s_cbranch_scc0"):
        k("s_endpgm")
    va = Alloc(1, 256)
    vL, vL16, vT0, vT1, vT2, vPF = [va() for _ in range(6)]
    prefetch_code(k, code_size, vPF, sPC)
    k(f"""
    v_lshrrev_b32 v{vT0}, 6, v0
    v_and_b32 v{vL}, 63, v0
    s_and_b32 s{sT0}, s2, 7
    v_readfirstlane_b32 s{sWv}, v{vT0}
    s_bfe_u32 s{sT1}, s2, 0x10003
    s_lshr_b32 s{sQB}, s2, 4
    s_lshl_b32 s{sH}, s{sT0}, 1
    s_add_u32 s{sH}, s{sH}, s{sT1}
    s_and_b32 s{sKQ}, s{sT0}, 3
    s_lshr_b32 s{sNG}, s{sT0}, 2
    s_lshl_b32 s{sNG}, s{sNG}, 1
    s_add_u32 s{sNG}, s{sNG}, s{sT1}
    v_lshlrev_b32 v{vL16}, 4, v{vL}
    s_cmp_lt_u32 s{sWv}, 4
    """)
    base = va.p
    with k.if_("s_cbranch_scc0") as role:
        va = Alloc(base, 256)
        vLp, vIdx = va(), va()
        Q = [va(8, 4) for _ in range(4)]
        O = [va(16, 4) for _ in range(4)]
        S = [va(16, 4) for _ in range(4)]
        KB = [va(8, 4) for _ in range(4)]
        VB = [va(8, 4) for _ in range(4)]
        k("s_setprio 2")
        k(f"""
        v_and_b32 v{vT0}, 0x33, v{vL}
        v_bfe_u32 v{vT1}, v{vL}, 2, 1
        v_bfe_u32 v{vT2}, v{vL}, 3, 1
        v_lshl_or_b32 v{vT0}, v{vT1}, 3, v{vT0}
        v_lshl_or_b32 v{vT0}, v{vT2}, 2, v{vT0}
        v_lshlrev_b32 v{vLp}, 4, v{vT0}
        s_lshl_b32 s{sT0}, s{sH}, 17
        s_lshl_b32 s{sT1}, s{sWv}, 15
        s_add_u32 s{sT1}, s{sT1}, s{sT0}
        s_add_u32 s3, s{sT1}, {16*64*2048}
        """)
        srd(k, sK, 6, 7, "s3", 32768)
        k(f"s_add_u32 s3, s{sT1}, {32*64*2048}")
        srd(k, sV, 6, 7, "s3", 32768)
        srd(k, sWS, 6, 7, 0, WS_SIZE)

        def ldK(buf, so, off):
            for i in range(2):
                k(f"buffer_load_dwordx4 {v(KB[buf]+4*i,4)}, v{vLp}, {s(sK,4)}, {so} offen offset:{off+1024*i}")

        def ldV(buf, so, off):
            for i in range(2):
                k(f"buffer_load_dwordx4 {v(VB[buf]+4*i,4)}, v{vL16}, {s(sV,4)}, {so} offen offset:{off+1024*i}")

        def ldQ(j):
            k(f"""
            s_add_u32 s3, s{sWv}, {1+j}
            s_and_b32 s3, s3, 3
            s_lshl_b32 s3, s3, 11
            s_add_u32 s3, s3, s{sT0}
            """)
            for i in range(2):
                k(f"buffer_load_dwordx4 {v(Q[j]+4*i,4)}, v{vL16}, {s(sWS,4)}, s3 offen offset:{1024*i}")

        k(f"s_lshl_b32 s3, s{sQB}, 13")
        k(f"s_add_u32 s{sT0}, s{sT0}, s3")
        ldK(0, "0", 0)
        ldQ(0)
        ldQ(1)
        ldQ(2)
        ldV(0, "0", 0)
        ldQ(3)
        ldK(1, "0", 2048)
        ldV(1, "0", 2048)
        k(f"s_movk_i32 s{sOff}, 4096")
        ldK(2, f"s{sOff}", 0)
        ldV(2, f"s{sOff}", 0)
        ldK(3, f"s{sOff}", 2048)
        for j in range(4):
            for r in range(16):
                k(f"v_mov_b32 v{O[j]+r}, 0")
        for r in range(8, 16):
            k(f"v_mov_b32 v{S[3]+r}, 0")
        for r in range(4, 8):
            k(f"v_mov_b32 v{VB[3]+r}, 0")
        k(f"v_mov_b32 v{vIdx}, 0xdddd")
        k(f"s_mov_b32 s{sIt}, 4")

        def QK(u, half):
            j, t = u & 3, (u >> 2) & 3
            c = "0" if half == 0 else v(S[j], 16)
            k(f"{MFMA} {v(S[j],16)}, {v(KB[t]+4*half,4)}, {v(Q[j]+4*half,4)}, {c}")

        def PV(u, half):
            j, t = u & 3, (u >> 2) & 3
            k(f"{SMF} {v(O[j],16)}, {v(VB[t]+4*half,4)}, {v(S[j]+8*half,8)}, v{vIdx}")

        def EX(u, a, b):
            for r in range(a, b):
                k(f"v_exp_f32 v{S[u&3]+r}, v{S[u&3]+r}")

        for u in range(2):
            QK(u, 0)
            QK(u, 1)
        with k.loop(4, align=6) as lp:
            for u in range(16):
                i = u >> 2
                QK(u + 2, 0)
                EX(u, 0, 4)
                QK(u + 2, 1)
                if u & 3 == 1:
                    ldK(i, f"s{sOff}", 2048)
                EX(u, 4, 8)
                PV(u - 1, 1)
                if u & 3 == 0:
                    k(f"s_add_u32 s{sOff}, s{sOff}, 2048")
                    ldV((i - 1) & 3, f"s{sOff}", 0)
                EX(u, 8, 12)
                PV(u, 0)
                if u == 4:
                    k("s_barrier")
                if u == 15:
                    k(f"s_sub_u32 s{sIt}, s{sIt}, 1")
                    k(f"s_cmp_lg_u32 s{sIt}, 0")
                EX(u, 12, 16)
            lp.back("s_cbranch_scc1")
        PV(15, 1)
        for j in range(3):
            k(f"""
            s_add_u32 s3, s{sWv}, {1+j}
            s_and_b32 s3, s3, 3
            s_mul_i32 s3, s3, 12288
            s_add_u32 s3, s3, {RED+4096*j}
            v_add_u32 v{vT0}, s3, v{vL16}
            """)
            for i in range(4):
                k(f"ds_write_b128 v{vT0}, {v(O[j]+4*i,4)} offset:{1024*i}", wr=["red"])
        k(f"s_mul_i32 s3, s{sWv}, 12288")
        k(f"s_add_u32 s3, s3, {RED}")
        k(f"v_add_u32 v{vT0}, s3, v{vL16}")
        k.need("red")
        k("s_barrier")
        for j in range(3):
            for i in range(4):
                k(f"ds_read_b128 {v(S[j]+4*i,4)}, v{vT0} offset:{4096*j+1024*i}")
        A = O[3]
        for j in range(3):
            for r in range(16):
                k(f"v_add_f32 v{A+r}, v{A+r}, v{S[j]+r}")

        def get_l():
            k(f"""
            v_mov_b32 v{vT0}, v{A+12}
            v_mov_b32 v{vT1}, v{A+12}
            v_permlane32_swap_b32 v{vT0}, v{vT1}
            """)
        get_l()
        k(f"v_mul_f32 v{vT2}, 0, v{A}")
        for r in range(1, 16):
            k(f"v_fma_f32 v{vT2}, v{A+r}, 0, v{vT2}")
        k(f"""
        v_add_f32 v{vT2}, v{vT2}, v{vT1}
        v_cmp_nlt_f32 vcc, {f32(2.0**-30)}, v{vT2}
        v_cmp_ngt_f32 s[36:37], {'v%d' % vIdx}, v{vT2}
        """.replace(f"v_cmp_ngt_f32 s[36:37], v{vIdx}, v{vT2}", f"s_mov_b64 s[36:37], vcc\nv_cmp_ngt_f32 vcc, {f32(2.0**40)}, v{vT2}"))
        k("s_or_b64 s[36:37], s[36:37], vcc")
        if OPT.get("force_fb"):
            k("s_mov_b64 s[36:37], -1")
        k("s_cmp_lg_u64 s[36:37], 0")
        with k.if_("s_cbranch_scc0"):
            k(f"s_lshl_b32 s{sT1}, s{sH}, 17")
            k(f"s_add_u32 s3, s{sT1}, {16*64*2048}")
            srd(k, sK, 6, 7, "s3", 131072)
            k(f"s_add_u32 s3, s{sT1}, {32*64*2048}")
            srd(k, sV, 6, 7, "s3", 131072)
            k(f"v_mov_b32 v{vT0}, 0xff800000")
            k(f"s_mov_b32 s{sOff}, 0")
            with k.loop(3) as l1:
                ldK(0, f"s{sOff}", 0)
                QK(3, 0)
                QK(3, 1)
                for r in range(0, 16, 2):
                    k(f"v_max3_f32 v{vT0}, v{S[3]+r}, v{S[3]+r+1}, v{vT0}")
                k(f"s_add_u32 s{sOff}, s{sOff}, 2048")
                k(f"s_cmp_lt_u32 s{sOff}, 131072")
                l1.back("s_cbranch_scc1")
            k(f"""
            v_mov_b32 v{vT1}, v{vT0}
            v_permlane32_swap_b32 v{vT0}, v{vT1}
            v_max_f32 v{vT0}, v{vT0}, v{vT1}
            """)
            for r in range(16):
                k(f"v_mul_f32 v{S[0]+r}, -1.0, v{vT0}")
                k(f"v_mov_b32 v{A+r}, 0")
            k(f"s_mov_b32 s{sOff}, 0")
            with k.loop(3) as l2:
                ldK(0, f"s{sOff}", 0)
                ldV(0, f"s{sOff}", 0)
                k(f"{MFMA} {v(S[3],16)}, {v(KB[0],4)}, {v(Q[3],4)}, {v(S[0],16)}")
                QK(3, 1)
                EX(3, 0, 16)
                PV(3, 0)
                PV(3, 1)
                k(f"s_add_u32 s{sOff}, s{sOff}, 2048")
                k(f"s_cmp_lt_u32 s{sOff}, 131072")
                k("s_nop 4")
                l2.back("s_cbranch_scc1")
            get_l()
        k(f"v_rcp_f32 v{vT1}, v{vT1}")
        k(f"""
        s_lshl_b32 s3, s{sQB}, 2
        s_add_u32 s3, s3, s{sWv}
        s_lshl_b32 s3, s3, 4
        s_add_u32 s3, s3, s{sH}
        s_lshl_b32 s3, s3, 11
        s_add_u32 s3, s3, {WS_OF}
        s_mov_b32 s36, 0
        s_mov_b32 s37, -1
        """)
        for r in range(16):
            k(f"v_mul_f32 v{A+r}, v{A+r}, v{vT1}")
        for r in range(8):
            k(f"v_cvt_pk_bf16_f32 v{A+r}, v{A+2*r}, v{A+2*r+1}")
        for r in (6, 7):
            k(f"v_cndmask_b32 v{A+r}, v{A+r}, 0, s[36:37]")
        for i in range(2):
            k(f"buffer_store_dwordx4 {v(A+4*i,4)}, v{vL16}, {s(sWS,4)}, s3 offen offset:{1024*i}{OPT['st']}")
        k("s_endpgm")
        role.else_()
        va = Alloc(base, 256)
        vD = va()
        wa = [va() for _ in range(4)]
        AF = va(112, 4)
        acc = [va(16, 4) for _ in range(4)]
        NB = 4
        Wf = [va(4, 4) for _ in range(NB)]
        sWin, sAo = 36, 37
        k(f"""
        s_sub_u32 s{sWv}, s{sWv}, 4
        s_lshl_b32 s{sWin}, s{sNG}, 8
        s_min_u32 s{sWin}, s{sWin}, 640
        s_mul_i32 s{sT0}, s{sKQ}, {448*896}
        s_add_u32 s{sT0}, s{sT0}, s{sWin}
        s_sub_u32 s{sT1}, {448*896}, s{sWin}
        s_mul_i32 s{sM0}, s{sWv}, 7168
        s_mul_i32 s3, s{sWv}, 28
        v_lshrrev_b32 v{vT0}, 4, v{vL}
        v_add_u32 v{vT1}, s3, v{vT0}
        v_mul_u32_u24 v{vD}, 896, v{vT1}
        v_lshlrev_b32 v{vT0}, 2, v{vT0}
        v_and_b32 v{vT1}, 15, v{vL}
        v_xor_b32 v{vT0}, v{vT0}, v{vT1}
        v_lshl_add_u32 v{vD}, v{vT0}, 4, v{vD}
        s_lshl_b32 s{sIt}, s{sQB}, 2
        s_add_u32 s{sIt}, s{sIt}, s{sWv}
        s_mul_i32 s{sAo}, s{sIt}, 56
        s_mul_i32 s3, s{sKQ}, 14
        s_add_u32 s{sAo}, s{sAo}, s3
        s_lshl_b32 s{sAo}, s{sAo}, 11
        s_add_u32 s{sAo}, s{sAo}, {WS_ACT}
        """)
        srd(k, sW2, 4, 5, f"s{sT0}", f"s{sT1}")
        srd(k, sWS, 6, 7, 0, WS_SIZE)

        def ld_chunk(c):
            for p in range(7):
                k(f"s_add_u32 m0, s{sM0}, {c*28672+p*1024}")
                k(f"s_mov_b32 s3, {(112*c+4*p)*896}")
                k(f"buffer_load_dwordx4 v{vD}, {s(sW2,4)}, s3 offen lds", wr=[f"w{c}"])
            for n in range(7 * c, 7 * c + 7):
                if n == 7 * c or n % 4 == 0:
                    k(f"s_add_u32 s3, s{sAo}, {(n//4)*4096}")
                k(f"buffer_load_dwordx4 {v(AF+4*n,4)}, v{vL16}, {s(sWS,4)}, s3 offen offset:{(n%4)*1024}")

        ld_chunk(0)
        ld_chunk(1)
        tr_lane_parts(k, vL, vT0, vT1)
        k(f"""
        v_lshrrev_b32 v{vT2}, 5, v{vL}
        v_lshl_add_u32 v{vT2}, v{vT2}, 2, v{vT0}
        v_lshlrev_b32 v{vT2}, 8, v{vT2}
        v_lshl_add_u32 v{vT2}, v{vT1}, 3, v{vT2}
        v_lshl_add_u32 v{wa[0]}, v{vT0}, 6, v{vT2}
        v_xor_b32 v{wa[1]}, 64, v{wa[0]}
        v_xor_b32 v{wa[2]}, 128, v{wa[0]}
        v_xor_b32 v{wa[3]}, 192, v{wa[0]}
        """)

        def rdW(m):
            n, t = m >> 2, m & 3
            for e in range(2):
                k(f"ds_read_b64_tr_b16 {v(Wf[m%NB]+2*e,2)}, v{wa[t]} offset:{(16*(n%14)+8*e)*256}")

        D = OPT.get("ffn2_d", 2)
        for c in range(4):
            k.need(f"w{c}")
            k("s_barrier")
            if c == 2:
                for r in wa:
                    k(f"v_add_u32 v{r}, 57344, v{r}")
            for m in range(28 * c, 28 * c + D):
                rdW(m)
            if c + 2 < 4:
                ld_chunk(c + 2)
            for m in range(28 * c, 28 * c + 28):
                if m + D < 28 * c + 28:
                    rdW(m + D)
                n, t = m >> 2, m & 3
                k(f"{MFMA} {v(acc[t],16)}, {v(Wf[m%NB],4)}, {v(AF+4*n,4)}, {'0' if n == 0 else v(acc[t],16)}")
        k(f"""
        s_lshl_b32 s3, s{sKQ}, 6
        s_add_u32 s3, s3, s{sIt}
        s_mul_i32 s3, s3, 14
        s_lshr_b32 s{sWin}, s{sWin}, 6
        s_add_u32 s3, s3, s{sWin}
        s_lshl_b32 s3, s3, 11
        s_add_u32 s3, s3, {WS_PART}
        """)
        for t in range(4):
            if t == 2:
                k("s_add_u32 s3, s3, 4096")
            for r in range(8):
                k(f"v_cvt_pk_bf16_f32 v{acc[t]+r}, v{acc[t]+2*r}, v{acc[t]+2*r+1}")
            for i in range(2):
                k(f"buffer_store_dwordx4 {v(acc[t]+4*i,4)}, v{vL16}, {s(sWS,4)}, s3 offen offset:{(t&1)*2048+1024*i}{OPT['st']}")
        k("s_endpgm")
    return k


def gen_k3(code_size):
    k = Prog("k3")
    sWS, sWO, sOUT = 12, 16, 20
    sWv, sTT, sNG, sWin, sT0, sT1, sM0, sKH, sNT, sPC = 24, 25, 26, 27, 28, 29, 30, 31, 32, 34
    OL, XL = 114688, 147456
    k("s_load_dwordx2 s[4:5], s[0:1], 16")
    k("s_load_dwordx2 s[6:7], s[0:1], 80")
    k("s_load_dwordx2 s[8:9], s[0:1], 64")
    k("s_cmp_ge_u32 s2, 256")
    with k.if_("s_cbranch_scc0"):
        k("s_endpgm")
    va = Alloc(1, 256)
    vL, vL16, vT0, vT1, vT2, vPF, vD, vG, wa, wb, oa, vSt = [va() for _ in range(12)]
    P = va(16, 4)
    B = va(8, 4)
    acc = va(16, 4)
    OFr = va(64, 4)
    Wf = va(64, 4)
    prefetch_code(k, code_size, vPF, sPC)
    k(f"""
    v_lshrrev_b32 v{vT0}, 6, v0
    v_and_b32 v{vL}, 63, v0
    s_lshr_b32 s{sTT}, s2, 4
    v_readfirstlane_b32 s{sWv}, v{vT0}
    s_lshl_b32 s{sTT}, s{sTT}, 2
    s_and_b32 s3, s2, 3
    s_add_u32 s{sTT}, s{sTT}, s3
    s_bfe_u32 s{sNG}, s2, 0x20002
    s_lshl_b32 s{sWin}, s{sNG}, 8
    s_min_u32 s{sWin}, s{sWin}, 640
    s_sub_u32 s{sT1}, {448*896}, s{sWin}
    s_mul_i32 s{sM0}, s{sWv}, 14336
    s_mul_i32 s3, s{sWv}, 56
    v_lshlrev_b32 v{vL16}, 4, v{vL}
    v_lshrrev_b32 v{vT0}, 4, v{vL}
    v_add_u32 v{vT1}, s3, v{vT0}
    v_mul_u32_u24 v{vD}, 896, v{vT1}
    v_lshlrev_b32 v{vT0}, 2, v{vT0}
    v_and_b32 v{vT1}, 15, v{vL}
    v_xor_b32 v{vT0}, v{vT0}, v{vT1}
    v_lshl_add_u32 v{vD}, v{vT0}, 4, v{vD}
    s_lshr_b32 s{sKH}, s{sWv}, 2
    s_and_b32 s{sNT}, s{sWv}, 3
    """)
    srd(k, sWO, 4, 5, f"s{sWin}", f"s{sT1}")
    srd(k, sWS, 6, 7, 0, WS_SIZE)
    k(f"""
    s_lshl_b32 s{sT0}, s{sWv}, 12
    s_add_u32 m0, s{sT0}, {OL}
    s_lshl_b32 s3, s{sTT}, 15
    s_add_u32 s3, s3, s{sT0}
    s_add_u32 s3, s3, {WS_OF}
    """)
    for i in range(4):
        k(f"buffer_load_dwordx4 v{vL16}, {s(sWS,4)}, s3 offen offset:{1024*i} lds", wr=["ld"])
    for p in range(14):
        k(f"s_add_u32 m0, s{sM0}, {p*1024}")
        k(f"s_mov_b32 s3, {4*p*896}")
        k(f"buffer_load_dwordx4 v{vD}, {s(sWO,4)}, s3 offen lds", wr=["ld"])
    k(f"""
    s_lshr_b32 s{sT0}, s{sWin}, 6
    s_add_u32 s{sT0}, s{sT0}, s{sNT}
    s_mul_i32 s3, s{sTT}, 14
    s_add_u32 s3, s3, s{sT0}
    s_lshl_b32 s3, s3, 1
    s_add_u32 s3, s3, s{sKH}
    s_lshl_b32 s3, s3, 10
    s_add_u32 s3, s3, {WS_PART}
    """)
    for q in range(4):
        k(f"buffer_load_dwordx4 {v(P+4*q,4)}, v{vL16}, {s(sWS,4)}, s3 offen")
        if q < 3:
            k(f"s_add_u32 s3, s3, {64*14*2048}")
    k(f"""
    s_lshl_b32 s3, s{sTT}, 7
    s_add_u32 s3, s3, {WS_G}
    v_and_b32 v{vT2}, 31, v{vL}
    v_lshlrev_b32 v{vT0}, 2, v{vT2}
    buffer_load_dword v{vG}, v{vT0}, {s(sWS,4)}, s3 offen
    """)
    k(f"s_mul_i32 s3, s{sTT}, {32*896}")
    srd(k, sOUT, 8, 9, "s3", 32 * 896)
    k(f"""
    v_mul_u32_u24 v{vSt}, 896, v{vT2}
    s_lshl_b32 s3, s{sT0}, 1
    s_add_u32 s3, s3, s{sKH}
    s_lshl_b32 s3, s3, 5
    v_lshrrev_b32 v{vT2}, 5, v{vL}
    v_lshl_add_u32 v{vSt}, v{vT2}, 4, v{vSt}
    v_add_u32 v{vSt}, s3, v{vSt}
    """)
    tr_lane_parts(k, vL, vT0, vT1)
    k(f"""
    v_lshlrev_b32 v{wb}, 8, v{vT0}
    v_lshl_add_u32 v{wb}, v{vT1}, 3, v{wb}
    v_xor_b32 v{vT0}, s{sNT}, v{vT0}
    v_lshl_add_u32 v{wb}, v{vT0}, 6, v{wb}
    s_mul_i32 s3, s{sKH}, 57344
    v_add_u32 v{wb}, s3, v{wb}
    v_lshl_add_u32 v{wa}, v{vT2}, 10, v{wb}
    s_lshl_b32 s3, s{sKH}, 14
    s_add_u32 s3, s3, {OL}
    v_add_u32 v{oa}, s3, v{vL16}
    """)
    k.need("ld")
    k("s_barrier")

    def rd(n):
        hh, st = n >> 1, n & 1
        k(f"ds_read_b128 {v(OFr+4*n,4)}, v{oa} offset:{1024*n}")
        for e in range(2):
            a = wb if (st == 1 and e == 1) else wa
            k(f"ds_read_b64_tr_b16 {v(Wf+4*n+2*e,2)}, v{a} offset:{(28*hh+16*st+8*e)*256}")

    fill = []
    for r in range(4):
        fill.append(E(k, f"v_lshlrev_b32 v{B+2*r}, 16, v{P+r}"))
        fill.append(E(k, f"v_and_b32 v{B+2*r+1}, 0xffff0000, v{P+r}"))
    for q in range(1, 4):
        for r in range(4):
            fill.append(E(k, f"v_lshlrev_b32 v{vT0}, 16, v{P+4*q+r}"))
            fill.append(E(k, f"v_and_b32 v{vT1}, 0xffff0000, v{P+4*q+r}"))
            fill.append(E(k, f"v_add_f32 v{B+2*r}, v{B+2*r}, v{vT0}"))
            fill.append(E(k, f"v_add_f32 v{B+2*r+1}, v{B+2*r+1}, v{vT1}"))
    fill.append(E(k, f"v_sub_f32 v{vT2}, 1.0, v{vG}"))
    for r in range(8):
        fill.append(E(k, f"v_mul_f32 v{B+r}, v{B+r}, v{vT2}"))
    D = 4
    for n in range(D):
        rd(n)
    groups = []
    for n in range(16):
        g = [E(k, f"{MFMA} {v(acc,16)}, {v(Wf+4*n,4)}, {v(OFr+4*n,4)}, {'0' if n == 0 else v(acc,16)}")]
        if n + D < 16:
            g.append(lambda n=n: rd(n + D))
        groups.append(g)
    spread(k, groups, fill)
    k(f"""
    s_lshl_b32 s3, s{sWv}, 11
    s_add_u32 s3, s3, {XL}
    v_add_u32 v{vT0}, s3, v{vL16}
    v_xor_b32 v{vT1}, 8192, v{vT0}
    s_cmp_eq_u32 s{sKH}, 1
    """)
    with k.if_("s_cbranch_scc0"):
        for r in range(8):
            k(f"v_swap_b32 v{acc+r}, v{acc+8+r}")
    for i in range(2):
        k(f"ds_write_b128 v{vT0}, {v(acc+8+4*i,4)} offset:{1024*i}", wr=["x"])
    k.need("x")
    k("s_barrier")
    for i in range(2):
        k(f"ds_read_b128 {v(P+4*i,4)}, v{vT1} offset:{1024*i}")
    for r in range(8):
        k(f"v_add_f32 v{acc+r}, v{acc+r}, v{P+r}")
    for r in range(8):
        k(f"v_fma_f32 v{acc+r}, v{acc+r}, v{vG}, v{B+r}")
    for r in range(4):
        k(f"v_cvt_pk_bf16_f32 v{acc+r}, v{acc+2*r}, v{acc+2*r+1}")
    k(f"v_permlane32_swap_b32 v{acc}, v{acc+2}")
    k(f"v_permlane32_swap_b32 v{acc+1}, v{acc+3}")
    k(f"buffer_store_dwordx4 {v(acc,4)}, v{vSt}, {s(sOUT,4)}, 0 offen")
    k("s_endpgm")
    return k
```

```python
import math, struct, sys, os
sys.path.insert(0, os.path.dirname(os.path.abspath(__file__)))
from asmlib import *

NAME = "gated_mix__softmax_full_mha__dense_activation_mish__prompt"
WS_QKV, WS_ACT, WS_OF, WS_PART, WS_G, WS_SIZE = 0, 0x600000, 0xD00000, 0xF00000, 0x1600000, 0x1700000
LOG2E = math.log2(math.e)


def f32(x):
    return "0x%08x" % struct.unpack("<I", struct.pack("<f", x))[0]


MFMA = "v_mfma_f32_32x32x16_bf16"
SMF = "v_smfmac_f32_32x32x32_bf16"
OPT = dict(st="", pf=True)


def srd(k, d, lo, hi, off, nrec):
    k(f"s_add_u32 s{d}, s{lo}, {off}")
    k(f"s_addc_u32 s{d+1}, s{hi}, 0")
    k(f"s_mov_b32 s{d+2}, {nrec}")
    k(f"s_mov_b32 s{d+3}, 0x20000")


def prefetch_code(k, size, vt, st):
    if not OPT["pf"]:
        return
    k(f"s_getpc_b64 {s(st, 2)}")
    k(f"v_lshlrev_b32 v{vt}, 7, v0")
    k(f"v_min_u32 v{vt}, {max(size - 64, 0) & ~3}, v{vt}")
    k(f"global_load_dword v{vt}, v{vt}, {s(st, 2)}")


def spread(k, groups, fill):
    n = len(groups)
    done = 0
    for i, g in enumerate(groups):
        for f in g:
            f()
        tgt = (len(fill) * (i + 1) + n - 1) // n
        while done < min(tgt, len(fill)):
            fill[done]()
            done += 1


def E(k, text, **kw):
    return lambda: k(text, **kw)


def mish_ops(k, acc, tmp, G=4):
    ops = []
    for b in range(0, 16, G):
        R = range(b, b + G)
        u = lambda r: tmp + (r - b)
        t = lambda r: tmp + G + (r - b)
        ops += [E(k, f"v_mul_f32 v{u(r)}, {f32(LOG2E)}, v{acc+r}") for r in R]
        ops += [E(k, f"v_exp_f32 v{u(r)}, v{u(r)}") for r in R]
        ops += [E(k, f"v_fma_f32 v{t(r)}, v{u(r)}, 0.5, 1.0") for r in R]
        ops += [E(k, f"v_fma_f32 v{u(r)}, v{u(r)}, v{t(r)}, 1.0") for r in R]
        ops += [E(k, f"v_rcp_f32 v{u(r)}, v{u(r)}") for r in R]
        ops += [E(k, f"v_fma_f32 v{acc+r}, -v{acc+r}, v{u(r)}, v{acc+r}") for r in R]
        ops += [E(k, f"v_cvt_pk_bf16_f32 v{acc+r//2}, v{acc+r}, v{acc+r+1}") for r in range(b, b + G, 2)]
    return ops


def gen_k1(code_size):
    k = Prog("k1")
    SLOT = 40960
    sX, sQ, sW, sWS, sGW = 24, 28, 32, 36, 40
    sRB, sG, sWv, sTT, sFS, sLong, sO0, sT0, sT1 = 44, 45, 46, 47, 48, 49, 50, 51, 52
    sL2, sL1, sSo = 53, 54, 55
    sSc = [56, 57]
    sSt = [58, 59]
    sStB, sStA = 60, 61
    sMA, sMB = 62, 64
    sPC = 66
    sWbo = 68
    va = Alloc(1, 256)
    vL, vT0, vT1, vT2 = va(), va(), va(), va()
    vX0, vX1, vQ0, vQ1, vW, vL16, vPad = [va() for _ in range(7)]
    xa = [va() for _ in range(4)]
    wa = [va() for _ in range(3)]
    X = va(112, 4)
    acc = [va(16, 4) for _ in range(4)]
    Wf = [[va(4, 4) for _ in range(3)] for _ in range(3)]
    vPF = va()

    k("s_load_dwordx16 s[4:19], s[0:1], 0")
    k("s_load_dwordx2 s[20:21], s[0:1], 80")
    k("s_cmp_ge_u32 s2, 256")
    with k.if_("s_cbranch_scc0"):
        k("s_endpgm")
    prefetch_code(k, code_size, vPF, sPC)
    k(f"""
    v_lshrrev_b32 v{vT0}, 6, v0
    v_and_b32 v{vL}, 63, v0
    s_and_b32 s{sT0}, s2, 7
    v_readfirstlane_b32 s{sWv}, v{vT0}
    s_lshr_b32 s{sT1}, s2, 3
    s_lshr_b32 s{sRB}, s{sT0}, 1
    s_lshl_b32 s{sRB}, s{sRB}, 2
    s_and_b32 s3, s{sT1}, 3
    s_add_u32 s{sRB}, s{sRB}, s3
    s_and_b32 s{sG}, s{sT0}, 1
    s_lshl_b32 s{sG}, s{sG}, 3
    s_lshr_b32 s3, s{sT1}, 2
    s_add_u32 s{sG}, s{sG}, s3
    s_and_b32 s{sTT}, s{sWv}, 3
    s_lshl_b32 s{sL2}, s{sWv}, 11
    s_lshl_b32 s{sL1}, s{sWv}, 10
    s_mov_b32 s22, 0x21110000
    s_mov_b32 s23, 0x44433322
    s_lshl_b32 s3, s{sG}, 2
    s_lshr_b64 s[22:23], s[22:23], s3
    s_and_b32 s22, s22, 15
    s_lshl_b32 s22, s22, 1
    s_sub_u32 s{sFS}, s3, s22
    s_mul_i32 s{sT0}, s{sG}, 168
    s_bitcmp1_b32 0x1248, s{sG}
    s_cselect_b32 s{sLong}, 0, 1
    s_cselect_b32 s3, 15, 127
    s_cselect_b32 s{sWbo}, 0, 128
    s_and_b32 s{sO0}, s{sT0}, s3
    s_sub_u32 s{sT0}, s{sT0}, s{sO0}
    """)
    k(f"""
    v_lshrrev_b32 v{vT0}, 3, v{vL}
    s_lshl_b32 s3, s{sWv}, 4
    v_add_u32 v{vT1}, s3, v{vT0}
    v_mul_u32_u24 v{vX0}, 896, v{vT1}
    v_lshrrev_b32 v{vT1}, 4, v{vL}
    v_and_b32 v{vT2}, 7, v{vL}
    v_xor_b32 v{vX1}, v{vT2}, v{vT1}
    v_lshl_add_u32 v{vQ0}, v{vX1}, 4, v{vX0}
    v_xor_b32 v{vX1}, 4, v{vX1}
    v_lshl_add_u32 v{vX1}, v{vX1}, 4, v{vX0}
    v_add_u32 v{vX1}, {8*896-1024}, v{vX1}
    v_mov_b32 v{vX0}, v{vQ0}
    s_lshl_b32 s3, s{sWv}, 3
    v_add_u32 v{vT0}, s3, v{vT0}
    v_mul_u32_u24 v{vW}, 3584, v{vT0}
    v_and_b32 v{vT0}, 1, v{vT1}
    v_lshlrev_b32 v{vT0}, 2, v{vT0}
    v_xor_b32 v{vT0}, v{vT0}, v{vT2}
    v_lshl_add_u32 v{vW}, v{vT0}, 4, v{vW}
    v_add_u32 v{vW}, s{sWbo}, v{vW}
    v_add_u32 v{vT0}, s3, v{vT1}
    v_mul_u32_u24 v{vQ0}, 2688, v{vT0}
    v_lshlrev_b32 v{vT0}, 2, v{vT1}
    v_and_b32 v{vT2}, 15, v{vL}
    v_xor_b32 v{vT0}, v{vT0}, v{vT2}
    v_lshl_add_u32 v{vQ0}, v{vT0}, 4, v{vQ0}
    v_add_u32 v{vQ1}, {4*2688-1024}, v{vQ0}
    """)
    k(f"s_mul_i32 s3, s{sRB}, {128*896}")
    srd(k, sX, 4, 5, "s3", 128 * 896)
    k(f"s_sub_u32 s3, {448*2688}, s{sT0}")
    srd(k, sQ, 6, 7, f"s{sT0}", "s3")
    k(f"s_lshl_b32 s{sT1}, s{sFS}, 6")
    k(f"s_sub_u32 s3, {448*3584}, s{sT1}")
    srd(k, sW, 12, 13, f"s{sT1}", "s3")

    def dma_chunk(c):
        so = (c % 4) * SLOT
        t = dict(wr=[f"ch{c}"])
        return [
            [E(k, f"s_add_u32 m0, s{sL2}, {so}"), E(k, f"s_movk_i32 s{sSo}, {c*128}"),
             E(k, f"buffer_load_dwordx4 v{vX0}, {s(sX,4)}, s{sSo} offen lds", **t)],
            [E(k, f"buffer_load_dwordx4 v{vX1}, {s(sX,4)}, s{sSo} offen offset:1024 lds", **t)],
            [E(k, f"s_add_u32 m0, s{sL2}, {so+16384}"), E(k, f"s_mov_b32 s{sSo}, {c*64*2688}"),
             E(k, f"buffer_load_dwordx4 v{vQ0}, {s(sQ,4)}, s{sSo} offen lds", **t)],
            [E(k, f"buffer_load_dwordx4 v{vQ1}, {s(sQ,4)}, s{sSo} offen offset:1024 lds", **t)],
            [E(k, f"s_add_u32 m0, s{sL1}, {so+32768}"), E(k, f"s_mov_b32 s{sSo}, {c*64*3584}"),
             E(k, f"buffer_load_dwordx4 v{vW}, {s(sW,4)}, s{sSo} offen lds", **t)],
        ]

    def dma_wa(js):
        out = []
        for j in js:
            lo = 3 * SLOT + 8192 * j if j < 5 else 8192 * (j - 5)
            out.append([E(k, f"s_add_u32 m0, s{sL1}, {lo}"), E(k, f"s_mov_b32 s{sSo}, {j*64*3584}"),
                        E(k, f"buffer_load_dwordx4 v{vW}, {s(sW,4)}, s{sSo} offen lds", wr=["ch7"])])
        return out

    for g in dma_chunk(0):
        for f in g:
            f()
    k(f"""
    s_lshr_b32 s3, s{sWv}, 2
    s_add_u32 s{sT1}, s{sFS}, s3
    s_lshl_b32 s{sT0}, s{sLong}, 1
    s_add_u32 s{sT0}, s{sT0}, s{sT1}
    v_lshrrev_b32 v{vT0}, 5, v{vL}
    v_lshlrev_b32 v{vT0}, 3, v{vT0}
    s_lshl_b32 s3, s{sT0}, 6
    v_add_u32 v{vT1}, s3, v{vT0}
    s_lshl_b32 s3, s{sT1}, 6
    v_add_u32 v{vT2}, s3, v{vT0}
    """)
    for a in range(4):
        k(f"global_load_dwordx2 {v(acc[2]+4*a+2,2)}, v{vT1}, s[14:15] offset:{16*a}")
    for a in range(4):
        k(f"global_load_dwordx2 {v(acc[3]+4*a+2,2)}, v{vT2}, s[14:15] offset:{16*a}")
    for c in (1, 2, 3):
        for g in dma_chunk(c):
            for f in g:
                f()
    srd(k, sWS, 20, 21, 0, WS_SIZE)
    srd(k, sGW, 18, 19, 0, 896)
    k(f"""
    s_lshl_b32 s3, s{sRB}, 2
    s_add_u32 s3, s3, s{sTT}
    s_mul_i32 s22, s3, 56
    s_add_u32 s{sStB}, s22, s{sT0}
    s_add_u32 s{sStA}, s22, s{sT1}
    s_lshl_b32 s{sStB}, s{sStB}, 11
    s_lshl_b32 s{sStA}, s{sStA}, 11
    s_add_u32 s{sStB}, s{sStB}, {WS_ACT}
    s_add_u32 s{sStA}, s{sStA}, {WS_ACT}
    s_mul_i32 s22, s{sG}, 3
    s_lshr_b32 s23, s{sWv}, 2
    s_lshl_b32 s23, s23, 1
    s_add_u32 s22, s22, s23
    s_cmp_lt_u32 s22, 16
    s_cselect_b32 s{sSc[0]}, {f32(28 ** -0.5 * LOG2E)}, 1.0
    s_cmp_lt_u32 s22, 15
    s_cselect_b32 s{sSc[1]}, {f32(28 ** -0.5 * LOG2E)}, 1.0
    s_lshl_b32 s{sSt[0]}, s22, 6
    s_add_u32 s{sSt[0]}, s{sSt[0]}, s3
    s_lshl_b32 s{sSt[0]}, s{sSt[0]}, 11
    s_add_u32 s{sSt[1]}, s{sSt[0]}, {64*2048}
    s_mul_i32 s23, s23, 56
    s_add_u32 s{sO0}, s{sO0}, s23
    s_cmp_ge_u32 s22, 32
    s_cselect_b32 s{sMA}, 0xf0000000, 0
    s_cselect_b32 s{sMA+1}, 0xf0000000, 0
    s_cselect_b32 s{sMB}, 0xf0000000, 0
    s_cselect_b32 s{sMB+1}, 0xf0000000, -1
    s_cselect_b32 s23, 0x3f803f80, 0
    s_cselect_b32 s{sT0}, 1, 0
    """)
    k(f"""
    v_lshlrev_b32 v{vL16}, 4, v{vL}
    v_and_b32 v{vT0}, 31, v{vL}
    v_mov_b32 v{vT1}, s23
    v_cmp_eq_u32 vcc, 28, v{vT0}
    v_cndmask_b32 v{vPad}, 0, v{vT1}, vcc
    s_lshl_b32 s3, s{sTT}, 5
    v_add_u32 v{vT1}, s3, v{vT0}
    v_lshlrev_b32 v{vT1}, 7, v{vT1}
    v_bfe_u32 v{vT0}, v{vL}, 1, 3
    v_lshrrev_b32 v{vT2}, 5, v{vL}
    v_xor_b32 v{vT0}, v{vT0}, v{vT2}
    v_lshl_add_u32 v{xa[0]}, v{vT0}, 4, v{vT1}
    v_xor_b32 v{xa[1]}, 32, v{xa[0]}
    v_xor_b32 v{xa[2]}, 64, v{xa[0]}
    v_xor_b32 v{xa[3]}, 96, v{xa[0]}
    """)
    k(f"""
    v_bfe_u32 v{vT0}, v{vL}, 2, 2
    v_lshl_add_u32 v{vT2}, v{vT2}, 3, v{vT0}
    v_bfe_u32 v{vT1}, v{vL}, 4, 1
    v_and_b32 v{wa[2]}, 3, v{vL}
    v_lshl_add_u32 v{vT1}, v{vT1}, 2, v{wa[2]}
    v_min_u32 v{wa[0]}, 6, v{vT1}
    v_lshlrev_b32 v{wa[0]}, 3, v{wa[0]}
    v_add_u32 v{wa[0]}, s{sO0}, v{wa[0]}
    v_add_u32 v{wa[1]}, 56, v{wa[0]}
    v_lshlrev_b32 v{wa[2]}, 6, v{vT0}
    v_xor_b32 v{wa[0]}, v{wa[0]}, v{wa[2]}
    v_xor_b32 v{wa[1]}, v{wa[1]}, v{wa[2]}
    v_lshl_add_u32 v{wa[0]}, v{vT2}, 8, v{wa[0]}
    v_lshl_add_u32 v{wa[1]}, v{vT2}, 8, v{wa[1]}
    v_add_u32 v{wa[0]}, 16384, v{wa[0]}
    v_add_u32 v{wa[1]}, 16384, v{wa[1]}
    s_lshr_b32 s3, s{sWv}, 2
    v_lshrrev_b32 v{vT0}, 1, v{vT0}
    v_xor_b32 v{vT0}, s3, v{vT0}
    v_lshlrev_b32 v{vT0}, 6, v{vT0}
    v_lshl_add_u32 v{vT0}, v{vT1}, 3, v{vT0}
    v_lshl_add_u32 v{wa[2]}, v{vT2}, 7, v{vT0}
    v_add_u32 v{wa[2]}, 32768, v{wa[2]}
    """)
    for t in (2, 3):
        for a in range(4):
            b = acc[t] + 4 * a
            k(f"""
            v_lshlrev_b32 v{b}, 16, v{b+2}
            v_and_b32 v{b+1}, 0xffff0000, v{b+2}
            v_lshlrev_b32 v{b+2}, 16, v{b+3}
            v_and_b32 v{b+3}, 0xffff0000, v{b+3}
            """)

    def reads(role, n):
        out = []
        tiles = [0, 1, 2] if role == 0 else [0, 2]
        if n < 28:
            c, st = n >> 2, n & 3
            if st == 0 and c in (2, 4, 6):
                d = "v_add_u32" if c != 4 else "v_subrev_u32"
                out += [E(k, f"{d} v{r}, {2*SLOT}, v{r}") for r in xa + [wa[t] for t in tiles]]
            base = (c & 1) * SLOT
            t_ = dict(wr=[f"rd{c}"])
            out.append(E(k, f"ds_read_b128 {v(X+4*n,4)}, v{xa[st]} offset:{base}", **t_))
            for t in tiles:
                rs = 256 if t < 2 else 128
                for e in range(2):
                    out.append(E(k, f"ds_read_b64_tr_b16 {v(Wf[t][n%3]+2*e,2)}, v{wa[t]} offset:{base+(16*st+4*e)*rs}", **t_))
        else:
            m = n - 28
            j, st = m >> 2, m & 3
            if m == 20:
                out.append(E(k, f"v_subrev_u32 v{wa[2]}, {2*SLOT+32768}, v{wa[2]}"))
            base = 8192 + 8192 * j if j < 5 else 8192 * (j - 5)
            for e in range(2):
                out.append(E(k, f"ds_read_b64_tr_b16 {v(Wf[2][n%3]+2*e,2)}, v{wa[2]} offset:{base+(16*st+4*e)*128}"))
        return out

    def pass1(role, isV):
        tiles = [0, 1, 2] if role == 0 else [0, 2]
        k.need("ch0")
        k("s_barrier")
        for f in reads(role, 0) + reads(role, 1):
            f()
        pend = []
        for n in range(28):
            ms = []
            for t in tiles:
                a, b = v(Wf[t][n % 3], 4), v(X + 4 * n, 4)
                if isV and t < 2:
                    a, b = b, a
                cc = "0" if (n == 0 and t < 2) else v(acc[t], 16)
                ms.append([E(k, f"{MFMA} {v(acc[t],16)}, {a}, {b}, {cc}")])
            if (n + 2) % 4 == 0:
                c = (n + 2) // 4
                spread(k, ms, [])
                k.need(f"rd{c-1}", f"ch{c}")
                k("s_barrier")
                for f in reads(role, n + 2):
                    f()
                if c <= 3:
                    pend = dma_chunk(c + 3)
                elif c == 4:
                    pend = [[E(k, f"v_subrev_u32 v{vW}, s{sWbo}, v{vW}")]] + dma_wa(range(5))
                elif c == 5:
                    pend = dma_wa([5, 6])
            else:
                fill = reads(role, n + 2)
                take, pend = pend[:2], pend[2:]
                fill2 = []
                for i, f in enumerate(fill):
                    fill2.append(f)
                for g in take:
                    fill2.append(lambda g=g: [f() for f in g])
                spread(k, ms, fill2)
        assert not pend

    def qkv_epi(t):
        a = acc[t]
        ops = [E(k, f"v_mul_f32 v{a+r}, s{sSc[t]}, v{a+r}") for r in range(16)]
        ops += [E(k, f"v_cvt_pk_bf16_f32 v{a+r}, v{a+2*r}, v{a+2*r+1}") for r in range(8)]
        ops += [E(k, f"v_cndmask_b32 v{a+r}, v{a+r}, v{vPad}, {s(sMA if r < 6 else sMB,2)}") for r in range(8)]
        ops += [E(k, f"buffer_store_dwordx4 {v(a+4*i,4)}, v{vL16}, {s(sWS,4)}, s{sSt[t]} offen offset:{1024*i}{OPT['st']}") for i in range(2)]
        return ops

    def act_store(t, so):
        return [E(k, f"buffer_store_dwordx4 {v(acc[t]+4*i,4)}, v{vL16}, {s(sWS,4)}, s{so} offen offset:{1024*i}{OPT['st']}") for i in range(2)]

    tmp = Wf[0][0]

    def pass2(role, mode):
        fill = qkv_epi(0) + (qkv_epi(1) if role == 0 else []) + mish_ops(k, acc[2], tmp) + act_store(2, sStB)
        if mode == "long":
            groups = []
            for n in range(28, 56):
                g = [E(k, f"{MFMA} {v(acc[3],16)}, {v(Wf[2][n%3],4)}, {v(X+4*(n-28),4)}, {v(acc[3],16)}")]
                if n + 2 < 56:
                    g += reads(role, n + 2)
                groups.append(g)
            for f in groups[0] + groups[1]:
                f()
            spread(k, groups[2:], fill)
            for f in mish_ops(k, acc[3], tmp) + act_store(3, sStA):
                f()
        elif mode == "short":
            for f in fill:
                f()
        else:
            k(f"s_add_u32 m0, s{sL1}, {SLOT}")
            k("s_nop 0")
            k(f"buffer_load_dwordx4 v{vL16}, {s(sGW,4)}, 0 offen lds", wr=["gw"])
            k(f"v_lshrrev_b32 v{wa[2]}, 5, v{vL}")
            k(f"v_lshlrev_b32 v{wa[2]}, 4, v{wa[2]}")
            k(f"v_add_u32 v{wa[2]}, s{sL1}, v{wa[2]}")
            for f in fill:
                f()
            k.need("gw")
            G = [tmp + 8 + 4 * i for i in range(4)]
            rd = lambda n: k(f"ds_read_b128 {v(G[n%4],4)}, v{wa[2]} offset:{SLOT+32*n}")
            for n in range(3):
                rd(n)
            for n in range(28):
                if n + 3 < 28:
                    rd(n + 3)
                k(f"{MFMA} {v(acc[3],16)}, {v(G[n%4],4)}, {v(X+4*n,4)}, {'0' if n == 0 else v(acc[3],16)}")
            a = acc[3]
            k(f"""
            s_lshl_b32 s3, s{sRB}, 2
            s_add_u32 s3, s3, s{sTT}
            s_lshl_b32 s3, s3, 7
            s_add_u32 s3, s3, {WS_G}
            v_and_b32 v{vT0}, 31, v{vL}
            v_lshlrev_b32 v{vT0}, 2, v{vT0}
            v_mul_f32 v{a}, {f32(-LOG2E)}, v{a}
            v_exp_f32 v{a}, v{a}
            v_add_f32 v{a}, 1.0, v{a}
            v_rcp_f32 v{a}, v{a}
            buffer_store_dword v{a}, v{vT0}, {s(sWS,4)}, s3 offen{OPT['st']}
            """)
        k("s_endpgm")

    k(f"s_cmp_lt_u32 s{sWv}, 4")
    with k.if_("s_cbranch_scc0") as r:
        for role in (0, 1):
            if role == 1:
                r.else_()
            k(f"s_cmp_eq_u32 s{sT0}, 0")
            with k.if_("s_cbranch_scc0") as iv:
                pass1(role, False)
                iv.else_()
                pass1(role, True)
            k(f"s_cmp_eq_u32 s{sLong}, 1")
            with k.if_("s_cbranch_scc0") as lg:
                pass2(role, "long")
                lg.else_()
                if role == 0:
                    k(f"s_cmp_eq_u32 s{sG}, 3")
                    with k.if_("s_cbranch_scc0") as gt:
                        pass2(role, "gate")
                        gt.else_()
                        pass2(role, "short")
                else:
                    pass2(role, "short")
    return k


def kernel_text(label, body):
    return f""".globl {label}
.p2align 8
.type {label},@function
{label}:
{body}
"""


def desc_text(label):
    return f""".p2align 6
.amdhsa_kernel {label}
  .amdhsa_next_free_vgpr 256
  .amdhsa_next_free_sgpr 102
  .amdhsa_accum_offset 256
  .amdhsa_group_segment_fixed_size 0
  .amdhsa_kernarg_size 88
  .amdhsa_user_sgpr_count 2
  .amdhsa_user_sgpr_kernarg_segment_ptr 1
  .amdhsa_system_sgpr_workgroup_id_x 1
.end_amdhsa_kernel
"""


def code_bytes(body):
    import subprocess, tempfile
    with tempfile.TemporaryDirectory() as d:
        p = os.path.join(d, "t.s")
        open(p, "w").write('.amdgcn_target "amdgcn-amd-amdhsa--gfx950"\n.text\n' + body + "\n")
        r = subprocess.run(["clang", "-x", "assembler", "-target", "amdgcn-amd-amdhsa", "-mcpu=gfx950",
                            "-c", p, "-o", p + ".o"], capture_output=True, text=True)
        if r.returncode:
            print(r.stderr[:3000])
            open("fail.s", "w").write(open(p).read())
            raise SystemExit("assembly failed (see fail.s)")
        r = subprocess.run(["size", "-A", p + ".o"], capture_output=True, text=True)
        for line in r.stdout.splitlines():
            if line.startswith(".text"):
                return int(line.split()[1])


def build(kernels):
    head, text, desc = [], [], []
    seen = set()
    for label, gf, grid, block, lds in kernels:
        if len(kernels) == 1:
            head.append(f"; @launch grid=({grid},1,1) block=({block},1,1) lds={lds}")
        else:
            head.append(f"; @launch kernel={label} grid=({grid},1,1) block=({block},1,1) lds={lds}")
        if label in seen:
            continue
        seen.add(label)
        size = code_bytes(gf(4096).finish())
        p = gf(size)
        body = p.finish()
        print(f"{label}: {size} bytes, nops inserted {p.nops_inserted}", file=sys.stderr)
        text.append(kernel_text(label, body))
        desc.append(desc_text(label))
    return ("\n".join(head) + '\n.amdgcn_target "amdgcn-amd-amdhsa--gfx950"\n.text\n' + "".join(text)
            + '.section .rodata,"a"\n' + "".join(desc))


if __name__ == "__main__":
    from gen23 import gen_k2, gen_k3
    ks = [("k1_kernel", gen_k1, 256, 512, 163840),
          ("k2_kernel", gen_k2, 256, 512, 163840),
          ("k3_kernel", gen_k3, 256, 512, 163840)]
    out = sys.argv[1] if len(sys.argv) > 1 else f"cdna_kernels/{NAME}.s"
    open(out, "w").write(build(ks))
```

```python
import math, struct, sys, os
sys.path.insert(0, os.path.dirname(os.path.abspath(__file__)))
from asmlib import *

NAME = "gated_mix__softmax_full_mha__dense_activation_mish__prompt"
WS_QKV, WS_ACT, WS_OF, WS_PART, WS_G, WS_SIZE = 0, 0x600000, 0xD00000, 0xF00000, 0x1600000, 0x1700000
LOG2E = math.log2(math.e)


def f32(x):
    return "0x%08x" % struct.unpack("<I", struct.pack("<f", x))[0]


MFMA = "v_mfma_f32_32x32x16_bf16"
SMF = "v_smfmac_f32_32x32x32_bf16"
OPT = dict(st="", pf=True)


def srd(k, d, lo, hi, off, nrec):
    k(f"s_add_u32 s{d}, s{lo}, {off}")
    k(f"s_addc_u32 s{d+1}, s{hi}, 0")
    k(f"s_mov_b32 s{d+2}, {nrec}")
    k(f"s_mov_b32 s{d+3}, 0x20000")


def wsoff(k, r):
    if OPT.get("wsoff"):
        k(f"s_add_u32 s{r}, s{r}, {OPT['wsoff'] << 20}")
        k(f"s_addc_u32 s{r+1}, s{r+1}, 0")


def prefetch_code(k, size, vt, st):
    if not OPT["pf"]:
        return
    k(f"s_getpc_b64 {s(st, 2)}")
    k(f"v_lshlrev_b32 v{vt}, 7, v0")
    k(f"v_min_u32 v{vt}, {max(size - 64, 0) & ~3}, v{vt}")
    k(f"global_load_dword v{vt}, v{vt}, {s(st, 2)}")


WS_DBG = 0x1610000
SST = 70


def stamp(k, i, real=False):
    if OPT.get("stamp"):
        k(f"{'s_memrealtime' if real else 's_memtime'} {s(SST + 2 * i, 2)}")


def endpgm(k, kid, sWS, n=14):
    if OPT.get("stamp"):
        k("s_waitcnt vmcnt(0)")
        stamp(k, n)
        stamp(k, 15, True)
        k(f"""
        v_lshrrev_b32 v1, 6, v0
        v_lshlrev_b32 v1, 6, v1
        s_lshl_b32 s3, s2, 9
        s_add_u32 s3, s3, {WS_DBG + kid * 0x20000}
        """)
        for i in range(16):
            k(f"v_mov_b32 v2, s{SST + 2 * i}")
            k(f"buffer_store_dword v2, v1, {s(sWS, 4)}, s3 offen offset:{4 * i}")
    k("s_endpgm")


def spread(k, groups, fill):
    n = len(groups)
    done = 0
    for i, g in enumerate(groups):
        for f in g:
            f()
        tgt = (len(fill) * (i + 1) + n - 1) // n
        while done < min(tgt, len(fill)):
            fill[done]()
            done += 1


def E(k, text, **kw):
    return lambda: k(text, **kw)


def mish_ops(k, acc, tmp, G=4):
    ops = []
    for b in range(0, 16, G):
        R = range(b, b + G)
        u = lambda r: tmp + (r - b)
        t = lambda r: tmp + G + (r - b)
        ops += [E(k, f"v_mul_f32 v{u(r)}, {f32(LOG2E)}, v{acc+r}") for r in R]
        ops += [E(k, f"v_exp_f32 v{u(r)}, v{u(r)}") for r in R]
        ops += [E(k, f"v_fma_f32 v{t(r)}, v{u(r)}, 0.5, 1.0") for r in R]
        ops += [E(k, f"v_fma_f32 v{u(r)}, v{u(r)}, v{t(r)}, 1.0") for r in R]
        ops += [E(k, f"v_rcp_f32 v{u(r)}, v{u(r)}") for r in R]
        ops += [E(k, f"v_fma_f32 v{acc+r}, -v{acc+r}, v{u(r)}, v{acc+r}") for r in R]
        ops += [E(k, f"v_cvt_pk_bf16_f32 v{acc+r//2}, v{acc+r}, v{acc+r+1}") for r in range(b, b + G, 2)]
    return ops


def gen_k1(code_size):
    k = Prog("k1")
    SLOT = 40960
    sX, sQ, sW, sWS, sGW = 24, 28, 32, 36, 40
    sRB, sG, sWv, sTT, sFS, sLong, sO0, sT0, sT1 = 44, 45, 46, 47, 48, 49, 50, 51, 52
    sL2, sL1, sSo = 53, 54, 55
    sSc = [56, 57]
    sSt = [58, 59]
    sStB, sStA = 60, 61
    sMA, sMB = 62, 64
    sPC = 66
    sWbo = 68
    va = Alloc(1, 256)
    vL, vT0, vT1, vT2 = va(), va(), va(), va()
    vX0, vX1, vQ0, vQ1, vW, vL16, vPad = [va() for _ in range(7)]
    xa = [va() for _ in range(4)]
    wa = [va() for _ in range(3)]
    X = va(112, 4)
    acc = [va(16, 4) for _ in range(4)]
    Wf = [[va(4, 4) for _ in range(3)] for _ in range(3)]
    vPF = va()

    k("s_load_dwordx16 s[4:19], s[0:1], 0")
    k("s_load_dwordx2 s[20:21], s[0:1], 80")
    k("s_cmp_ge_u32 s2, 256")
    with k.if_("s_cbranch_scc0"):
        k("s_endpgm")
    stamp(k, 0, True)
    stamp(k, 1)
    prefetch_code(k, code_size, vPF, sPC)
    k(f"""
    v_lshrrev_b32 v{vT0}, 6, v0
    v_and_b32 v{vL}, 63, v0
    s_and_b32 s{sT0}, s2, 7
    v_readfirstlane_b32 s{sWv}, v{vT0}
    s_lshr_b32 s{sT1}, s2, 3
    s_lshr_b32 s{sRB}, s{sT0}, 1
    s_lshl_b32 s{sRB}, s{sRB}, 2
    s_and_b32 s3, s{sT1}, 3
    s_add_u32 s{sRB}, s{sRB}, s3
    s_and_b32 s{sG}, s{sT0}, 1
    s_lshl_b32 s{sG}, s{sG}, 3
    s_lshr_b32 s3, s{sT1}, 2
    s_add_u32 s{sG}, s{sG}, s3
    s_and_b32 s{sTT}, s{sWv}, 3
    s_lshl_b32 s{sL2}, s{sWv}, 11
    s_lshl_b32 s{sL1}, s{sWv}, 10
    s_mov_b32 s22, 0x21110000
    s_mov_b32 s23, 0x44433322
    s_lshl_b32 s3, s{sG}, 2
    s_lshr_b64 s[22:23], s[22:23], s3
    s_and_b32 s22, s22, 15
    s_lshl_b32 s22, s22, 1
    s_sub_u32 s{sFS}, s3, s22
    s_mul_i32 s{sT0}, s{sG}, 168
    s_bitcmp1_b32 0x1248, s{sG}
    s_cselect_b32 s{sLong}, 0, 1
    s_cselect_b32 s3, 15, 127
    s_cselect_b32 s{sWbo}, 0, 128
    s_and_b32 s{sO0}, s{sT0}, s3
    s_sub_u32 s{sT0}, s{sT0}, s{sO0}
    """)
    k(f"""
    v_lshrrev_b32 v{vT0}, 3, v{vL}
    s_lshl_b32 s3, s{sWv}, 4
    v_add_u32 v{vT1}, s3, v{vT0}
    v_mul_u32_u24 v{vX0}, 896, v{vT1}
    v_lshrrev_b32 v{vT1}, 4, v{vL}
    v_and_b32 v{vT2}, 7, v{vL}
    v_xor_b32 v{vX1}, v{vT2}, v{vT1}
    v_lshl_add_u32 v{vQ0}, v{vX1}, 4, v{vX0}
    v_xor_b32 v{vX1}, 4, v{vX1}
    v_lshl_add_u32 v{vX1}, v{vX1}, 4, v{vX0}
    v_add_u32 v{vX1}, {8*896-1024}, v{vX1}
    v_mov_b32 v{vX0}, v{vQ0}
    s_lshl_b32 s3, s{sWv}, 3
    v_add_u32 v{vT0}, s3, v{vT0}
    v_mul_u32_u24 v{vW}, 3584, v{vT0}
    v_and_b32 v{vT0}, 1, v{vT1}
    v_lshlrev_b32 v{vT0}, 2, v{vT0}
    v_xor_b32 v{vT0}, v{vT0}, v{vT2}
    v_lshl_add_u32 v{vW}, v{vT0}, 4, v{vW}
    v_add_u32 v{vW}, s{sWbo}, v{vW}
    v_add_u32 v{vT0}, s3, v{vT1}
    v_mul_u32_u24 v{vQ0}, 2688, v{vT0}
    v_lshlrev_b32 v{vT0}, 2, v{vT1}
    v_and_b32 v{vT2}, 15, v{vL}
    v_xor_b32 v{vT0}, v{vT0}, v{vT2}
    v_lshl_add_u32 v{vQ0}, v{vT0}, 4, v{vQ0}
    v_add_u32 v{vQ1}, {4*2688-1024}, v{vQ0}
    """)
    k(f"s_mul_i32 s3, s{sRB}, {128*896}")
    srd(k, sX, 4, 5, "s3", 128 * 896)
    k(f"s_sub_u32 s3, {448*2688}, s{sT0}")
    srd(k, sQ, 6, 7, f"s{sT0}", "s3")
    k(f"s_lshl_b32 s{sT1}, s{sFS}, 6")
    k(f"s_sub_u32 s3, {448*3584}, s{sT1}")
    srd(k, sW, 12, 13, f"s{sT1}", "s3")

    def dma_chunk(c):
        so = (c % 4) * SLOT
        t = dict(wr=[f"ch{c}"])
        return [
            [E(k, f"s_add_u32 m0, s{sL2}, {so}"), E(k, f"s_movk_i32 s{sSo}, {c*128}"),
             E(k, f"buffer_load_dwordx4 v{vX0}, {s(sX,4)}, s{sSo} offen lds", **t)],
            [E(k, f"buffer_load_dwordx4 v{vX1}, {s(sX,4)}, s{sSo} offen offset:1024 lds", **t)],
            [E(k, f"s_add_u32 m0, s{sL2}, {so+16384}"), E(k, f"s_mov_b32 s{sSo}, {c*64*2688}"),
             E(k, f"buffer_load_dwordx4 v{vQ0}, {s(sQ,4)}, s{sSo} offen lds", **t)],
            [E(k, f"buffer_load_dwordx4 v{vQ1}, {s(sQ,4)}, s{sSo} offen offset:1024 lds", **t)],
            [E(k, f"s_add_u32 m0, s{sL1}, {so+32768}"), E(k, f"s_mov_b32 s{sSo}, {c*64*3584}"),
             E(k, f"buffer_load_dwordx4 v{vW}, {s(sW,4)}, s{sSo} offen lds", **t)],
        ]

    def dma_wa(js):
        out = []
        for j in js:
            lo = 3 * SLOT + 8192 * j if j < 5 else 8192 * (j - 5)
            out.append([E(k, f"s_add_u32 m0, s{sL1}, {lo}"), E(k, f"s_mov_b32 s{sSo}, {j*64*3584}"),
                        E(k, f"buffer_load_dwordx4 v{vW}, {s(sW,4)}, s{sSo} offen lds", wr=["ch7"])])
        return out

    stamp(k, 2)
    for g in dma_chunk(0):
        for f in g:
            f()
    k(f"""
    s_lshr_b32 s3, s{sWv}, 2
    s_add_u32 s{sT1}, s{sFS}, s3
    s_lshl_b32 s{sT0}, s{sLong}, 1
    s_add_u32 s{sT0}, s{sT0}, s{sT1}
    v_lshrrev_b32 v{vT0}, 5, v{vL}
    v_lshlrev_b32 v{vT0}, 3, v{vT0}
    s_lshl_b32 s3, s{sT0}, 6
    v_add_u32 v{vT1}, s3, v{vT0}
    s_lshl_b32 s3, s{sT1}, 6
    v_add_u32 v{vT2}, s3, v{vT0}
    """)
    for a in range(4):
        k(f"global_load_dwordx2 {v(acc[2]+4*a+2,2)}, v{vT1}, s[14:15] offset:{16*a}")
    for a in range(4):
        k(f"global_load_dwordx2 {v(acc[3]+4*a+2,2)}, v{vT2}, s[14:15] offset:{16*a}")
    for c in (1, 2, 3):
        for g in dma_chunk(c):
            for f in g:
                f()
    wsoff(k, 20)
    srd(k, sWS, 20, 21, 0, WS_SIZE)
    srd(k, sGW, 18, 19, 0, 896)
    k(f"""
    s_lshl_b32 s3, s{sRB}, 2
    s_add_u32 s3, s3, s{sTT}
    s_mul_i32 s22, s3, 56
    s_add_u32 s{sStB}, s22, s{sT0}
    s_add_u32 s{sStA}, s22, s{sT1}
    s_lshl_b32 s{sStB}, s{sStB}, 11
    s_lshl_b32 s{sStA}, s{sStA}, 11
    s_add_u32 s{sStB}, s{sStB}, {WS_ACT}
    s_add_u32 s{sStA}, s{sStA}, {WS_ACT}
    s_mul_i32 s22, s{sG}, 3
    s_lshr_b32 s23, s{sWv}, 2
    s_lshl_b32 s23, s23, 1
    s_add_u32 s22, s22, s23
    s_cmp_lt_u32 s22, 16
    s_cselect_b32 s{sSc[0]}, {f32(28 ** -0.5 * LOG2E)}, 1.0
    s_cmp_lt_u32 s22, 15
    s_cselect_b32 s{sSc[1]}, {f32(28 ** -0.5 * LOG2E)}, 1.0
    s_lshl_b32 s{sSt[0]}, s22, 6
    s_add_u32 s{sSt[0]}, s{sSt[0]}, s3
    s_lshl_b32 s{sSt[0]}, s{sSt[0]}, 11
    s_add_u32 s{sSt[1]}, s{sSt[0]}, {64*2048}
    s_mul_i32 s23, s23, 56
    s_add_u32 s{sO0}, s{sO0}, s23
    s_cmp_ge_u32 s22, 32
    s_cselect_b32 s{sMA}, 0xf0000000, 0
    s_cselect_b32 s{sMA+1}, 0xf0000000, 0
    s_cselect_b32 s{sMB}, 0xf0000000, 0
    s_cselect_b32 s{sMB+1}, 0xf0000000, -1
    s_cselect_b32 s23, 0x3f803f80, 0
    s_cselect_b32 s{sT0}, 1, 0
    """)
    k(f"""
    v_lshlrev_b32 v{vL16}, 4, v{vL}
    v_and_b32 v{vT0}, 31, v{vL}
    v_mov_b32 v{vT1}, s23
    v_cmp_eq_u32 vcc, 28, v{vT0}
    v_cndmask_b32 v{vPad}, 0, v{vT1}, vcc
    s_lshl_b32 s3, s{sTT}, 5
    v_add_u32 v{vT1}, s3, v{vT0}
    v_lshlrev_b32 v{vT1}, 7, v{vT1}
    v_bfe_u32 v{vT0}, v{vL}, 1, 3
    v_lshrrev_b32 v{vT2}, 5, v{vL}
    v_xor_b32 v{vT0}, v{vT0}, v{vT2}
    v_lshl_add_u32 v{xa[0]}, v{vT0}, 4, v{vT1}
    v_xor_b32 v{xa[1]}, 32, v{xa[0]}
    v_xor_b32 v{xa[2]}, 64, v{xa[0]}
    v_xor_b32 v{xa[3]}, 96, v{xa[0]}
    """)
    k(f"""
    v_bfe_u32 v{vT0}, v{vL}, 2, 2
    v_lshl_add_u32 v{vT2}, v{vT2}, 3, v{vT0}
    v_bfe_u32 v{vT1}, v{vL}, 4, 1
    v_and_b32 v{wa[2]}, 3, v{vL}
    v_lshl_add_u32 v{vT1}, v{vT1}, 2, v{wa[2]}
    v_min_u32 v{wa[0]}, 6, v{vT1}
    v_lshlrev_b32 v{wa[0]}, 3, v{wa[0]}
    v_add_u32 v{wa[0]}, s{sO0}, v{wa[0]}
    v_add_u32 v{wa[1]}, 56, v{wa[0]}
    v_lshlrev_b32 v{wa[2]}, 6, v{vT0}
    v_xor_b32 v{wa[0]}, v{wa[0]}, v{wa[2]}
    v_xor_b32 v{wa[1]}, v{wa[1]}, v{wa[2]}
    v_lshl_add_u32 v{wa[0]}, v{vT2}, 8, v{wa[0]}
    v_lshl_add_u32 v{wa[1]}, v{vT2}, 8, v{wa[1]}
    v_add_u32 v{wa[0]}, 16384, v{wa[0]}
    v_add_u32 v{wa[1]}, 16384, v{wa[1]}
    s_lshr_b32 s3, s{sWv}, 2
    v_lshrrev_b32 v{vT0}, 1, v{vT0}
    v_xor_b32 v{vT0}, s3, v{vT0}
    v_lshlrev_b32 v{vT0}, 6, v{vT0}
    v_lshl_add_u32 v{vT0}, v{vT1}, 3, v{vT0}
    v_lshl_add_u32 v{wa[2]}, v{vT2}, 7, v{vT0}
    v_add_u32 v{wa[2]}, 32768, v{wa[2]}
    """)
    for t in (2, 3):
        for a in range(4):
            b = acc[t] + 4 * a
            k(f"""
            v_lshlrev_b32 v{b}, 16, v{b+2}
            v_and_b32 v{b+1}, 0xffff0000, v{b+2}
            v_lshlrev_b32 v{b+2}, 16, v{b+3}
            v_and_b32 v{b+3}, 0xffff0000, v{b+3}
            """)

    def reads(role, n):
        out = []
        tiles = [0, 1, 2] if role == 0 else [0, 2]
        if n < 28:
            c, st = n >> 2, n & 3
            if st == 0 and c in (2, 4, 6):
                d = "v_add_u32" if c != 4 else "v_subrev_u32"
                out += [E(k, f"{d} v{r}, {2*SLOT}, v{r}") for r in xa + [wa[t] for t in tiles]]
            base = (c & 1) * SLOT
            t_ = dict(wr=[f"rd{c}"])
            out.append(E(k, f"ds_read_b128 {v(X+4*n,4)}, v{xa[st]} offset:{base}", **t_))
            for t in tiles:
                rs = 256 if t < 2 else 128
                for e in range(2):
                    out.append(E(k, f"ds_read_b64_tr_b16 {v(Wf[t][n%3]+2*e,2)}, v{wa[t]} offset:{base+(16*st+4*e)*rs}", **t_))
        else:
            m = n - 28
            j, st = m >> 2, m & 3
            if m == 20:
                out.append(E(k, f"v_subrev_u32 v{wa[2]}, {2*SLOT+32768}, v{wa[2]}"))
            base = 8192 + 8192 * j if j < 5 else 8192 * (j - 5)
            for e in range(2):
                out.append(E(k, f"ds_read_b64_tr_b16 {v(Wf[2][n%3]+2*e,2)}, v{wa[2]} offset:{base+(16*st+4*e)*128}"))
        return out

    def pass1(role, isV):
        tiles = [0, 1, 2] if role == 0 else [0, 2]
        k.need("ch0")
        k("s_barrier")
        stamp(k, 3)
        for f in reads(role, 0) + reads(role, 1):
            f()
        pend = []
        for n in range(28):
            ms = []
            for t in tiles:
                a, b = v(Wf[t][n % 3], 4), v(X + 4 * n, 4)
                if isV and t < 2:
                    a, b = b, a
                cc = "0" if (n == 0 and t < 2) else v(acc[t], 16)
                ms.append([E(k, f"{MFMA} {v(acc[t],16)}, {a}, {b}, {cc}")])
            if (n + 2) % 4 == 0:
                c = (n + 2) // 4
                spread(k, ms, [])
                k.need(f"rd{c-1}", f"ch{c}")
                k("s_barrier")
                stamp(k, 3 + c)
                for f in reads(role, n + 2):
                    f()
                if c <= 3:
                    pend = dma_chunk(c + 3)
                elif c == 4:
                    pend = [[E(k, f"v_subrev_u32 v{vW}, s{sWbo}, v{vW}")]] + dma_wa(range(5))
                elif c == 5:
                    pend = dma_wa([5, 6])
            else:
                fill = reads(role, n + 2)
                take, pend = pend[:2], pend[2:]
                fill2 = []
                for i, f in enumerate(fill):
                    fill2.append(f)
                for g in take:
                    fill2.append(lambda g=g: [f() for f in g])
                spread(k, ms, fill2)
        assert not pend

    def qkv_epi(t):
        a = acc[t]
        ops = [E(k, f"v_mul_f32 v{a+r}, s{sSc[t]}, v{a+r}") for r in range(16)]
        ops += [E(k, f"v_cvt_pk_bf16_f32 v{a+r}, v{a+2*r}, v{a+2*r+1}") for r in range(8)]
        ops += [E(k, f"v_cndmask_b32 v{a+r}, v{a+r}, v{vPad}, {s(sMA if r < 6 else sMB,2)}") for r in range(8)]
        ops += [E(k, f"buffer_store_dwordx4 {v(a+4*i,4)}, v{vL16}, {s(sWS,4)}, s{sSt[t]} offen offset:{1024*i}{OPT['st']}") for i in range(2)]
        return ops

    def act_store(t, so):
        return [E(k, f"buffer_store_dwordx4 {v(acc[t]+4*i,4)}, v{vL16}, {s(sWS,4)}, s{so} offen offset:{1024*i}{OPT['st']}") for i in range(2)]

    tmp = Wf[0][0]

    def pass2(role, mode):
        fill = qkv_epi(0) + (qkv_epi(1) if role == 0 else []) + mish_ops(k, acc[2], tmp) + act_store(2, sStB)
        if mode == "long":
            groups = []
            for n in range(28, 56):
                g = [E(k, f"{MFMA} {v(acc[3],16)}, {v(Wf[2][n%3],4)}, {v(X+4*(n-28),4)}, {v(acc[3],16)}")]
                if n + 2 < 56:
                    g += reads(role, n + 2)
                groups.append(g)
            for f in groups[0] + groups[1]:
                f()
            spread(k, groups[2:], fill)
            stamp(k, 11)
            for f in mish_ops(k, acc[3], tmp) + act_store(3, sStA):
                f()
        elif mode == "short":
            for f in fill:
                f()
        else:
            k(f"s_add_u32 m0, s{sL1}, {SLOT}")
            k("s_nop 0")
            k(f"buffer_load_dwordx4 v{vL16}, {s(sGW,4)}, 0 offen lds", wr=["gw"])
            k(f"v_lshrrev_b32 v{wa[2]}, 5, v{vL}")
            k(f"v_lshlrev_b32 v{wa[2]}, 4, v{wa[2]}")
            k(f"v_add_u32 v{wa[2]}, s{sL1}, v{wa[2]}")
            for f in fill:
                f()
            k.need("gw")
            G = [tmp + 8 + 4 * i for i in range(4)]
            rd = lambda n: k(f"ds_read_b128 {v(G[n%4],4)}, v{wa[2]} offset:{SLOT+32*n}")
            for n in range(3):
                rd(n)
            for n in range(28):
                if n + 3 < 28:
                    rd(n + 3)
                k(f"{MFMA} {v(acc[3],16)}, {v(G[n%4],4)}, {v(X+4*n,4)}, {'0' if n == 0 else v(acc[3],16)}")
            a = acc[3]
            k(f"""
            s_lshl_b32 s3, s{sRB}, 2
            s_add_u32 s3, s3, s{sTT}
            s_lshl_b32 s3, s3, 7
            s_add_u32 s3, s3, {WS_G}
            v_and_b32 v{vT0}, 31, v{vL}
            v_lshlrev_b32 v{vT0}, 2, v{vT0}
            v_mul_f32 v{a}, {f32(-LOG2E)}, v{a}
            v_exp_f32 v{a}, v{a}
            v_add_f32 v{a}, 1.0, v{a}
            v_rcp_f32 v{a}, v{a}
            buffer_store_dword v{a}, v{vT0}, {s(sWS,4)}, s3 offen{OPT['st']}
            """)
        stamp(k, 12)
        endpgm(k, 0, sWS)

    k(f"s_cmp_lt_u32 s{sWv}, 4")
    with k.if_("s_cbranch_scc0") as r:
        for role in (0, 1):
            if role == 1:
                r.else_()
            k(f"s_cmp_eq_u32 s{sT0}, 0")
            with k.if_("s_cbranch_scc0") as iv:
                pass1(role, False)
                iv.else_()
                pass1(role, True)
            k(f"s_cmp_eq_u32 s{sLong}, 1")
            with k.if_("s_cbranch_scc0") as lg:
                pass2(role, "long")
                lg.else_()
                if role == 0:
                    k(f"s_cmp_eq_u32 s{sG}, 3")
                    with k.if_("s_cbranch_scc0") as gt:
                        pass2(role, "gate")
                        gt.else_()
                        pass2(role, "short")
                else:
                    pass2(role, "short")
    return k


def kernel_text(label, body):
    return f""".globl {label}
.p2align 8
.type {label},@function
{label}:
{body}
"""


def desc_text(label):
    return f""".p2align 6
.amdhsa_kernel {label}
  .amdhsa_next_free_vgpr 256
  .amdhsa_next_free_sgpr 102
  .amdhsa_accum_offset 256
  .amdhsa_group_segment_fixed_size 0
  .amdhsa_kernarg_size 88
  .amdhsa_user_sgpr_count 2
  .amdhsa_user_sgpr_kernarg_segment_ptr 1
  .amdhsa_system_sgpr_workgroup_id_x 1
.end_amdhsa_kernel
"""


def code_bytes(body):
    import subprocess, tempfile
    with tempfile.TemporaryDirectory() as d:
        p = os.path.join(d, "t.s")
        open(p, "w").write('.amdgcn_target "amdgcn-amd-amdhsa--gfx950"\n.text\n' + body + "\n")
        r = subprocess.run(["clang", "-x", "assembler", "-target", "amdgcn-amd-amdhsa", "-mcpu=gfx950",
                            "-c", p, "-o", p + ".o"], capture_output=True, text=True)
        if r.returncode:
            print(r.stderr[:3000])
            open("fail.s", "w").write(open(p).read())
            raise SystemExit("assembly failed (see fail.s)")
        r = subprocess.run(["size", "-A", p + ".o"], capture_output=True, text=True)
        for line in r.stdout.splitlines():
            if line.startswith(".text"):
                return int(line.split()[1])


def build(kernels):
    head, text, desc = [], [], []
    seen = set()
    for label, gf, grid, block, lds in kernels:
        if len(kernels) == 1:
            head.append(f"; @launch grid=({grid},1,1) block=({block},1,1) lds={lds}")
        else:
            head.append(f"; @launch kernel={label} grid=({grid},1,1) block=({block},1,1) lds={lds}")
        if label in seen:
            continue
        seen.add(label)
        size = code_bytes(gf(4096).finish())
        p = gf(size)
        body = p.finish()
        print(f"{label}: {size} bytes, nops inserted {p.nops_inserted}", file=sys.stderr)
        text.append(kernel_text(label, body))
        desc.append(desc_text(label))
    return ("\n".join(head) + '\n.amdgcn_target "amdgcn-amd-amdhsa--gfx950"\n.text\n' + "".join(text)
            + '.section .rodata,"a"\n' + "".join(desc))


def main():
    from gen23 import gen_k2, gen_k3
    for a in sys.argv[2:]:
        kk, vv = a.split("=")
        try:
            vv = int(vv)
        except ValueError:
            vv = " " + vv.replace("+", " ") if kk == "st" else vv
        OPT[kk] = vv
    ks = [("k1_kernel", gen_k1, 256, 512, 163840),
          ("k2_kernel", gen_k2, 256, 512, 163840),
          ("k3_kernel", gen_k3, 256, 512, 163840)]
    out = sys.argv[1] if len(sys.argv) > 1 else f"cdna_kernels/{NAME}.s"
    open(out, "w").write(build(ks))


if __name__ == "__main__":
    import gen
    gen.main()
```

```python
from gen import *


def tr_lane_parts(k, vL, r, p):
    k(f"""
    v_bfe_u32 v{p}, v{vL}, 4, 1
    v_and_b32 v{r}, 3, v{vL}
    v_lshl_add_u32 v{p}, v{p}, 2, v{r}
    v_bfe_u32 v{r}, v{vL}, 2, 2
    """)


def gen_k2(code_size):
    k = Prog("k2")
    sWS, sK, sV, sW2 = 8, 12, 16, 20
    sWv, sH, sQB, sKQ, sNG, sOff, sIt, sT0, sT1, sM0, sPC = 24, 25, 26, 27, 28, 29, 30, 31, 32, 33, 34
    RED = 114688
    k("s_load_dwordx2 s[4:5], s[0:1], 48")
    k("s_load_dwordx2 s[6:7], s[0:1], 80")
    k("s_cmp_ge_u32 s2, 256")
    with k.if_("s_cbranch_scc0"):
        k("s_endpgm")
    va = Alloc(1, 256)
    vL, vL16, vT0, vT1, vT2, vPF = [va() for _ in range(6)]
    stamp(k, 0, True)
    stamp(k, 1)
    prefetch_code(k, code_size, vPF, sPC)
    k(f"""
    v_lshrrev_b32 v{vT0}, 6, v0
    v_and_b32 v{vL}, 63, v0
    s_and_b32 s{sT0}, s2, 7
    v_readfirstlane_b32 s{sWv}, v{vT0}
    s_bfe_u32 s{sT1}, s2, 0x10003
    s_lshr_b32 s{sQB}, s2, 4
    s_lshl_b32 s{sH}, s{sT0}, 1
    s_add_u32 s{sH}, s{sH}, s{sT1}
    s_and_b32 s{sKQ}, s{sT0}, 3
    s_lshr_b32 s{sNG}, s{sT0}, 2
    s_lshl_b32 s{sNG}, s{sNG}, 1
    s_add_u32 s{sNG}, s{sNG}, s{sT1}
    v_lshlrev_b32 v{vL16}, 4, v{vL}
    """)
    wsoff(k, 6)
    k(f"s_cmp_lt_u32 s{sWv}, 4")
    base = va.p
    with k.if_("s_cbranch_scc0") as role:
        va = Alloc(base, 256)
        vLp, vIdx = va(), va()
        Q = [va(8, 4) for _ in range(4)]
        O = [va(16, 4) for _ in range(4)]
        S = [va(16, 4) for _ in range(4)]
        KB = [va(8, 4) for _ in range(4)]
        VB = [va(8, 4) for _ in range(4)]
        k("s_setprio 2")
        k(f"""
        v_and_b32 v{vT0}, 0x33, v{vL}
        v_bfe_u32 v{vT1}, v{vL}, 2, 1
        v_bfe_u32 v{vT2}, v{vL}, 3, 1
        v_lshl_or_b32 v{vT0}, v{vT1}, 3, v{vT0}
        v_lshl_or_b32 v{vT0}, v{vT2}, 2, v{vT0}
        v_lshlrev_b32 v{vLp}, 4, v{vT0}
        s_lshl_b32 s{sT0}, s{sH}, 17
        s_lshl_b32 s{sT1}, s{sWv}, 15
        s_add_u32 s{sT1}, s{sT1}, s{sT0}
        s_add_u32 s3, s{sT1}, {16*64*2048}
        """)
        srd(k, sK, 6, 7, "s3", 32768)
        k(f"s_add_u32 s3, s{sT1}, {32*64*2048}")
        srd(k, sV, 6, 7, "s3", 32768)
        srd(k, sWS, 6, 7, 0, WS_SIZE)

        def ldK(buf, so, off):
            for i in range(2):
                k(f"buffer_load_dwordx4 {v(KB[buf]+4*i,4)}, v{vLp}, {s(sK,4)}, {so} offen offset:{off+1024*i}")

        def ldV(buf, so, off):
            for i in range(2):
                k(f"buffer_load_dwordx4 {v(VB[buf]+4*i,4)}, v{vL16}, {s(sV,4)}, {so} offen offset:{off+1024*i}")

        def ldQ(j):
            k(f"""
            s_add_u32 s3, s{sWv}, {1+j}
            s_and_b32 s3, s3, 3
            s_lshl_b32 s3, s3, 11
            s_add_u32 s3, s3, s{sT0}
            """)
            for i in range(2):
                k(f"buffer_load_dwordx4 {v(Q[j]+4*i,4)}, v{vL16}, {s(sWS,4)}, s3 offen offset:{1024*i}")

        k(f"s_lshl_b32 s3, s{sQB}, 13")
        k(f"s_add_u32 s{sT0}, s{sT0}, s3")
        stamp(k, 2)
        ldK(0, "0", 0)
        ldQ(0)
        ldQ(1)
        ldQ(2)
        ldV(0, "0", 0)
        ldQ(3)
        ldK(1, "0", 2048)
        ldV(1, "0", 2048)
        k(f"s_movk_i32 s{sOff}, 4096")
        ldK(2, f"s{sOff}", 0)
        ldV(2, f"s{sOff}", 0)
        ldK(3, f"s{sOff}", 2048)
        for j in range(4):
            for r in range(16):
                k(f"v_mov_b32 v{O[j]+r}, 0")
        for r in range(8, 16):
            k(f"v_mov_b32 v{S[3]+r}, 0")
        for r in range(4, 8):
            k(f"v_mov_b32 v{VB[3]+r}, 0")
        k(f"v_mov_b32 v{vIdx}, 0xdddd")
        k(f"s_mov_b32 s{sIt}, 4")

        def QK(u, half):
            j, t = u & 3, (u >> 2) & 3
            c = "0" if half == 0 else v(S[j], 16)
            k(f"{MFMA} {v(S[j],16)}, {v(KB[t]+4*half,4)}, {v(Q[j]+4*half,4)}, {c}")

        def PV(u, half):
            j, t = u & 3, (u >> 2) & 3
            k(f"{SMF} {v(O[j],16)}, {v(VB[t]+4*half,4)}, {v(S[j]+8*half,8)}, v{vIdx}")

        def EX(u, a, b):
            for r in range(a, b):
                k(f"v_exp_f32 v{S[u&3]+r}, v{S[u&3]+r}")

        for u in range(2):
            QK(u, 0)
            QK(u, 1)
        stamp(k, 3)
        with k.loop(4, align=6) as lp:
            for u in range(16):
                i = u >> 2
                QK(u + 2, 0)
                EX(u, 0, 4)
                QK(u + 2, 1)
                if u & 3 == 1:
                    ldK(i, f"s{sOff}", 2048)
                EX(u, 4, 8)
                PV(u - 1, 1)
                if u & 3 == 0:
                    k(f"s_add_u32 s{sOff}, s{sOff}, 2048")
                    ldV((i - 1) & 3, f"s{sOff}", 0)
                EX(u, 8, 12)
                PV(u, 0)
                if u == 4:
                    k("s_barrier")
                if u == 15:
                    k(f"s_sub_u32 s{sIt}, s{sIt}, 1")
                    k(f"s_cmp_lg_u32 s{sIt}, 0")
                EX(u, 12, 16)
            lp.back("s_cbranch_scc1")
        PV(15, 1)
        stamp(k, 4)
        for j in range(3):
            k(f"""
            s_add_u32 s3, s{sWv}, {1+j}
            s_and_b32 s3, s3, 3
            s_mul_i32 s3, s3, 12288
            s_add_u32 s3, s3, {RED+4096*j}
            v_add_u32 v{vT0}, s3, v{vL16}
            """)
            for i in range(4):
                k(f"ds_write_b128 v{vT0}, {v(O[j]+4*i,4)} offset:{1024*i}", wr=["red"])
        k(f"s_mul_i32 s3, s{sWv}, 12288")
        k(f"s_add_u32 s3, s3, {RED}")
        k(f"v_add_u32 v{vT0}, s3, v{vL16}")
        k.need("red")
        stamp(k, 5)
        k("s_barrier")
        stamp(k, 6)
        for j in range(3):
            for i in range(4):
                k(f"ds_read_b128 {v(S[j]+4*i,4)}, v{vT0} offset:{4096*j+1024*i}")
        A = O[3]
        for j in range(3):
            for r in range(16):
                k(f"v_add_f32 v{A+r}, v{A+r}, v{S[j]+r}")

        def get_l():
            k(f"""
            v_mov_b32 v{vT0}, v{A+12}
            v_mov_b32 v{vT1}, v{A+12}
            v_permlane32_swap_b32 v{vT0}, v{vT1}
            """)
        get_l()
        k(f"v_mul_f32 v{vT2}, 0, v{A}")
        for r in range(1, 16):
            k(f"v_fma_f32 v{vT2}, v{A+r}, 0, v{vT2}")
        k(f"""
        v_add_f32 v{vT2}, v{vT2}, v{vT1}
        v_cmp_nlt_f32 vcc, {f32(2.0**-30)}, v{vT2}
        v_cmp_ngt_f32 s[36:37], {'v%d' % vIdx}, v{vT2}
        """.replace(f"v_cmp_ngt_f32 s[36:37], v{vIdx}, v{vT2}", f"s_mov_b64 s[36:37], vcc\nv_cmp_ngt_f32 vcc, {f32(2.0**40)}, v{vT2}"))
        k("s_or_b64 s[36:37], s[36:37], vcc")
        if OPT.get("force_fb"):
            k("s_mov_b64 s[36:37], -1")
        k("s_cmp_lg_u64 s[36:37], 0")
        with k.if_("s_cbranch_scc0"):
            k(f"s_lshl_b32 s{sT1}, s{sH}, 17")
            k(f"s_add_u32 s3, s{sT1}, {16*64*2048}")
            srd(k, sK, 6, 7, "s3", 131072)
            k(f"s_add_u32 s3, s{sT1}, {32*64*2048}")
            srd(k, sV, 6, 7, "s3", 131072)
            k(f"v_mov_b32 v{vT0}, 0xff800000")
            k(f"s_mov_b32 s{sOff}, 0")
            with k.loop(3) as l1:
                ldK(0, f"s{sOff}", 0)
                QK(3, 0)
                QK(3, 1)
                for r in range(0, 16, 2):
                    k(f"v_max3_f32 v{vT0}, v{S[3]+r}, v{S[3]+r+1}, v{vT0}")
                k(f"s_add_u32 s{sOff}, s{sOff}, 2048")
                k(f"s_cmp_lt_u32 s{sOff}, 131072")
                l1.back("s_cbranch_scc1")
            k(f"""
            v_mov_b32 v{vT1}, v{vT0}
            v_permlane32_swap_b32 v{vT0}, v{vT1}
            v_max_f32 v{vT0}, v{vT0}, v{vT1}
            """)
            for r in range(16):
                k(f"v_mul_f32 v{S[0]+r}, -1.0, v{vT0}")
                k(f"v_mov_b32 v{A+r}, 0")
            k(f"s_mov_b32 s{sOff}, 0")
            with k.loop(3) as l2:
                ldK(0, f"s{sOff}", 0)
                ldV(0, f"s{sOff}", 0)
                k(f"{MFMA} {v(S[3],16)}, {v(KB[0],4)}, {v(Q[3],4)}, {v(S[0],16)}")
                QK(3, 1)
                EX(3, 0, 16)
                PV(3, 0)
                PV(3, 1)
                k(f"s_add_u32 s{sOff}, s{sOff}, 2048")
                k(f"s_cmp_lt_u32 s{sOff}, 131072")
                k("s_nop 4")
                l2.back("s_cbranch_scc1")
            get_l()
        k(f"v_rcp_f32 v{vT1}, v{vT1}")
        k(f"""
        s_lshl_b32 s3, s{sQB}, 2
        s_add_u32 s3, s3, s{sWv}
        s_lshl_b32 s3, s3, 4
        s_add_u32 s3, s3, s{sH}
        s_lshl_b32 s3, s3, 11
        s_add_u32 s3, s3, {WS_OF}
        s_mov_b32 s36, 0
        s_mov_b32 s37, -1
        """)
        for r in range(16):
            k(f"v_mul_f32 v{A+r}, v{A+r}, v{vT1}")
        for r in range(8):
            k(f"v_cvt_pk_bf16_f32 v{A+r}, v{A+2*r}, v{A+2*r+1}")
        for r in (6, 7):
            k(f"v_cndmask_b32 v{A+r}, v{A+r}, 0, s[36:37]")
        for i in range(2):
            k(f"buffer_store_dwordx4 {v(A+4*i,4)}, v{vL16}, {s(sWS,4)}, s3 offen offset:{1024*i}{OPT['st']}")
        stamp(k, 7)
        endpgm(k, 1, sWS)
        role.else_()
        va = Alloc(base, 256)
        vD = va()
        wa = [va() for _ in range(4)]
        AF = va(112, 4)
        acc = [va(16, 4) for _ in range(4)]
        NB = 4
        Wf = [va(4, 4) for _ in range(NB)]
        sWin, sAo = 36, 37
        k(f"""
        s_sub_u32 s{sWv}, s{sWv}, 4
        s_lshl_b32 s{sWin}, s{sNG}, 8
        s_min_u32 s{sWin}, s{sWin}, 640
        s_mul_i32 s{sT0}, s{sKQ}, {448*896}
        s_add_u32 s{sT0}, s{sT0}, s{sWin}
        s_sub_u32 s{sT1}, {448*896}, s{sWin}
        s_mul_i32 s{sM0}, s{sWv}, 7168
        s_mul_i32 s3, s{sWv}, 28
        v_lshrrev_b32 v{vT0}, 4, v{vL}
        v_add_u32 v{vT1}, s3, v{vT0}
        v_mul_u32_u24 v{vD}, 896, v{vT1}
        v_lshlrev_b32 v{vT0}, 2, v{vT0}
        v_and_b32 v{vT1}, 15, v{vL}
        v_xor_b32 v{vT0}, v{vT0}, v{vT1}
        v_lshl_add_u32 v{vD}, v{vT0}, 4, v{vD}
        s_lshl_b32 s{sIt}, s{sQB}, 2
        s_add_u32 s{sIt}, s{sIt}, s{sWv}
        s_mul_i32 s{sAo}, s{sIt}, 56
        s_mul_i32 s3, s{sKQ}, 14
        s_add_u32 s{sAo}, s{sAo}, s3
        s_lshl_b32 s{sAo}, s{sAo}, 11
        s_add_u32 s{sAo}, s{sAo}, {WS_ACT}
        """)
        srd(k, sW2, 4, 5, f"s{sT0}", f"s{sT1}")
        srd(k, sWS, 6, 7, 0, WS_SIZE)

        def ld_chunk(c):
            for p in range(7):
                k(f"s_add_u32 m0, s{sM0}, {c*28672+p*1024}")
                k(f"s_mov_b32 s3, {(112*c+4*p)*896}")
                k(f"buffer_load_dwordx4 v{vD}, {s(sW2,4)}, s3 offen lds", wr=[f"w{c}"])
            for n in range(7 * c, 7 * c + 7):
                if n == 7 * c or n % 4 == 0:
                    k(f"s_add_u32 s3, s{sAo}, {(n//4)*4096}")
                k(f"buffer_load_dwordx4 {v(AF+4*n,4)}, v{vL16}, {s(sWS,4)}, s3 offen offset:{(n%4)*1024}")

        stamp(k, 2)
        ld_chunk(0)
        ld_chunk(1)
        tr_lane_parts(k, vL, vT0, vT1)
        k(f"""
        v_lshrrev_b32 v{vT2}, 5, v{vL}
        v_lshl_add_u32 v{vT2}, v{vT2}, 2, v{vT0}
        v_lshlrev_b32 v{vT2}, 8, v{vT2}
        v_lshl_add_u32 v{vT2}, v{vT1}, 3, v{vT2}
        v_lshl_add_u32 v{wa[0]}, v{vT0}, 6, v{vT2}
        v_xor_b32 v{wa[1]}, 64, v{wa[0]}
        v_xor_b32 v{wa[2]}, 128, v{wa[0]}
        v_xor_b32 v{wa[3]}, 192, v{wa[0]}
        """)

        def rdW(m):
            n, t = m >> 2, m & 3
            for e in range(2):
                k(f"ds_read_b64_tr_b16 {v(Wf[m%NB]+2*e,2)}, v{wa[t]} offset:{(16*(n%14)+8*e)*256}")

        D = OPT.get("ffn2_d", 2)
        for c in range(4):
            k.need(f"w{c}")
            stamp(k, 3 + 2 * c)
            k("s_barrier")
            stamp(k, 4 + 2 * c)
            if c == 2:
                for r in wa:
                    k(f"v_add_u32 v{r}, 57344, v{r}")
            for m in range(28 * c, 28 * c + D):
                rdW(m)
            if c + 2 < 4:
                ld_chunk(c + 2)
            for m in range(28 * c, 28 * c + 28):
                if m + D < 28 * c + 28:
                    rdW(m + D)
                n, t = m >> 2, m & 3
                k(f"{MFMA} {v(acc[t],16)}, {v(Wf[m%NB],4)}, {v(AF+4*n,4)}, {'0' if n == 0 else v(acc[t],16)}")
        stamp(k, 11)
        k(f"""
        s_lshl_b32 s3, s{sKQ}, 6
        s_add_u32 s3, s3, s{sIt}
        s_mul_i32 s3, s3, 14
        s_lshr_b32 s{sWin}, s{sWin}, 6
        s_add_u32 s3, s3, s{sWin}
        s_lshl_b32 s3, s3, 11
        s_add_u32 s3, s3, {WS_PART}
        """)
        for t in range(4):
            if t == 2:
                k("s_add_u32 s3, s3, 4096")
            for r in range(8):
                k(f"v_cvt_pk_bf16_f32 v{acc[t]+r}, v{acc[t]+2*r}, v{acc[t]+2*r+1}")
            for i in range(2):
                k(f"buffer_store_dwordx4 {v(acc[t]+4*i,4)}, v{vL16}, {s(sWS,4)}, s3 offen offset:{(t&1)*2048+1024*i}{OPT['st']}")
        stamp(k, 12)
        endpgm(k, 1, sWS)
    return k


def gen_k3(code_size):
    k = Prog("k3")
    sWS, sWO, sOUT = 12, 16, 20
    sWv, sTT, sNG, sWin, sT0, sT1, sM0, sKH, sNT, sPC = 24, 25, 26, 27, 28, 29, 30, 31, 32, 34
    OL, XL = 114688, 147456
    k("s_load_dwordx2 s[4:5], s[0:1], 16")
    k("s_load_dwordx2 s[6:7], s[0:1], 80")
    k("s_load_dwordx2 s[8:9], s[0:1], 64")
    k("s_cmp_ge_u32 s2, 256")
    with k.if_("s_cbranch_scc0"):
        k("s_endpgm")
    va = Alloc(1, 256)
    vL, vL16, vT0, vT1, vT2, vPF, vD, vG, wa, wb, oa, vSt = [va() for _ in range(12)]
    P = va(16, 4)
    B = va(8, 4)
    acc = va(16, 4)
    OFr = va(64, 4)
    Wf = va(64, 4)
    stamp(k, 0, True)
    stamp(k, 1)
    prefetch_code(k, code_size, vPF, sPC)
    k(f"""
    v_lshrrev_b32 v{vT0}, 6, v0
    v_and_b32 v{vL}, 63, v0
    s_lshr_b32 s{sTT}, s2, 4
    v_readfirstlane_b32 s{sWv}, v{vT0}
    s_lshl_b32 s{sTT}, s{sTT}, 2
    s_and_b32 s3, s2, 3
    s_add_u32 s{sTT}, s{sTT}, s3
    s_bfe_u32 s{sNG}, s2, 0x20002
    s_lshl_b32 s{sWin}, s{sNG}, 8
    s_min_u32 s{sWin}, s{sWin}, 640
    s_sub_u32 s{sT1}, {448*896}, s{sWin}
    s_mul_i32 s{sM0}, s{sWv}, 14336
    s_mul_i32 s3, s{sWv}, 56
    v_lshlrev_b32 v{vL16}, 4, v{vL}
    v_lshrrev_b32 v{vT0}, 4, v{vL}
    v_add_u32 v{vT1}, s3, v{vT0}
    v_mul_u32_u24 v{vD}, 896, v{vT1}
    v_lshlrev_b32 v{vT0}, 2, v{vT0}
    v_and_b32 v{vT1}, 15, v{vL}
    v_xor_b32 v{vT0}, v{vT0}, v{vT1}
    v_lshl_add_u32 v{vD}, v{vT0}, 4, v{vD}
    s_lshr_b32 s{sKH}, s{sWv}, 2
    s_and_b32 s{sNT}, s{sWv}, 3
    """)
    wsoff(k, 6)
    srd(k, sWO, 4, 5, f"s{sWin}", f"s{sT1}")
    srd(k, sWS, 6, 7, 0, WS_SIZE)
    stamp(k, 2)
    k(f"""
    s_lshl_b32 s{sT0}, s{sWv}, 12
    s_add_u32 m0, s{sT0}, {OL}
    s_lshl_b32 s3, s{sTT}, 15
    s_add_u32 s3, s3, s{sT0}
    s_add_u32 s3, s3, {WS_OF}
    """)
    for i in range(4):
        k(f"buffer_load_dwordx4 v{vL16}, {s(sWS,4)}, s3 offen offset:{1024*i} lds", wr=["ld"])
    for p in range(14):
        k(f"s_add_u32 m0, s{sM0}, {p*1024}")
        k(f"s_mov_b32 s3, {4*p*896}")
        k(f"buffer_load_dwordx4 v{vD}, {s(sWO,4)}, s3 offen lds", wr=["ld"])
    k(f"""
    s_lshr_b32 s{sT0}, s{sWin}, 6
    s_add_u32 s{sT0}, s{sT0}, s{sNT}
    s_mul_i32 s3, s{sTT}, 14
    s_add_u32 s3, s3, s{sT0}
    s_lshl_b32 s3, s3, 1
    s_add_u32 s3, s3, s{sKH}
    s_lshl_b32 s3, s3, 10
    s_add_u32 s3, s3, {WS_PART}
    """)
    for q in range(4):
        k(f"buffer_load_dwordx4 {v(P+4*q,4)}, v{vL16}, {s(sWS,4)}, s3 offen")
        if q < 3:
            k(f"s_add_u32 s3, s3, {64*14*2048}")
    k(f"""
    s_lshl_b32 s3, s{sTT}, 7
    s_add_u32 s3, s3, {WS_G}
    v_and_b32 v{vT2}, 31, v{vL}
    v_lshlrev_b32 v{vT0}, 2, v{vT2}
    buffer_load_dword v{vG}, v{vT0}, {s(sWS,4)}, s3 offen
    """)
    k(f"s_mul_i32 s3, s{sTT}, {32*896}")
    srd(k, sOUT, 8, 9, "s3", 32 * 896)
    k(f"""
    v_mul_u32_u24 v{vSt}, 896, v{vT2}
    s_lshl_b32 s3, s{sT0}, 1
    s_add_u32 s3, s3, s{sKH}
    s_lshl_b32 s3, s3, 5
    v_lshrrev_b32 v{vT2}, 5, v{vL}
    v_lshl_add_u32 v{vSt}, v{vT2}, 4, v{vSt}
    v_add_u32 v{vSt}, s3, v{vSt}
    """)
    tr_lane_parts(k, vL, vT0, vT1)
    k(f"""
    v_lshlrev_b32 v{wb}, 8, v{vT0}
    v_lshl_add_u32 v{wb}, v{vT1}, 3, v{wb}
    v_xor_b32 v{vT0}, s{sNT}, v{vT0}
    v_lshl_add_u32 v{wb}, v{vT0}, 6, v{wb}
    s_mul_i32 s3, s{sKH}, 57344
    v_add_u32 v{wb}, s3, v{wb}
    v_lshl_add_u32 v{wa}, v{vT2}, 10, v{wb}
    s_lshl_b32 s3, s{sKH}, 14
    s_add_u32 s3, s3, {OL}
    v_add_u32 v{oa}, s3, v{vL16}
    """)
    stamp(k, 3)
    k.need("ld")
    stamp(k, 4)
    k("s_barrier")
    stamp(k, 5)

    def rd(n):
        hh, st = n >> 1, n & 1
        k(f"ds_read_b128 {v(OFr+4*n,4)}, v{oa} offset:{1024*n}")
        for e in range(2):
            a = wb if (st == 1 and e == 1) else wa
            k(f"ds_read_b64_tr_b16 {v(Wf+4*n+2*e,2)}, v{a} offset:{(28*hh+16*st+8*e)*256}")

    fill = []
    for r in range(4):
        fill.append(E(k, f"v_lshlrev_b32 v{B+2*r}, 16, v{P+r}"))
        fill.append(E(k, f"v_and_b32 v{B+2*r+1}, 0xffff0000, v{P+r}"))
    for q in range(1, 4):
        for r in range(4):
            fill.append(E(k, f"v_lshlrev_b32 v{vT0}, 16, v{P+4*q+r}"))
            fill.append(E(k, f"v_and_b32 v{vT1}, 0xffff0000, v{P+4*q+r}"))
            fill.append(E(k, f"v_add_f32 v{B+2*r}, v{B+2*r}, v{vT0}"))
            fill.append(E(k, f"v_add_f32 v{B+2*r+1}, v{B+2*r+1}, v{vT1}"))
    fill.append(E(k, f"v_sub_f32 v{vT2}, 1.0, v{vG}"))
    for r in range(8):
        fill.append(E(k, f"v_mul_f32 v{B+r}, v{B+r}, v{vT2}"))
    D = 4
    for n in range(D):
        rd(n)
    groups = []
    for n in range(16):
        g = [E(k, f"{MFMA} {v(acc,16)}, {v(Wf+4*n,4)}, {v(OFr+4*n,4)}, {'0' if n == 0 else v(acc,16)}")]
        if n + D < 16:
            g.append(lambda n=n: rd(n + D))
        groups.append(g)
    spread(k, groups, fill)
    k(f"""
    s_lshl_b32 s3, s{sWv}, 11
    s_add_u32 s3, s3, {XL}
    v_add_u32 v{vT0}, s3, v{vL16}
    v_xor_b32 v{vT1}, 8192, v{vT0}
    s_cmp_eq_u32 s{sKH}, 1
    """)
    with k.if_("s_cbranch_scc0"):
        for r in range(8):
            k(f"v_swap_b32 v{acc+r}, v{acc+8+r}")
    for i in range(2):
        k(f"ds_write_b128 v{vT0}, {v(acc+8+4*i,4)} offset:{1024*i}", wr=["x"])
    k.need("x")
    stamp(k, 6)
    k("s_barrier")
    for i in range(2):
        k(f"ds_read_b128 {v(P+4*i,4)}, v{vT1} offset:{1024*i}")
    for r in range(8):
        k(f"v_add_f32 v{acc+r}, v{acc+r}, v{P+r}")
    for r in range(8):
        k(f"v_fma_f32 v{acc+r}, v{acc+r}, v{vG}, v{B+r}")
    for r in range(4):
        k(f"v_cvt_pk_bf16_f32 v{acc+r}, v{acc+2*r}, v{acc+2*r+1}")
    k(f"v_permlane32_swap_b32 v{acc}, v{acc+2}")
    k(f"v_permlane32_swap_b32 v{acc+1}, v{acc+3}")
    k(f"buffer_store_dwordx4 {v(acc,4)}, v{vSt}, {s(sOUT,4)}, 0 offen")
    stamp(k, 7)
    endpgm(k, 2, sWS)
    return k
```

```python
import math, struct, sys, os
sys.path.insert(0, os.path.dirname(os.path.abspath(__file__)))
from asmlib import *
from gen import f32, MFMA, SMF, LOG2E, NAME, srd, spread, E, mish_ops, build

OPT = dict()
WS_FQ, WS_FA, WS_FO, WS_FP, WS_G = 0x8000, 0x10000, 0x20000, 0x40000, 0x60000
WS_QKV, WS_ACT, WS_OF, WS_PX, WS_DBG, WS_SIZE = 0x100000, 0x700000, 0xE00000, 0x1000000, 0x1400000, 0x1500000
SLOT = 32768
SLOTS = [0, 32768, 65536]
L_W1B = 32768
L_W1A, L_FRED, L_ORED, L_CNT, L_GW = 98304, 57344, 106496, 155648, 159744
SST = 74
SC = " sc1"
SPIN = 1 << 16


def gen(code_size):
    k = Prog("f4")
    sX, sQ, sW, sWS, sWA, sW2, sWO = 24, 28, 32, 36, 40, 44, 48
    sWv, sRB, sG, sTT, sFS, sLong, sO0, sT0, sT1, sL2, sL1, sC, sSo, sTag, sCnt, sA, sM, _, sB, sD, sEe, sF = range(52, 74)
    vL, vL16, vT0, vT1, vT2 = 1, 2, 3, 4, 5
    vX0, vX1, vQ0, vQ1, vW = 240, 241, 242, 243, 244
    xa = [245, 246, 247, 248]
    wa = [249, 250, 251]
    vPad, vE, vPF = 252, 253, 254
    X = 16
    vTag = 12

    def stamp(i):
        if OPT.get("stamp") == 2:
            k(f"s_memtime {s(SST + 2 * i, 2)}")
        elif OPT.get("stamp"):
            k(f"s_memrealtime {s(SST + 2 * i, 2)}")

    def endpgm():
        if OPT.get("stamp"):
            k("s_waitcnt vmcnt(0)")
            stamp(13)
            k(f"""
            s_lshl_b32 s3, s2, 3
            s_add_u32 s3, s3, s{sWv}
            s_lshl_b32 s3, s3, 6
            s_add_u32 s3, s3, {WS_DBG}
            v_mov_b32 v1, 0
            """)
            for i in range(14):
                k(f"v_mov_b32 v2, s{SST + 2 * i}")
                k(f"buffer_store_dword v2, v1, {s(sWS, 4)}, s3 offen offset:{4 * i}")
        k("s_endpgm")

    def poll(vA, vD, mask, offs=(0,)):
        k(f"s_mov_b32 s{sCnt}, {SPIN}")
        k(f"s_mov_b64 exec, {mask}")
        with k.loop([1, 2]) as lp:
            for i, o in enumerate(offs):
                k(f"buffer_load_dword v{vD+i}, v{vA}, {s(sWS,4)}, 0 offen offset:{o}{SC}")
            k(f"s_sub_u32 s{sCnt}, s{sCnt}, 1")
            k(f"v_cmp_ne_u32 vcc, s{sTag}, v{vD}")
            for i in range(1, len(offs)):
                k(f"v_cmp_ne_u32 {s(sM,2)}, s{sTag}, v{vD+i}")
                k(f"s_or_b64 vcc, vcc, {s(sM,2)}")
            k(f"""
            s_cmp_lg_u64 vcc, 0
            s_cselect_b32 s3, s{sCnt}, 0
            s_cmp_lg_u32 s3, 0
            """)
            lp.back("s_cbranch_scc1")
        k("s_mov_b64 exec, -1")

    def flag(so):
        k("s_mov_b64 exec, 0xff")
        k(f"buffer_store_dwordx4 {v(vTag,4)}, v{vL16}, {s(sWS,4)}, {so} offen{SC}")
        k("s_mov_b64 exec, -1")

    def flag_last(which, so, va, vb):
        k(f"v_mov_b32 v{va}, {L_CNT}")
        k(f"v_mov_b32 v{vb}, 1")
        k("s_mov_b64 exec, 1")
        k(f"ds_add_rtn_u32 v{vb}, v{va}, v{vb} offset:{4*which}")
        k("s_mov_b64 exec, -1")
        k(f"v_readfirstlane_b32 s3, v{vb}")
        k("s_cmp_eq_u32 s3, 3")
        with k.if_("s_cbranch_scc0"):
            flag(so)

    def cnt_add(which, va, vb):
        k(f"v_mov_b32 v{va}, {L_CNT}")
        k(f"v_mov_b32 v{vb}, 1")
        k("s_mov_b64 exec, 1")
        k(f"ds_add_u32 v{va}, v{vb} offset:{4*which}")
        k("s_mov_b64 exec, -1")

    def cnt_wait(which, target, va, vb):
        k(f"v_mov_b32 v{va}, {L_CNT}")
        k(f"s_mov_b32 s{sCnt}, {SPIN * 16}")
        with k.loop([1, 2]) as lp:
            k(f"""
            ds_read_b32 v{vb}, v{va} offset:{4*which}
            s_sub_u32 s{sCnt}, s{sCnt}, 1
            v_readfirstlane_b32 s3, v{vb}
            s_cmp_lt_u32 s3, {target}
            s_cselect_b32 s3, s{sCnt}, 0
            s_cmp_lg_u32 s3, 0
            """)
            lp.back("s_cbranch_scc1")

    def tr_parts(r, p):
        k(f"""
        v_bfe_u32 v{p}, v{vL}, 4, 1
        v_and_b32 v{r}, 3, v{vL}
        v_lshl_add_u32 v{p}, v{p}, 2, v{r}
        v_bfe_u32 v{r}, v{vL}, 2, 2
        """)

    k("s_load_dwordx16 s[4:19], s[0:1], 0")
    k("s_load_dwordx2 s[20:21], s[0:1], 80")
    k("s_load_dwordx2 s[22:23], s[0:1], 64")
    k("s_cmp_ge_u32 s2, 256")
    with k.if_("s_cbranch_scc0"):
        k("s_endpgm")
    stamp(0)
    nl = code_size // 128 + 1
    per = (nl + 31) // 32
    assert per <= 64
    k(f"""
    v_lshrrev_b32 v{vT0}, 6, v0
    v_and_b32 v{vL}, 63, v0
    s_getpc_b64 {s(sM, 2)}
    v_readfirstlane_b32 s{sWv}, v{vT0}
    s_lshr_b32 s3, s2, 3
    s_mul_i32 s3, s3, {per}
    v_min_u32 v{vPF}, {per - 1}, v{vL}
    v_add_u32 v{vPF}, s3, v{vPF}
    v_lshlrev_b32 v{vPF}, 7, v{vPF}
    v_min_u32 v{vPF}, {max(code_size - 64, 0) & ~3}, v{vPF}
    s_cmp_eq_u32 s{sWv}, 7
    """)
    with k.if_("s_cbranch_scc0"):
        k(f"global_load_dword v{vPF}, v{vPF}, {s(sM, 2)}")
    k(f"""
    s_and_b32 s3, s2, 4
    s_lshl_b32 s3, s3, 1
    s_bfe_u32 s{sRB}, s2, 0x30003
    s_add_u32 s{sRB}, s{sRB}, s3
    s_and_b32 s3, s2, 3
    s_lshl_b32 s3, s3, 2
    s_lshr_b32 s{sG}, s2, 6
    s_add_u32 s{sG}, s{sG}, s3
    s_add_u32 s{sC}, s{sRB}, s{sG}
    s_mul_i32 s3, s{sC}, 37
    s_lshr_b32 s3, s3, 8
    s_mul_i32 s3, s3, 7
    s_sub_u32 s{sC}, s{sC}, s3
    s_and_b32 s{sA}, s{sWv}, 3
    s_lshl_b32 s{sTT}, s{sRB}, 2
    s_add_u32 s{sTT}, s{sTT}, s{sA}
    s_lshl_b32 s{sL2}, s{sWv}, 11
    s_lshl_b32 s{sL1}, s{sWv}, 10
    s_bfm_b32 s3, s{sG}, 0
    s_and_b32 s3, s3, 0x1248
    s_bcnt1_i32_b32 s3, s3
    s_lshl_b32 s{sFS}, s{sG}, 1
    s_sub_u32 s{sFS}, s{sFS}, s3
    s_lshl_b32 s{sFS}, s{sFS}, 1
    s_mul_i32 s{sT0}, s{sG}, 168
    s_bitcmp1_b32 0x1248, s{sG}
    s_cselect_b32 s{sLong}, 0, 1
    s_cselect_b32 s3, 15, 127
    s_and_b32 s{sO0}, s{sT0}, s3
    s_sub_u32 s{sT0}, s{sT0}, s{sO0}
    """)
    if OPT.get("norot"):
        k(f"s_mov_b32 s{sC}, 0")
    k(f"""
    v_lshrrev_b32 v{vT0}, 3, v{vL}
    s_lshl_b32 s3, s{sWv}, 4
    v_add_u32 v{vT1}, s3, v{vT0}
    v_mul_u32_u24 v{vX0}, 896, v{vT1}
    v_lshrrev_b32 v{vT1}, 4, v{vL}
    v_and_b32 v{vT2}, 7, v{vL}
    v_xor_b32 v{vX1}, v{vT2}, v{vT1}
    v_lshl_add_u32 v{vQ0}, v{vX1}, 4, v{vX0}
    v_xor_b32 v{vX1}, 4, v{vX1}
    v_lshl_add_u32 v{vX1}, v{vX1}, 4, v{vX0}
    v_add_u32 v{vX1}, {8*896-1024}, v{vX1}
    v_mov_b32 v{vX0}, v{vQ0}
    s_lshl_b32 s3, s{sWv}, 3
    v_add_u32 v{vT0}, s3, v{vT0}
    v_mul_u32_u24 v{vW}, 3584, v{vT0}
    v_and_b32 v{vT0}, 1, v{vT1}
    v_lshlrev_b32 v{vT0}, 2, v{vT0}
    v_xor_b32 v{vT0}, v{vT0}, v{vT2}
    v_lshl_add_u32 v{vW}, v{vT0}, 4, v{vW}
    v_add_u32 v{vT0}, s3, v{vT1}
    v_mul_u32_u24 v{vQ0}, 2688, v{vT0}
    v_lshlrev_b32 v{vT0}, 2, v{vT1}
    v_and_b32 v{vT2}, 15, v{vL}
    v_xor_b32 v{vT0}, v{vT0}, v{vT2}
    v_lshl_add_u32 v{vQ0}, v{vT0}, 4, v{vQ0}
    v_add_u32 v{vQ1}, {4*2688-1024}, v{vQ0}
    v_mov_b32 v{vE}, 0
    s_mul_i32 s{sB}, s{sRB}, {128*896}
    s_sub_u32 s{sD}, {448*2688}, s{sT0}
    s_lshl_b32 s{sT1}, s{sFS}, 6
    s_sub_u32 s{sEe}, {448*3584}, s{sT1}
    """)
    srd(k, sX, 4, 5, f"s{sB}", 128 * 896)
    k(f"global_load_dword v{vE}, v{vE}, s[20:21]{SC}")
    srd(k, sQ, 6, 7, f"s{sT0}", f"s{sD}")
    srd(k, sW, 12, 13, f"s{sT1}", f"s{sEe}")

    def nxt():
        return [E(k, f"s_add_u32 s{sC}, s{sC}, 1"), E(k, f"s_cmp_eq_u32 s{sC}, 7"), E(k, f"s_cselect_b32 s{sC}, 0, s{sC}")]

    def dma_chunk(c):
        so = SLOTS[c % 3]
        t = dict(wr=[f"ch{c}"])
        return [
            [E(k, f"s_add_u32 m0, s{sL2}, {so}"), E(k, f"s_lshl_b32 s{sSo}, s{sC}, 7"),
             E(k, f"buffer_load_dwordx4 v{vX0}, {s(sX,4)}, s{sSo} offen lds", **t)],
            [E(k, f"buffer_load_dwordx4 v{vX1}, {s(sX,4)}, s{sSo} offen offset:1024 lds", **t)],
            [E(k, f"s_add_u32 m0, s{sL2}, {so+16384}"), E(k, f"s_mul_i32 s{sSo}, s{sC}, {64*2688}"),
             E(k, f"buffer_load_dwordx4 v{vQ0}, {s(sQ,4)}, s{sSo} offen lds", **t)],
            [E(k, f"buffer_load_dwordx4 v{vQ1}, {s(sQ,4)}, s{sSo} offen offset:1024 lds", **t)],
            [E(k, f"s_add_u32 m0, s{sL1}, {L_W1A+8192*c}"), E(k, f"s_mul_i32 s{sSo}, s{sC}, {64*3584}"),
             E(k, f"buffer_load_dwordx4 v{vW}, {s(sW,4)}, s{sSo} offen lds", **t)] + nxt(),
        ]

    def run(groups):
        for g in groups:
            for f in g:
                f()

    stamp(1)
    run(dma_chunk(0))
    k("s_barrier")
    run(dma_chunk(1))
    srd(k, sWS, 20, 21, 0, WS_SIZE)
    k(f"""
    v_lshlrev_b32 v{vL16}, 4, v{vL}
    v_mov_b32 v{vT0}, {L_CNT}
    v_mov_b32 v{vT1}, 0
    v_mov_b32 v{vT2}, 0
    s_lshl_b32 s{sF}, s{sG}, 4
    s_add_u32 s{sF}, s{sF}, s{sRB}
    s_lshl_b32 s10, s{sF}, 7
    """)
    k(f"ds_write_b64 v{vT0}, {v(vT1,2)}", wr=["ch0"])
    k(f"ds_write_b64 v{vT0}, {v(vT1,2)} offset:8", wr=["ch0"])
    k(f"""
    v_and_b32 v{vT0}, 31, v{vL}
    s_lshl_b32 s3, s{sA}, 5
    v_add_u32 v{vT1}, s3, v{vT0}
    v_lshlrev_b32 v{vT1}, 7, v{vT1}
    v_bfe_u32 v{vT0}, v{vL}, 1, 3
    v_lshrrev_b32 v{vT2}, 5, v{vL}
    v_xor_b32 v{vT0}, v{vT0}, v{vT2}
    v_lshl_add_u32 v{xa[0]}, v{vT0}, 4, v{vT1}
    v_xor_b32 v{xa[1]}, 32, v{xa[0]}
    v_xor_b32 v{xa[2]}, 64, v{xa[0]}
    v_xor_b32 v{xa[3]}, 96, v{xa[0]}
    """)
    tr_parts(vT0, vT1)
    k(f"v_lshl_add_u32 v{vT2}, v{vT2}, 3, v{vT0}")

    def pass1(role, acc, Wf, swap, extra={}, mid=()):
        st8 = dict(base=0)
        ntile = len(swap)

        def reads(n):
            out = []
            c, st = n >> 2, n & 3
            if st == 0 and SLOTS[c % 3] - st8["base"] not in (0, SLOT):
                nb = SLOT if SLOTS[c % 3] == 2 * SLOT else 0
                d = "v_add_u32" if nb > st8["base"] else "v_subrev_u32"
                out += [E(k, f"{d} v{r}, {SLOT}, v{r}") for r in xa + (wa if role == 0 else [])]
                st8["base"] = nb
            base = SLOTS[c % 3] - st8["base"]
            t_ = dict(wr=[f"rd{c}"])
            out.append(E(k, f"ds_read_b128 {v(X+4*n,4)}, v{xa[st]} offset:{base}", **t_))
            for t in range(ntile):
                for e in range(2):
                    off = base + (16 * st + 4 * e) * 256 if role == 0 else 8192 * c + (16 * st + 4 * e) * 128
                    out.append(E(k, f"ds_read_b64_tr_b16 {v(Wf[t][n%3]+2*e,2)}, v{wa[t]} offset:{off}", **t_))
            return out

        k.need("ch0")
        k(f"v_readfirstlane_b32 s{sTag}, v{vE}")
        k("s_barrier")
        stamp(2)
        for f in reads(0) + reads(1):
            f()
        k(f"s_mul_i32 s{sTag}, s{sTag}, 0x9E3779B1")
        k(f"s_add_u32 s{sTag}, s{sTag}, 0x7F4A7C15")
        for i in range(4):
            k(f"v_mov_b32 v{vTag+i}, s{sTag}")
        pend = dma_chunk(2)
        for n in range(28):
            ms = []
            for t in range(ntile):
                a, b = v(Wf[t][n % 3], 4), v(X + 4 * n, 4)
                if swap[t]:
                    a, b = b, a
                cc = "0" if n == 0 else v(acc[t], 16)
                ms.append([E(k, f"{MFMA} {v(acc[t],16)}, {a}, {b}, {cc}")])
            if n == 6:
                ms += [[f] for f in mid]
            if (n + 2) % 4 == 0:
                c = (n + 2) // 4
                spread(k, ms, [lambda g=g: [f() for f in g] for g in pend])
                k.need(f"rd{c-1}", f"ch{c}")
                k("s_barrier")
                if c in (3, 6):
                    stamp(2 + c // 3)
                if c < 7:
                    for f in reads(n + 2):
                        f()
                pend = (dma_chunk(c + 2) if c <= 4 else []) + extra.get(c, [])
            else:
                fill = reads(n + 2) if n + 2 < 28 else []
                left = 3 - ((n + 2) % 4) + 1
                ntk = max(2, (len(pend) + left - 1) // left)
                take, pend = pend[:ntk], pend[ntk:]
                fill = fill + [lambda g=g: [f() for f in g] for g in take]
                spread(k, ms, fill)
        assert not pend and st8["base"] == 0

    k(f"s_cmp_lt_u32 s{sWv}, 4")
    with k.if_("s_cbranch_scc0") as role:
        acc = [128, 144, 160]
        Wf = [[176 + 12 * t + 4 * i for i in range(3)] for t in range(3)]
        sSc = [sB, sEe, 4]
        sSt = 6
        k("s_setprio 3")
        k(f"""
        v_min_u32 v{wa[0]}, 6, v{vT1}
        v_lshlrev_b32 v{wa[0]}, 3, v{wa[0]}
        v_add_u32 v{wa[0]}, s{sO0}, v{wa[0]}
        v_add_u32 v{wa[1]}, 56, v{wa[0]}
        v_add_u32 v{wa[2]}, 112, v{wa[0]}
        v_lshlrev_b32 v{vT0}, 6, v{vT0}
        v_lshlrev_b32 v{vT2}, 8, v{vT2}
        v_add_u32 v{vT2}, 16384, v{vT2}
        v_xor_b32 v{wa[0]}, v{wa[0]}, v{vT0}
        v_xor_b32 v{wa[1]}, v{wa[1]}, v{vT0}
        v_xor_b32 v{wa[2]}, v{wa[2]}, v{vT0}
        v_add_u32 v{wa[0]}, v{wa[0]}, v{vT2}
        v_add_u32 v{wa[1]}, v{wa[1]}, v{vT2}
        v_add_u32 v{wa[2]}, v{wa[2]}, v{vT2}
        v_and_b32 v{vT0}, 31, v{vL}
        v_mov_b32 v{vT1}, 0x3f803f80
        v_cmp_eq_u32 vcc, 28, v{vT0}
        v_cndmask_b32 v{vPad}, 0, v{vT1}, vcc
        s_mul_i32 s{sT0}, s{sG}, 3
        """)
        for t in range(3):
            k(f"s_cmp_lt_u32 s{sT0}, {16 - t}")
            k(f"s_cselect_b32 s{sSc[t]}, {f32(28 ** -0.5 * LOG2E)}, 1.0")
            k(f"s_mov_b32 s{sSc[t]+1}, s{sSc[t]}")
        k(f"""
        s_lshl_b32 s{sT0}, s{sT0}, 6
        s_add_u32 s{sT0}, s{sT0}, s{sTT}
        s_lshl_b32 s{sSt}, s{sT0}, 11
        s_add_u32 s{sSt}, s{sSt}, {WS_QKV}
        """)

        def p1_role0(swap):
            pass1(0, acc, Wf, swap)
            for t in range(3):
                a = acc[t]
                if swap[t]:
                    if t == 0 or not swap[t - 1]:
                        k(f"s_mov_b32 s{sM}, 0xf0000000")
                        k(f"s_mov_b32 s{sM+1}, 0xf0000000")
                    for r in range(8):
                        k(f"v_cvt_pk_bf16_f32 v{a+r}, v{a+2*r}, v{a+2*r+1}")
                    for r in range(8):
                        k(f"v_cndmask_b32 v{a+r}, v{a+r}, v{vPad}, {s(sM,2)}")
                else:
                    if t == 0:
                        k(f"s_mov_b32 s{sM}, 0")
                        k(f"s_mov_b32 s{sM+1}, -1")
                    for r in range(0, 16, 2):
                        k(f"v_pk_mul_f32 {v(a+r,2)}, {v(a+r,2)}, {s(sSc[t],2)}")
                    for r in range(8):
                        k(f"v_cvt_pk_bf16_f32 v{a+r}, v{a+2*r}, v{a+2*r+1}")
                    for r in (6, 7):
                        k(f"v_cndmask_b32 v{a+r}, v{a+r}, 0, {s(sM,2)}")
                for i in range(2):
                    k(f"buffer_store_dwordx4 {v(a+4*i,4)}, v{vL16}, {s(sWS,4)}, s{sSt} offen offset:{1024*i}{SC}", wr=["qkv"])
                if t < 2:
                    k(f"s_add_u32 s{sSt}, s{sSt}, {64*2048}")

        k(f"s_cmp_lt_u32 s{sG}, 10")
        with k.if_("s_cbranch_scc0") as v0:
            p1_role0([0, 0, 0])
            v0.else_()
            k(f"s_cmp_eq_u32 s{sG}, 10")
            with k.if_("s_cbranch_scc0") as v1:
                p1_role0([0, 0, 1])
                v1.else_()
                p1_role0([1, 1, 1])
        stamp(5)
        sK, sV = sX, sQ
        sH, sQB, sOff, sIt = sRB, sG, sO0, sFS
        vLp, vIdx, vFa, vFd = 6, 7, 8, 9
        Q = [16 + 8 * j for j in range(4)]
        KB = [48 + 8 * j for j in range(4)]
        VB = [80 + 8 * j for j in range(4)]
        S = [112 + 16 * j for j in range(4)]
        O = [176 + 16 * j for j in range(4)]
        k(f"""
        s_add_u32 s{sC}, s10, {WS_FQ}
        s_and_b32 s{sH}, s2, 7
        s_lshl_b32 s{sH}, s{sH}, 1
        s_bfe_u32 s3, s2, 0x10003
        s_add_u32 s{sH}, s{sH}, s3
        s_lshr_b32 s{sQB}, s2, 4
        v_and_b32 v{vT0}, 0x33, v{vL}
        v_bfe_u32 v{vT1}, v{vL}, 2, 1
        v_bfe_u32 v{vT2}, v{vL}, 3, 1
        v_lshl_or_b32 v{vT0}, v{vT1}, 3, v{vT0}
        v_lshl_or_b32 v{vT0}, v{vT2}, 2, v{vT0}
        v_lshlrev_b32 v{vLp}, 4, v{vT0}
        s_lshl_b32 s{sT0}, s{sH}, 17
        s_add_u32 s{sT0}, s{sT0}, {WS_QKV}
        s_lshl_b32 s{sT1}, s{sWv}, 15
        s_add_u32 s{sT1}, s{sT1}, s{sT0}
        s_add_u32 s3, s{sT1}, {16*64*2048}
        """)
        srd(k, sK, 20, 21, "s3", 32768)
        k(f"s_add_u32 s3, s{sT1}, {32*64*2048}")
        srd(k, sV, 20, 21, "s3", 32768)
        k(f"""
        v_lshrrev_b32 v{vT0}, 2, v{vL}
        v_add_u32 v{vT0}, 1, v{vT0}
        v_cmp_gt_u32 vcc, 8, v{vL}
        v_cndmask_b32 v{vT0}, 0, v{vT0}, vcc
        v_lshl_add_u32 v{vT0}, v{vT0}, 4, s{sH}
        v_mul_u32_u24 v{vT0}, 43, v{vT0}
        v_lshrrev_b32 v{vT0}, 7, v{vT0}
        v_and_b32 v{vT1}, 3, v{vL}
        s_lshl_b32 s3, s{sWv}, 2
        v_add_u32 v{vT1}, s3, v{vT1}
        v_mov_b32 v{vT2}, s{sQB}
        v_cndmask_b32 v{vT1}, v{vT2}, v{vT1}, vcc
        v_lshl_add_u32 v{vT0}, v{vT0}, 4, v{vT1}
        v_lshlrev_b32 v{vT0}, 7, v{vT0}
        v_add_u32 v{vT2}, {WS_FQ}, v{vT0}
        s_lshl_b32 s3, s{sQB}, 13
        s_add_u32 s{sT0}, s{sT0}, s3
        """)
        for j in range(4):
            for r in range(16):
                k(f"v_mov_b32 v{O[j]+r}, 0")
        for r in range(8, 16):
            k(f"v_mov_b32 v{S[3]+r}, 0")
        for r in range(4, 8):
            k(f"v_mov_b32 v{VB[3]+r}, 0")
        k(f"v_mov_b32 v{vIdx}, 0xdddd")
        k(f"s_mov_b32 s{sIt}, 4")
        sR = [4, 5, 6]
        if OPT.get("nokrot"):
            k(f"s_mov_b32 s{sR[0]}, 0")
        else:
            k(f"s_lshl_b32 s{sR[0]}, s{sQB}, 11")
        prev = sR[0]
        for r in sR[1:] + [sOff]:
            k(f"s_add_u32 s{r}, s{prev}, 2048")
            k(f"s_and_b32 s{r}, s{r}, 0x7fff")
            prev = r
        sQo = [7, 10, 11, 12]
        for j in range(4):
            k(f"""
            s_add_u32 s3, s{sWv}, {1+j}
            s_and_b32 s3, s3, 3
            s_lshl_b32 s3, s3, 11
            s_add_u32 s{sQo[j]}, s3, s{sT0}
            """)
        k.need("qkv")
        flag_last(2, f"s{sC}", vT0, vT1)
        stamp(6)
        poll(vT2, vFd, "0x1ff")
        stamp(7)

        def ldK(buf, so):
            for i in range(2):
                k(f"buffer_load_dwordx4 {v(KB[buf]+4*i,4)}, v{vLp}, {s(sK,4)}, {so} offen offset:{1024*i}{SC}")

        def ldV(buf, so):
            for i in range(2):
                k(f"buffer_load_dwordx4 {v(VB[buf]+4*i,4)}, v{vL16}, {s(sV,4)}, {so} offen offset:{1024*i}{SC}")

        def ldQ(j):
            for i in range(2):
                k(f"buffer_load_dwordx4 {v(Q[j]+4*i,4)}, v{vL16}, {s(sWS,4)}, s{sQo[j]} offen offset:{1024*i}{SC}")

        ldK(0, f"s{sR[0]}")
        ldQ(0)
        ldQ(1)
        ldQ(2)
        ldV(0, f"s{sR[0]}")
        ldQ(3)
        ldK(1, f"s{sR[1]}")
        ldV(1, f"s{sR[1]}")
        ldK(2, f"s{sR[2]}")
        ldV(2, f"s{sR[2]}")
        ldK(3, f"s{sOff}")
        k("s_setprio 1")

        def QK(u, half):
            j, t = u & 3, (u >> 2) & 3
            c = "0" if half == 0 else v(S[j], 16)
            k(f"{MFMA} {v(S[j],16)}, {v(KB[t]+4*half,4)}, {v(Q[j]+4*half,4)}, {c}")

        def PV(u, half):
            j, t = u & 3, (u >> 2) & 3
            k(f"{SMF} {v(O[j],16)}, {v(VB[t]+4*half,4)}, {v(S[j]+8*half,8)}, v{vIdx}")

        def EX(u, a, b):
            for r in range(a, b):
                k(f"v_exp_f32 v{S[u&3]+r}, v{S[u&3]+r}")

        for u in range(2):
            QK(u, 0)
            QK(u, 1)
        stamp(8)
        with k.loop(4, align=6) as lp:
            for u in range(16):
                i = u >> 2
                QK(u + 2, 0)
                EX(u, 0, 4)
                QK(u + 2, 1)
                if u & 3 == 1:
                    ldK(i, f"s{sOff}")
                EX(u, 4, 8)
                PV(u - 1, 1)
                if u & 3 == 0:
                    ldV((i - 1) & 3, f"s{sOff}")
                    k(f"s_add_u32 s{sOff}, s{sOff}, 2048")
                    k(f"s_and_b32 s{sOff}, s{sOff}, 0x7fff")
                if u == 0:
                    k(f"s_cmp_eq_u32 s{sIt}, 1")
                    k(f"s_cselect_b32 s{sK+2}, 0, 32768")
                    k(f"s_cselect_b32 s{sV+2}, 0, 32768")
                EX(u, 8, 12)
                PV(u, 0)
                if u == 15:
                    k(f"s_sub_u32 s{sIt}, s{sIt}, 1")
                    k(f"s_cmp_lg_u32 s{sIt}, 0")
                EX(u, 12, 16)
            lp.back("s_cbranch_scc1")
        PV(15, 1)
        k("s_setprio 3")
        stamp(9)
        cnt_wait(0, 12, vT0, vT1)
        for j in range(3):
            k(f"""
            s_add_u32 s3, s{sWv}, {1+j}
            s_and_b32 s3, s3, 3
            s_mul_i32 s3, s3, 12288
            s_add_u32 s3, s3, {L_ORED+4096*j}
            v_add_u32 v{vT0}, s3, v{vL16}
            """)
            for i in range(4):
                k(f"ds_write_b128 v{vT0}, {v(O[j]+4*i,4)} offset:{1024*i}", wr=["red"])
        vIn = vFa
        k(f"s_mul_i32 s3, s{sWv}, 12288")
        k(f"s_add_u32 s3, s3, {L_ORED}")
        k(f"v_add_u32 v{vIn}, s3, v{vL16}")
        k.need("red")
        cnt_add(1, vT0, vT1)
        cnt_wait(1, 4, vT0, vT1)
        for j in range(3):
            for i in range(4):
                k(f"ds_read_b128 {v(S[j]+4*i,4)}, v{vIn} offset:{4096*j+1024*i}")
        A = O[3]
        for j in range(3):
            for r in range(0, 16, 2):
                k(f"v_pk_add_f32 {v(A+r,2)}, {v(A+r,2)}, {v(S[j]+r,2)}")

        def get_l():
            k(f"""
            v_mov_b32 v{vT0}, v{A+12}
            v_mov_b32 v{vT1}, v{A+12}
            v_permlane32_swap_b32 v{vT0}, v{vT1}
            """)
        get_l()
        k(f"v_mul_f32 v{vT2}, 0, v{A}")
        for r in range(1, 16):
            k(f"v_fma_f32 v{vT2}, v{A+r}, 0, v{vT2}")
        k(f"""
        v_add_f32 v{vT2}, v{vT2}, v{vT1}
        v_cmp_nlt_f32 vcc, {f32(2.0**-30)}, v{vT2}
        s_mov_b64 {s(sM,2)}, vcc
        v_cmp_ngt_f32 vcc, {f32(2.0**40)}, v{vT2}
        s_or_b64 {s(sM,2)}, {s(sM,2)}, vcc
        """)
        if OPT.get("force_fb"):
            k(f"s_mov_b64 {s(sM,2)}, -1")
        k(f"s_cmp_lg_u64 {s(sM,2)}, 0")
        with k.if_("s_cbranch_scc0"):
            k(f"s_lshl_b32 s{sT1}, s{sH}, 17")
            k(f"s_add_u32 s3, s{sT1}, {WS_QKV+16*64*2048}")
            srd(k, sK, 20, 21, "s3", 131072)
            k(f"s_add_u32 s3, s{sT1}, {WS_QKV+32*64*2048}")
            srd(k, sV, 20, 21, "s3", 131072)
            k(f"v_mov_b32 v{vT0}, 0xff800000")
            k(f"s_mov_b32 s{sOff}, 0")
            with k.loop(3) as l1:
                ldK(0, f"s{sOff}")
                QK(3, 0)
                QK(3, 1)
                for r in range(0, 16, 2):
                    k(f"v_max3_f32 v{vT0}, v{S[3]+r}, v{S[3]+r+1}, v{vT0}")
                k(f"s_add_u32 s{sOff}, s{sOff}, 2048")
                k(f"s_cmp_lt_u32 s{sOff}, 131072")
                l1.back("s_cbranch_scc1")
            k(f"""
            v_mov_b32 v{vT1}, v{vT0}
            v_permlane32_swap_b32 v{vT0}, v{vT1}
            v_max_f32 v{vT0}, v{vT0}, v{vT1}
            """)
            for r in range(16):
                k(f"v_mul_f32 v{S[0]+r}, -1.0, v{vT0}")
                k(f"v_mov_b32 v{A+r}, 0")
            k(f"s_mov_b32 s{sOff}, 0")
            with k.loop(3) as l2:
                ldK(0, f"s{sOff}")
                ldV(0, f"s{sOff}")
                k(f"{MFMA} {v(S[3],16)}, {v(KB[0],4)}, {v(Q[3],4)}, {v(S[0],16)}")
                QK(3, 1)
                EX(3, 0, 16)
                PV(3, 0)
                PV(3, 1)
                k(f"s_add_u32 s{sOff}, s{sOff}, 2048")
                k(f"s_cmp_lt_u32 s{sOff}, 131072")
                k("s_nop 4")
                l2.back("s_cbranch_scc1")
            get_l()
        k(f"v_rcp_f32 v{vT1}, v{vT1}")
        k(f"""
        s_lshl_b32 s{sT0}, s{sQB}, 2
        s_add_u32 s{sT0}, s{sT0}, s{sWv}
        s_lshl_b32 s3, s{sT0}, 4
        s_add_u32 s3, s3, s{sH}
        s_lshl_b32 s3, s3, 11
        s_add_u32 s3, s3, {WS_OF}
        s_mov_b32 s{sM}, 0
        s_mov_b32 s{sM+1}, -1
        """)
        assert vT1 % 2 == 0
        k(f"v_mov_b32 v{vT2}, v{vT1}")
        for r in range(0, 16, 2):
            k(f"v_pk_mul_f32 {v(A+r,2)}, {v(A+r,2)}, {v(vT1,2)}")
        for r in range(8):
            k(f"v_cvt_pk_bf16_f32 v{A+r}, v{A+2*r}, v{A+2*r+1}")
        for r in (6, 7):
            k(f"v_cndmask_b32 v{A+r}, v{A+r}, 0, {s(sM,2)}")
        for i in range(2):
            k(f"buffer_store_dwordx4 {v(A+4*i,4)}, v{vL16}, {s(sWS,4)}, s3 offen offset:{1024*i}{SC}", wr=["o"])
        stamp(10)
        k(f"""
        s_lshl_b32 s3, s{sT0}, 4
        s_add_u32 s3, s3, s{sH}
        s_lshl_b32 s3, s3, 7
        s_add_u32 s{sC}, s3, {WS_FO}
        s_cmp_ge_u32 s2, 224
        """)
        with k.if_("s_cbranch_scc0"):
            k.need("o")
            flag(f"s{sC}")
            endpgm()
        WO = 16
        OFr = 144
        fac = [208, 240]
        wA, wB, wC, wD, vG, vSt = 10, 11, 232, 233, 6, 0
        sOUT, sHH, sTo, sCT = sW, sRB, sG, sFS
        k(f"""
        s_lshr_b32 s{sHH}, s{sWv}, 1
        s_bfe_u32 s{sTo}, s2, 0x20001
        s_lshl_b32 s{sTo}, s{sTo}, 2
        s_bfe_u32 s3, s2, 0x20003
        s_add_u32 s{sTo}, s{sTo}, s3
        s_lshl_b32 s{sTo}, s{sTo}, 1
        s_and_b32 s3, s2, 1
        s_add_u32 s{sTo}, s{sTo}, s3
        s_lshl_b32 s{sTo}, s{sTo}, 1
        s_and_b32 s3, s{sWv}, 1
        s_add_u32 s{sTo}, s{sTo}, s3
        s_lshr_b32 s{sCT}, s2, 5
        """)
        tr_parts(vT0, vT1)
        k(f"""
        v_lshlrev_b32 v{wB}, 7, v{vT0}
        v_lshl_add_u32 v{wB}, v{vT1}, 3, v{wB}
        v_lshrrev_b32 v{vT0}, 1, v{vT0}
        v_xor_b32 v{vT0}, s{sHH}, v{vT0}
        v_lshl_add_u32 v{wB}, v{vT0}, 6, v{wB}
        s_mul_i32 s3, s{sHH}, {224*128}
        v_add_u32 v{wB}, s3, v{wB}
        v_lshrrev_b32 v{vT2}, 5, v{vL}
        v_lshl_add_u32 v{wA}, v{vT2}, 9, v{wB}
        v_xor_b32 v{wC}, 64, v{wA}
        v_xor_b32 v{wD}, 64, v{wB}
        """)
        for n in range(16):
            hh, st = n >> 1, n & 1
            for t in range(2):
                for e in range(2):
                    a = [[wA, wB], [wC, wD]][t][st == 1 and e == 1]
                    k(f"ds_read_b64_tr_b16 {v(WO+8*n+4*t+2*e,2)}, v{a} offset:{(28*hh+16*st+8*e)*128}")
        k(f"""
        s_lshl_b32 s3, s{sTo}, 1
        s_add_u32 s3, s3, s{sHH}
        s_lshl_b32 s3, s3, 10
        s_add_u32 s3, s3, {WS_FO}
        v_lshl_add_u32 v{vIdx}, v{vL}, 7, s3
        s_lshr_b32 s3, s{sTo}, 2
        s_lshl_b32 s3, s3, 7
        s_add_u32 s3, s3, {WS_FA + 48*128}
        v_writelane_b32 v{vIdx}, s3, 8
        s_lshl_b32 s3, s{sTo}, 7
        s_add_u32 s{sT1}, s3, {WS_G}
        v_and_b32 v{vT0}, 31, v{vL}
        v_lshlrev_b32 v{vG}, 2, v{vT0}
        v_mul_u32_u24 v{vSt}, 896, v{vT0}
        v_lshl_add_u32 v{vSt}, v{vT2}, 4, v{vSt}
        s_lshl_b32 s3, s{sCT}, 1
        s_add_u32 s3, s3, s{sHH}
        s_lshl_b32 s3, s3, 6
        v_add_u32 v{vSt}, s3, v{vSt}
        s_lshl_b32 s{sT0}, s{sTo}, 1
        s_add_u32 s{sT0}, s{sT0}, s{sHH}
        s_lshl_b32 s{sT0}, s{sT0}, 14
        s_add_u32 s{sT0}, s{sT0}, {WS_OF}
        s_mul_i32 s3, s{sTo}, {32*896}
        """)
        srd(k, sOUT, 22, 23, "s3", 32 * 896)
        k.need("o")
        flag(f"s{sC}")
        poll(vIdx, vFd, "0x1ff")
        stamp(11)
        for n in range(16):
            if n and n % 4 == 0:
                k(f"s_add_u32 s{sT0}, s{sT0}, 4096")
            k(f"buffer_load_dwordx4 {v(OFr+4*n,4)}, v{vL16}, {s(sWS,4)}, s{sT0} offen offset:{(n%4)*1024}{SC}")
        k(f"buffer_load_dword v{vG}, v{vG}, {s(sWS,4)}, s{sT1} offen{SC}")
        k(f"""
        s_xor_b32 s3, s{sWv}, 2
        s_mul_i32 s3, s3, 12288
        s_add_u32 s3, s3, {L_ORED}
        v_add_u32 v{vT1}, s3, v{vL16}
        v_add_u32 v{vT2}, {L_FRED - L_ORED + (1 << 32)}, v{vIn}
        """)
        for n in range(16):
            for t in (1, 0):
                k(f"{MFMA} {v(fac[t],16)}, {v(WO+8*n+4*t,4)}, {v(OFr+4*n,4)}, {'0' if n == 0 else v(fac[t],16)}")
        for i in range(4):
            k(f"ds_write_b128 v{vIn}, {v(fac[1]+4*i,4)} offset:{1024*i}", wr=["xch"])
        k.need("xch")
        k("s_barrier")
        stamp(12)
        P, B = 16, 32
        for i in range(4):
            k(f"ds_read_b128 {v(P+4*i,4)}, v{vT1} offset:{1024*i}")
            k(f"ds_read_b128 {v(B+4*i,4)}, v{vT2} offset:{1024*i}")
        a = fac[0]
        k(f"v_mov_b32 v{vT1}, v{vG}")
        k(f"v_mov_b32 v{vT2}, v{vG}")
        for q in range(2):
            for r in range(8 * q, 8 * q + 8, 2):
                k(f"v_pk_add_f32 {v(P+r,2)}, {v(P+r,2)}, {v(B+r,2)} neg_lo:[0,1] neg_hi:[0,1]")
            for r in range(8 * q, 8 * q + 8, 2):
                k(f"v_pk_add_f32 {v(a+r,2)}, {v(a+r,2)}, {v(P+r,2)}")
            for r in range(8 * q, 8 * q + 8, 2):
                k(f"v_pk_fma_f32 {v(a+r,2)}, {v(a+r,2)}, {v(vT1,2)}, {v(B+r,2)}")
            for r in range(4):
                k(f"v_cvt_pk_bf16_f32 v{P+8*q+r}, v{a+8*q+2*r}, v{a+8*q+2*r+1}")
            k(f"v_permlane32_swap_b32 v{P+8*q}, v{P+8*q+2}")
            k(f"v_permlane32_swap_b32 v{P+8*q+1}, v{P+8*q+3}")
            k(f"buffer_store_dwordx4 {v(P+8*q,4)}, v{vSt}, {s(sOUT,4)}, 0 offen offset:{32*q}{OPT.get('ost', '')}")
        endpgm()

        role.else_()
        acc = [128, 144, 160, 176]
        Wf = [[192 + 12 * t + 4 * i for i in range(3)] for t in range(2)]
        tmp = 216
        BA, BZ = 224, 228
        vD, wr0, wr1, vFa, vFd = 6, 7, 8, 9, 10
        sJ, sSt, sKH, sR2, sCT = sA, 4, 5, 6, 7
        k("s_setprio 2")
        k(f"""
        s_add_u32 s{sT1}, s{sT1}, 128
        s_sub_u32 s{sEe}, s{sEe}, 128
        s_mul_i32 s{sEe}, s{sEe}, s{sLong}
        """)
        srd(k, sWA, 12, 13, f"s{sT1}", f"s{sEe}")
        k(f"""
        s_lshl_b32 s3, s{sFS}, 6
        v_lshlrev_b32 v{BA+1}, 1, v{vL}
        v_add_u32 v{BA+1}, s3, v{BA+1}
        global_load_ushort v{BA}, v{BA+1}, s[14:15]
        global_load_ushort v{BA+2}, v{BA+1}, s[14:15] offset:128
        v_lshrrev_b32 v{wa[1]}, 1, v{vT0}
        v_lshlrev_b32 v{wa[1]}, 6, v{wa[1]}
        v_lshl_add_u32 v{wa[1]}, v{vT1}, 3, v{wa[1]}
        v_lshl_add_u32 v{wa[0]}, v{vT2}, 7, v{wa[1]}
        v_add_u32 v{wa[0]}, {L_W1A}, v{wa[0]}
        v_lshrrev_b32 v{vT2}, 5, v{vL}
        v_lshl_add_u32 v{vT2}, v{vT2}, 2, v{vT0}
        v_lshl_add_u32 v{wr0}, v{vT2}, 7, v{wa[1]}
        v_xor_b32 v{wa[1]}, 64, v{wa[0]}
        s_lshl_b32 s3, s{sJ}, 11
        v_add_u32 v{wr0}, s3, v{wr0}
        s_lshr_b32 s3, s{sJ}, 1
        s_lshl_b32 s3, s3, 6
        v_xor_b32 v{wr0}, s3, v{wr0}
        v_xor_b32 v{wr1}, 64, v{wr0}
        v_lshrrev_b32 v{vT0}, 3, v{vL}
        v_mul_u32_u24 v{vD}, 896, v{vT0}
        v_and_b32 v{vT0}, 127, v{vW}
        v_add_u32 v{vD}, v{vD}, v{vT0}
        s_mul_i32 s{sSt}, s{sTT}, 56
        s_add_u32 s{sSt}, s{sSt}, s{sFS}
        s_lshl_b32 s{sSt}, s{sSt}, 11
        s_add_u32 s{sSt}, s{sSt}, {WS_ACT}
        s_and_b32 s{sKH}, s2, 1
        s_bfe_u32 s{sR2}, s2, 0x20001
        s_lshl_b32 s{sR2}, s{sR2}, 2
        s_bfe_u32 s3, s2, 0x20003
        s_add_u32 s{sR2}, s{sR2}, s3
        s_lshr_b32 s{sCT}, s2, 5
        s_lshl_b32 s{sT0}, s{sKH}, 2
        s_add_u32 s{sT0}, s{sT0}, s{sJ}
        s_mul_i32 s{sT0}, s{sT0}, {224*896}
        s_lshl_b32 s3, s{sCT}, 7
        s_add_u32 s{sT0}, s{sT0}, s3
        s_sub_u32 s{sT1}, {224*896}, s3
        s_cmp_lt_u32 s2, 224
        s_cselect_b32 s{sT1}, s{sT1}, 0
        """)
        srd(k, sW2, 16, 17, f"s{sT0}", f"s{sT1}")
        k(f"""
        s_mul_i32 s{sT0}, s{sJ}, {16*896}
        s_add_u32 s{sT0}, s{sT0}, s3
        s_sub_u32 s{sT1}, {448*896}, s{sT0}
        s_cmp_lt_u32 s2, 224
        s_cselect_b32 s{sT1}, s{sT1}, 0
        """)
        srd(k, sWO, 8, 9, f"s{sT0}", f"s{sT1}")
        k(f"s_lshl_b32 s{sB}, s{sJ}, 11")
        for r in range(10):
            k(f"v_mov_b32 v{BZ+r}, 0")
        k(f"""
        v_mov_b32 v{vT0}, 0x3f80
        v_cmp_gt_u32 vcc, 32, v{vL}
        v_cndmask_b32 v{BZ+2}, 0, v{vT0}, vcc
        v_cndmask_b32 v{BZ+6}, v{vT0}, v{BZ+6}, vcc
        v_mov_b32 v{BA+1}, 0
        v_mov_b32 v{BA+3}, 0
        """)

        k(f"""
        s_sub_u32 s3, s{sJ}, 4
        s_mul_i32 s3, s3, {8*3584}
        v_add_u32 v{vPad}, s3, v{vW}
        """)

        def dma_w1b(js):
            out = []
            for j in js:
                out += [[E(k, f"s_add_u32 m0, s{sB}, {L_W1B+8192*j}"), E(k, f"s_mul_i32 s{sSo}, s{sC}, {64*3584}"),
                         E(k, f"buffer_load_dwordx4 v{vPad}, {s(sWA,4)}, s{sSo} offen lds", wr=["w1b"])],
                        [E(k, f"s_add_u32 s{sSo}, s{sSo}, {8*3584-1024}"),
                         E(k, f"buffer_load_dwordx4 v{vPad}, {s(sWA,4)}, s{sSo} offen offset:1024 lds", wr=["w1b"])] + nxt()]
            return out

        def dma_rot(srdn, n, gstride, tag, hook=None):
            for i in range(n):
                if hook and i == hook[0]:
                    hook[1]()
                k(f"""
                s_lshl_b32 s3, s{sD}, 13
                s_add_u32 m0, s3, s{sB}
                s_mul_i32 s{sSo}, s{sD}, {gstride}
                """)
                k(f"buffer_load_dwordx4 v{vD}, {s(srdn,4)}, s{sSo} offen lds", wr=[tag])
                k(f"s_add_u32 s{sSo}, s{sSo}, {8*896-1024}")
                k(f"buffer_load_dwordx4 v{vD}, {s(srdn,4)}, s{sSo} offen offset:1024 lds", wr=[tag])
                if i < n - 1:
                    k(f"s_add_u32 s{sD}, s{sD}, 1")
                    k(f"s_cmp_eq_u32 s{sD}, {n}")
                    k(f"s_cselect_b32 s{sD}, 0, s{sD}")

        bias = [E(k, f"{MFMA} {v(acc[t],16)}, {v(BA,4)}, {v(w,4)}, {v(acc[t],16) if t < 1 else 0}")
                for t, w in enumerate((BZ + 2, BZ + 6, BZ, BZ + 4))]
        pass1(1, acc, Wf, [0], {5: dma_w1b(range(4)), 6: dma_w1b([4, 5, 6])}, bias)
        stamp(5)

        def act_store(t):
            return [E(k, f"buffer_store_dwordx4 {v(acc[t]+4*i,4)}, v{vL16}, {s(sWS,4)}, s{sSt} offen offset:{1024*i}{SC}", wr=["act"])
                    for i in range(2)] + [E(k, f"s_add_u32 s{sSt}, s{sSt}, 2048")]

        W6 = Wf[1] + Wf[0]
        D = 3

        def rd2(m):
            t, n = divmod(m, 28)
            j, st = n >> 2, n & 3
            return [E(k, f"ds_read_b64_tr_b16 {v(W6[m%6]+2*e,2)}, v{wa[1-t%2]} offset:{8192*j+(16*st+4*e)*128}") for e in range(2)]

        def tile(t, lim):
            d = acc[(t + 1) & 1]
            groups = []
            for n in range(28):
                m = 28 * t + n
                c = v(acc[t + 1], 16) if n == 0 else v(d, 16)
                g = [E(k, f"{MFMA} {v(d,16)}, {v(W6[m%6],4)}, {v(X+4*n,4)}, {c}")]
                if m + D < lim:
                    g += rd2(m + D)
                groups.append(g)
            run(groups[:2])
            spread(k, groups[2:26], mish_ops(k, acc[t & 1], tmp) + act_store(t & 1))
            run(groups[26:])

        for m in range(D):
            run([rd2(m)])
        tile(0, 28)
        for r in wa[:2]:
            k(f"v_subrev_u32 v{r}, {L_W1A - L_W1B}, v{r}")
        k.need("w1b")
        cnt_add(0, vT0, vT1)
        cnt_wait(0, 4, vT0, vT1)
        k(f"s_cmp_eq_u32 s{sLong}, 1")
        with k.if_("s_cbranch_scc0") as lg:
            for m in range(28, 28 + D):
                run([rd2(m)])
            tile(1, 84)
            tile(2, 84)
            lg.else_()
            k(f"s_cmp_eq_u32 s{sG}, 3")
            with k.if_("s_cbranch_scc0"):
                srd(k, sX, 18, 19, 0, 896)
                k(f"""
                s_lshl_b32 s3, s{sC}, 7
                v_add_u32 v{vT0}, s3, v{vL16}
                v_subrev_u32 v{vT1}, 896, v{vT0}
                v_min_u32 v{vT0}, v{vT0}, v{vT1}
                s_lshr_b32 s3, s{sB}, 1
                s_add_u32 m0, s3, {L_GW}
                v_lshrrev_b32 v{vT1}, 5, v{vL}
                v_lshlrev_b32 v{vT1}, 4, v{vT1}
                v_add_u32 v{vT1}, m0, v{vT1}
                """)
                k(f"buffer_load_dwordx4 v{vT0}, {s(sX,4)}, 0 offen lds", wr=["gw"])
                k.need("gw")
                GF = Wf[0] + Wf[1]
                rd = lambda n: k(f"ds_read_b128 {v(GF[n%6],4)}, v{vT1} offset:{32*n}")
                for n in range(4):
                    rd(n)
                a = acc[0]
                for n in range(28):
                    k(f"{MFMA} {v(a,16)}, {v(GF[n%6],4)}, {v(X+4*n,4)}, {'0' if n == 0 else v(a,16)}")
                    if n + 4 < 28:
                        rd(n + 4)
                k(f"""
                s_lshl_b32 s3, s{sTT}, 7
                s_add_u32 s{sT0}, s3, {WS_G}
                v_and_b32 v{vT0}, 31, v{vL}
                v_lshlrev_b32 v{vT0}, 2, v{vT0}
                v_mul_f32 v{a}, {f32(-LOG2E)}, v{a}
                v_exp_f32 v{a}, v{a}
                v_add_f32 v{a}, 1.0, v{a}
                v_rcp_f32 v{a}, v{a}
                """)
                k(f"buffer_store_dword v{a}, v{vT0}, {s(sWS,4)}, s{sT0} offen{SC}", wr=["act"])
        W2 = X
        cnt_add(0, vT0, vT1)
        for f in mish_ops(k, acc[1], tmp) + act_store(1)[:2]:
            f()
        stamp(6)
        k(f"""
        s_add_u32 s10, s10, {WS_FA}
        s_and_b32 s3, s{sR2}, 3
        s_mul_i32 s{sD}, s3, 7
        s_lshr_b32 s{sD}, s{sD}, 1
        """)
        cnt_wait(0, 8, vT0, vT1)

        k("s_setprio 0")

        def pub_act():
            k.need("act")
            k("s_setprio 2")
            flag_last(3, "s10", vT0, vT1)
            k("s_setprio 0")
            stamp(7)
        dma_rot(sW2, 14, 16 * 896, "w2", (4, pub_act))
        k.need("w2")
        k("s_setprio 2")
        for st in range(14):
            if st == 7:
                for r in (wr0, wr1):
                    k(f"v_add_u32 v{r}, 57344, v{r}")
            for t in range(2):
                for e in range(2):
                    k(f"ds_read_b64_tr_b16 {v(W2+8*st+4*t+2*e,2)}, v{[wr0, wr1][t]} offset:{8192*(st%7)+8*e*128}", wr=[f"r{st//7}"])
        k(f"s_and_b32 s{sD}, s{sR2}, 3")
        k(f"s_lshl_b32 s{sD}, s{sD}, 1")
        k.need("r0")
        k("s_setprio 0")
        dma_rot(sWO, 7, 64 * 896, "wo")
        k.need("wo", "r1")
        k("s_setprio 2")
        cnt_add(0, vT0, vT1)
        k("s_cmp_ge_u32 s2, 224")
        with k.if_("s_cbranch_scc0"):
            k("s_lshl_b32 s3, s2, 2")
            k(f"s_add_u32 s3, s3, s{sJ}")
            k("s_cmp_eq_u32 s3, 1023")
            with k.if_("s_cbranch_scc0"):
                k(f"v_lshlrev_b32 v{vT0}, 9, v{vL}")
                k(f"v_add_u32 v{vT0}, {WS_FQ}, v{vT0}")
                poll(vT0, 192, -1, (0, 128, 256, 384))
                flag("0")
            endpgm()
        RING = 192
        sAo = [10, 11, 12, 13]
        sPx = [14, 15]
        sFp = [16, 17]
        k(f"""
        s_lshl_b32 s{sT0}, s{sKH}, 2
        s_add_u32 s{sT0}, s{sT0}, s{sJ}
        s_mul_i32 s{sT0}, s{sT0}, 7
        s_lshl_b32 s3, s{sKH}, 7
        s_add_u32 s3, s3, s{sR2}
        s_lshl_b32 s3, s3, 7
        s_add_u32 s3, s3, {WS_FA}
        v_lshl_add_u32 v{vT2}, v{vL}, 11, s3
        s_lshl_b32 s{sT1}, s{sR2}, 1
        s_add_u32 s{sT1}, s{sT1}, s{sKH}
        s_lshl_b32 s{sT1}, s{sT1}, 1
        s_and_b32 s3, s{sJ}, 1
        s_add_u32 s{sT1}, s{sT1}, s3
        s_lshl_b32 s{sCT}, s{sCT}, 1
        s_lshr_b32 s3, s{sJ}, 1
        s_add_u32 s{sCT}, s{sCT}, s3
        """)
        for q in range(4):
            k(f"""
            s_xor_b32 s3, s{sT1}, {3-q}
            s_mul_i32 s3, s3, 56
            s_add_u32 s3, s3, s{sT0}
            s_lshl_b32 s3, s3, 11
            s_add_u32 s{sAo[q]}, s3, {WS_ACT}
            """)
        for q in range(2):
            k(f"""
            s_xor_b32 s3, s{sT1}, {2-2*q}
            s_mul_i32 s{sPx[q]}, s3, 14
            s_add_u32 s{sPx[q]}, s{sPx[q]}, s{sCT}
            s_lshl_b32 s{sPx[q]}, s{sPx[q]}, 12
            s_add_u32 s{sPx[q]}, s{sPx[q]}, {WS_PX}
            s_lshl_b32 s3, s3, 4
            s_add_u32 s3, s3, s{sCT}
            s_lshl_b32 s3, s3, 7
            s_add_u32 s{sFp[q]}, s3, {WS_FP}
            """)
        vO = [11, 6, 7, 8]
        for i in range(4):
            k(f"""
            s_xor_b32 s3, s{sJ}, {i}
            s_mul_i32 s3, s3, 12288
            s_add_u32 s3, s3, {L_FRED + 4096*max(i-1, 0)}
            v_add_u32 v{vO[i]}, s3, v{vL16}
            """)
        poll(vT2, vFd, "0xff")
        stamp(8)

        def ldA(f):
            q, st = divmod(f, 14)
            if st % 4 == 0:
                k(f"s_add_u32 s{sSo}, s{sAo[q]}, {st*1024}")
            k(f"buffer_load_dwordx4 {v(RING+4*(f%16),4)}, v{vL16}, {s(sWS,4)}, s{sSo} offen offset:{(st%4)*1024}{SC}")

        def send(i):
            return [E(k, f"ds_write_b128 v{vO[i]}, {v(acc[i]+4*c,4)} offset:{1024*c}", wr=["fw"]) for c in range(4)]

        k("s_setprio 0")
        for f in range(16):
            ldA(f)
        for ph in range(2):
            for f in range(28 * ph, 28 * ph + 28):
                q, st = divmod(f, 14)
                tl = 1 - (q & 1)
                for t in range(2):
                    a = acc[tl + 2 * t]
                    k(f"{MFMA} {v(a,16)}, {v(W2+8*st+4*t,4)}, {v(RING+4*(f%16),4)}, {'0' if st == 0 else v(a,16)}")
                if f + 16 < 56:
                    ldA(f + 16)
                if tl == 0 and st == 1:
                    cnt_wait(0, 12 + 8 * ph, vT0, vT1)
                    run([send(1), send(3)])
            stamp(9 + 2 * ph)
            k("s_setprio 2")
            run([send(2)])
            k.need("fw")
            cnt_add(0, vT0, vT1)
            if ph == 1:
                k(f"v_mov_b32 v{vT2}, s{sFp[1]}")
                poll(vT2, vFd, 1)
                for c in range(4):
                    k(f"buffer_load_dwordx4 {v(RING+4*c,4)}, v{vL16}, {s(sWS,4)}, s{sPx[1]} offen offset:{1024*c}{SC}")
            cnt_wait(0, 16 + 8 * ph, vT0, vT1)
            for i in range(1, 4):
                for c in range(4):
                    k(f"ds_read_b128 {v(acc[i]+4*c,4)}, v{vO[0]} offset:{4096*(i-1)+1024*c}", wr=["fr"])
            for src in acc[1:] + ([RING] if ph else []):
                for r in range(0, 16, 2):
                    k(f"v_pk_add_f32 {v(acc[0]+r,2)}, {v(acc[0]+r,2)}, {v(src+r,2)}")
            if ph == 0:
                for c in range(4):
                    k(f"buffer_store_dwordx4 {v(acc[0]+4*c,4)}, v{vL16}, {s(sWS,4)}, s{sPx[0]} offen offset:{1024*c}{SC}", wr=["px"])
                cnt_add(0, vT0, vT1)
                k.need("px")
                flag(f"s{sFp[0]}")
                k("s_setprio 0")
                stamp(10)
        for c in range(4):
            k(f"ds_write_b128 v{vO[0]}, {v(acc[0]+4*c,4)} offset:{1024*c}", wr=["b"])
        k.need("b")
        stamp(12)
        k("s_barrier")
        endpgm()
    return k


def main():
    for a in sys.argv[2:]:
        kk, vv = a.split("=")
        try:
            vv = int(vv)
        except ValueError:
            vv = " " + vv.replace("+", " ")
        OPT[kk] = vv
    out = sys.argv[1]
    open(out, "w").write(build([(NAME + "_kernel", gen, 256, 512, 163840)]))


if __name__ == "__main__":
    main()
```

```python
import math, struct, sys, os
sys.path.insert(0, os.path.dirname(os.path.abspath(__file__)))
from asmlib import *
from gen import f32, MFMA, SMF, LOG2E, NAME, srd, spread, E, mish_ops, build

OPT = dict()
WS_FQ, WS_FA, WS_FO, WS_FP, WS_G = 0x8000, 0x10000, 0x20000, 0x40000, 0x60000
WS_QKV, WS_ACT, WS_OF, WS_PX, WS_DBG, WS_SIZE = 0x100000, 0x700000, 0xE00000, 0x1000000, 0x1400000, 0x1500000
SLOT = 32768
SLOTS = [0, 32768, 65536]
L_W1B = 32768
L_W1A, L_FRED, L_ORED, L_CNT, L_GW = 98304, 57344, 106496, 155648, 159744
SST = 74
SC = " sc1"
SPIN = 1 << 16


def gen(code_size):
    k = Prog("f4")
    sX, sQ, sW, sWS, sWA, sW2, sWO = 24, 28, 32, 36, 40, 44, 48
    sWv, sRB, sG, sTT, sFS, sLong, sO0, sT0, sT1, sL2, sL1, sC, sSo, sTag, sCnt, sA, sM, _, sB, sD, sEe, sF = range(52, 74)
    vL, vL16, vT0, vT1, vT2 = 1, 2, 3, 4, 5
    vX0, vX1, vQ0, vQ1, vW = 240, 241, 242, 243, 244
    xa = [245, 246, 247, 248]
    wa = [249, 250, 251]
    vPad, vE, vPF = 252, 253, 254
    X = 16
    vTag = 12

    def stamp(i):
        if OPT.get("stamp") == 2:
            k(f"s_memtime {s(SST + 2 * i, 2)}")
        elif OPT.get("stamp"):
            k(f"s_memrealtime {s(SST + 2 * i, 2)}")

    def endpgm(role=0):
        if OPT.get("pad"):
            k("s_waitcnt vmcnt(0)")
            stamp(13)
            ps = OPT.get("ps%d" % role, 0)
            k(f"s_add_u32 s{SST}, s{SST + 2 * ps}, {OPT['pad'] * 100}")
            if "padwg" in OPT:
                k(f"s_cmp_eq_u32 s2, {OPT['padwg']}")
                k(f"s_cselect_b32 s{SST}, s{SST}, s{SST + 2 * ps}")
            with k.loop([1, 2]) as lp:
                k(f"s_memrealtime {s(SST + 2, 2)}")
                k(f"s_sub_u32 s3, s{SST + 2}, s{SST}")
                k("s_cmp_lt_i32 s3, 0")
                lp.back("s_cbranch_scc1")
            k("s_endpgm")
            return
        if OPT.get("stamp"):
            k("s_waitcnt vmcnt(0)")
            stamp(13)
            k(f"""
            s_lshl_b32 s3, s2, 3
            s_add_u32 s3, s3, s{sWv}
            s_lshl_b32 s3, s3, 6
            s_add_u32 s3, s3, {WS_DBG}
            v_mov_b32 v1, 0
            """)
            for i in range(14):
                k(f"v_mov_b32 v2, s{SST + 2 * i}")
                k(f"buffer_store_dword v2, v1, {s(sWS, 4)}, s3 offen offset:{4 * i}")
        k("s_endpgm")

    def poll(vA, vD, mask, offs=(0,)):
        k(f"s_mov_b32 s{sCnt}, {SPIN}")
        k(f"s_mov_b64 exec, {mask}")
        with k.loop([1, 2]) as lp:
            for i, o in enumerate(offs):
                k(f"buffer_load_dword v{vD+i}, v{vA}, {s(sWS,4)}, 0 offen offset:{o}{SC}")
            k(f"s_sub_u32 s{sCnt}, s{sCnt}, 1")
            k(f"v_cmp_ne_u32 vcc, s{sTag}, v{vD}")
            for i in range(1, len(offs)):
                k(f"v_cmp_ne_u32 {s(sM,2)}, s{sTag}, v{vD+i}")
                k(f"s_or_b64 vcc, vcc, {s(sM,2)}")
            k(f"""
            s_cmp_lg_u64 vcc, 0
            s_cselect_b32 s3, s{sCnt}, 0
            s_cmp_lg_u32 s3, 0
            """)
            lp.back("s_cbranch_scc1")
        k("s_mov_b64 exec, -1")

    def flag(so):
        k("s_mov_b64 exec, 0xff")
        k(f"buffer_store_dwordx4 {v(vTag,4)}, v{vL16}, {s(sWS,4)}, {so} offen{SC}")
        k("s_mov_b64 exec, -1")

    def flag_last(which, so, va, vb):
        k(f"v_mov_b32 v{va}, {L_CNT}")
        k(f"v_mov_b32 v{vb}, 1")
        k("s_mov_b64 exec, 1")
        k(f"ds_add_rtn_u32 v{vb}, v{va}, v{vb} offset:{4*which}")
        k("s_mov_b64 exec, -1")
        k(f"v_readfirstlane_b32 s3, v{vb}")
        k("s_cmp_eq_u32 s3, 3")
        with k.if_("s_cbranch_scc0"):
            flag(so)

    def cnt_add(which, va, vb):
        k(f"v_mov_b32 v{va}, {L_CNT}")
        k(f"v_mov_b32 v{vb}, 1")
        k("s_mov_b64 exec, 1")
        k(f"ds_add_u32 v{va}, v{vb} offset:{4*which}")
        k("s_mov_b64 exec, -1")

    def cnt_wait(which, target, va, vb):
        k(f"v_mov_b32 v{va}, {L_CNT}")
        k(f"s_mov_b32 s{sCnt}, {SPIN * 16}")
        with k.loop([1, 2]) as lp:
            k(f"""
            ds_read_b32 v{vb}, v{va} offset:{4*which}
            s_sub_u32 s{sCnt}, s{sCnt}, 1
            v_readfirstlane_b32 s3, v{vb}
            s_cmp_lt_u32 s3, {target}
            s_cselect_b32 s3, s{sCnt}, 0
            s_cmp_lg_u32 s3, 0
            """)
            lp.back("s_cbranch_scc1")

    def tr_parts(r, p):
        k(f"""
        v_bfe_u32 v{p}, v{vL}, 4, 1
        v_and_b32 v{r}, 3, v{vL}
        v_lshl_add_u32 v{p}, v{p}, 2, v{r}
        v_bfe_u32 v{r}, v{vL}, 2, 2
        """)

    k("s_load_dwordx16 s[4:19], s[0:1], 0")
    k("s_load_dwordx2 s[20:21], s[0:1], 80")
    k("s_load_dwordx2 s[22:23], s[0:1], 64")
    k("s_cmp_ge_u32 s2, 256")
    with k.if_("s_cbranch_scc0"):
        k("s_endpgm")
    stamp(0)
    nl = code_size // 128 + 1
    per = (nl + 31) // 32
    assert per <= 64
    k(f"""
    v_lshrrev_b32 v{vT0}, 6, v0
    v_and_b32 v{vL}, 63, v0
    s_getpc_b64 {s(sM, 2)}
    v_readfirstlane_b32 s{sWv}, v{vT0}
    s_lshr_b32 s3, s2, 3
    s_mul_i32 s3, s3, {per}
    v_min_u32 v{vPF}, {per - 1}, v{vL}
    v_add_u32 v{vPF}, s3, v{vPF}
    v_lshlrev_b32 v{vPF}, 7, v{vPF}
    v_min_u32 v{vPF}, {max(code_size - 64, 0) & ~3}, v{vPF}
    s_cmp_eq_u32 s{sWv}, 7
    """)
    with k.if_("s_cbranch_scc0"):
        k(f"global_load_dword v{vPF}, v{vPF}, {s(sM, 2)}")
    k(f"""
    s_and_b32 s3, s2, 4
    s_lshl_b32 s3, s3, 1
    s_bfe_u32 s{sRB}, s2, 0x30003
    s_add_u32 s{sRB}, s{sRB}, s3
    s_and_b32 s3, s2, 3
    s_lshl_b32 s3, s3, 2
    s_lshr_b32 s{sG}, s2, 6
    s_add_u32 s{sG}, s{sG}, s3
    s_add_u32 s{sC}, s{sRB}, s{sG}
    s_mul_i32 s3, s{sC}, 37
    s_lshr_b32 s3, s3, 8
    s_mul_i32 s3, s3, 7
    s_sub_u32 s{sC}, s{sC}, s3
    s_and_b32 s{sA}, s{sWv}, 3
    s_lshl_b32 s{sTT}, s{sRB}, 2
    s_add_u32 s{sTT}, s{sTT}, s{sA}
    s_lshl_b32 s{sL2}, s{sWv}, 11
    s_lshl_b32 s{sL1}, s{sWv}, 10
    s_bfm_b32 s3, s{sG}, 0
    s_and_b32 s3, s3, 0x1248
    s_bcnt1_i32_b32 s3, s3
    s_lshl_b32 s{sFS}, s{sG}, 1
    s_sub_u32 s{sFS}, s{sFS}, s3
    s_lshl_b32 s{sFS}, s{sFS}, 1
    s_mul_i32 s{sT0}, s{sG}, 168
    s_bitcmp1_b32 0x1248, s{sG}
    s_cselect_b32 s{sLong}, 0, 1
    s_cselect_b32 s3, 15, 127
    s_and_b32 s{sO0}, s{sT0}, s3
    s_sub_u32 s{sT0}, s{sT0}, s{sO0}
    """)
    if OPT.get("norot"):
        k(f"s_mov_b32 s{sC}, 0")
    k(f"""
    v_lshrrev_b32 v{vT0}, 3, v{vL}
    s_lshl_b32 s3, s{sWv}, 4
    v_add_u32 v{vT1}, s3, v{vT0}
    v_mul_u32_u24 v{vX0}, 896, v{vT1}
    v_lshrrev_b32 v{vT1}, 4, v{vL}
    v_and_b32 v{vT2}, 7, v{vL}
    v_xor_b32 v{vX1}, v{vT2}, v{vT1}
    v_lshl_add_u32 v{vQ0}, v{vX1}, 4, v{vX0}
    v_xor_b32 v{vX1}, 4, v{vX1}
    v_lshl_add_u32 v{vX1}, v{vX1}, 4, v{vX0}
    v_add_u32 v{vX1}, {8*896-1024}, v{vX1}
    v_mov_b32 v{vX0}, v{vQ0}
    s_lshl_b32 s3, s{sWv}, 3
    v_add_u32 v{vT0}, s3, v{vT0}
    v_mul_u32_u24 v{vW}, 3584, v{vT0}
    v_and_b32 v{vT0}, 1, v{vT1}
    v_lshlrev_b32 v{vT0}, 2, v{vT0}
    v_xor_b32 v{vT0}, v{vT0}, v{vT2}
    v_lshl_add_u32 v{vW}, v{vT0}, 4, v{vW}
    v_add_u32 v{vT0}, s3, v{vT1}
    v_mul_u32_u24 v{vQ0}, 2688, v{vT0}
    v_lshlrev_b32 v{vT0}, 2, v{vT1}
    v_and_b32 v{vT2}, 15, v{vL}
    v_xor_b32 v{vT0}, v{vT0}, v{vT2}
    v_lshl_add_u32 v{vQ0}, v{vT0}, 4, v{vQ0}
    v_add_u32 v{vQ1}, {4*2688-1024}, v{vQ0}
    v_mov_b32 v{vE}, 0
    s_mul_i32 s{sB}, s{sRB}, {128*896}
    s_sub_u32 s{sD}, {448*2688}, s{sT0}
    s_lshl_b32 s{sT1}, s{sFS}, 6
    s_sub_u32 s{sEe}, {448*3584}, s{sT1}
    """)
    srd(k, sX, 4, 5, f"s{sB}", 128 * 896)
    k(f"global_load_dword v{vE}, v{vE}, s[20:21]{SC}")
    srd(k, sQ, 6, 7, f"s{sT0}", f"s{sD}")
    srd(k, sW, 12, 13, f"s{sT1}", f"s{sEe}")

    def nxt():
        return [E(k, f"s_add_u32 s{sC}, s{sC}, 1"), E(k, f"s_cmp_eq_u32 s{sC}, 7"), E(k, f"s_cselect_b32 s{sC}, 0, s{sC}")]

    def dma_chunk(c):
        so = SLOTS[c % 3]
        t = dict(wr=[f"ch{c}"])
        return [
            [E(k, f"s_add_u32 m0, s{sL2}, {so}"), E(k, f"s_lshl_b32 s{sSo}, s{sC}, 7"),
             E(k, f"buffer_load_dwordx4 v{vX0}, {s(sX,4)}, s{sSo} offen lds", **t)],
            [E(k, f"buffer_load_dwordx4 v{vX1}, {s(sX,4)}, s{sSo} offen offset:1024 lds", **t)],
            [E(k, f"s_add_u32 m0, s{sL2}, {so+16384}"), E(k, f"s_mul_i32 s{sSo}, s{sC}, {64*2688}"),
             E(k, f"buffer_load_dwordx4 v{vQ0}, {s(sQ,4)}, s{sSo} offen lds", **t)],
            [E(k, f"buffer_load_dwordx4 v{vQ1}, {s(sQ,4)}, s{sSo} offen offset:1024 lds", **t)],
            [E(k, f"s_add_u32 m0, s{sL1}, {L_W1A+8192*c}"), E(k, f"s_mul_i32 s{sSo}, s{sC}, {64*3584}"),
             E(k, f"buffer_load_dwordx4 v{vW}, {s(sW,4)}, s{sSo} offen lds", **t)] + nxt(),
        ]

    def run(groups):
        for g in groups:
            for f in g:
                f()

    stamp(1)
    run(dma_chunk(0))
    k("s_barrier")
    run(dma_chunk(1))
    srd(k, sWS, 20, 21, 0, WS_SIZE)
    k(f"""
    v_lshlrev_b32 v{vL16}, 4, v{vL}
    v_mov_b32 v{vT0}, {L_CNT}
    v_mov_b32 v{vT1}, 0
    v_mov_b32 v{vT2}, 0
    s_lshl_b32 s{sF}, s{sG}, 4
    s_add_u32 s{sF}, s{sF}, s{sRB}
    s_lshl_b32 s10, s{sF}, 7
    """)
    k(f"ds_write_b64 v{vT0}, {v(vT1,2)}", wr=["ch0"])
    k(f"ds_write_b64 v{vT0}, {v(vT1,2)} offset:8", wr=["ch0"])
    k(f"""
    v_and_b32 v{vT0}, 31, v{vL}
    s_lshl_b32 s3, s{sA}, 5
    v_add_u32 v{vT1}, s3, v{vT0}
    v_lshlrev_b32 v{vT1}, 7, v{vT1}
    v_bfe_u32 v{vT0}, v{vL}, 1, 3
    v_lshrrev_b32 v{vT2}, 5, v{vL}
    v_xor_b32 v{vT0}, v{vT0}, v{vT2}
    v_lshl_add_u32 v{xa[0]}, v{vT0}, 4, v{vT1}
    v_xor_b32 v{xa[1]}, 32, v{xa[0]}
    v_xor_b32 v{xa[2]}, 64, v{xa[0]}
    v_xor_b32 v{xa[3]}, 96, v{xa[0]}
    """)
    tr_parts(vT0, vT1)
    k(f"v_lshl_add_u32 v{vT2}, v{vT2}, 3, v{vT0}")

    def pass1(role, acc, Wf, swap, extra={}, mid=()):
        st8 = dict(base=0)
        ntile = len(swap)

        def reads(n):
            out = []
            c, st = n >> 2, n & 3
            if st == 0 and SLOTS[c % 3] - st8["base"] not in (0, SLOT):
                nb = SLOT if SLOTS[c % 3] == 2 * SLOT else 0
                d = "v_add_u32" if nb > st8["base"] else "v_subrev_u32"
                out += [E(k, f"{d} v{r}, {SLOT}, v{r}") for r in xa + (wa if role == 0 else [])]
                st8["base"] = nb
            base = SLOTS[c % 3] - st8["base"]
            t_ = dict(wr=[f"rd{c}"])
            out.append(E(k, f"ds_read_b128 {v(X+4*n,4)}, v{xa[st]} offset:{base}", **t_))
            for t in range(ntile):
                for e in range(2):
                    off = base + (16 * st + 4 * e) * 256 if role == 0 else 8192 * c + (16 * st + 4 * e) * 128
                    out.append(E(k, f"ds_read_b64_tr_b16 {v(Wf[t][n%3]+2*e,2)}, v{wa[t]} offset:{off}", **t_))
            return out

        k.need("ch0")
        k(f"v_readfirstlane_b32 s{sTag}, v{vE}")
        k("s_barrier")
        stamp(2)
        for f in reads(0) + reads(1):
            f()
        k(f"s_mul_i32 s{sTag}, s{sTag}, 0x9E3779B1")
        k(f"s_add_u32 s{sTag}, s{sTag}, 0x7F4A7C15")
        for i in range(4):
            k(f"v_mov_b32 v{vTag+i}, s{sTag}")
        pend = dma_chunk(2)
        for n in range(28):
            ms = []
            for t in range(ntile):
                a, b = v(Wf[t][n % 3], 4), v(X + 4 * n, 4)
                if swap[t]:
                    a, b = b, a
                cc = "0" if n == 0 else v(acc[t], 16)
                ms.append([E(k, f"{MFMA} {v(acc[t],16)}, {a}, {b}, {cc}")])
            if n == 6:
                ms += [[f] for f in mid]
            if (n + 2) % 4 == 0:
                c = (n + 2) // 4
                spread(k, ms, [lambda g=g: [f() for f in g] for g in pend])
                k.need(f"rd{c-1}", f"ch{c}")
                k("s_barrier")
                if c in (3, 6):
                    stamp(2 + c // 3)
                if c < 7:
                    for f in reads(n + 2):
                        f()
                pend = (dma_chunk(c + 2) if c <= 4 else []) + extra.get(c, [])
            else:
                fill = reads(n + 2) if n + 2 < 28 else []
                left = 3 - ((n + 2) % 4) + 1
                ntk = max(2, (len(pend) + left - 1) // left)
                take, pend = pend[:ntk], pend[ntk:]
                fill = fill + [lambda g=g: [f() for f in g] for g in take]
                spread(k, ms, fill)
        assert not pend and st8["base"] == 0

    k(f"s_cmp_lt_u32 s{sWv}, 4")
    with k.if_("s_cbranch_scc0") as role:
        acc = [128, 144, 160]
        Wf = [[176 + 12 * t + 4 * i for i in range(3)] for t in range(3)]
        sSc = [sB, sEe, 4]
        sSt = 6
        k("s_setprio 3")
        k(f"""
        v_min_u32 v{wa[0]}, 6, v{vT1}
        v_lshlrev_b32 v{wa[0]}, 3, v{wa[0]}
        v_add_u32 v{wa[0]}, s{sO0}, v{wa[0]}
        v_add_u32 v{wa[1]}, 56, v{wa[0]}
        v_add_u32 v{wa[2]}, 112, v{wa[0]}
        v_lshlrev_b32 v{vT0}, 6, v{vT0}
        v_lshlrev_b32 v{vT2}, 8, v{vT2}
        v_add_u32 v{vT2}, 16384, v{vT2}
        v_xor_b32 v{wa[0]}, v{wa[0]}, v{vT0}
        v_xor_b32 v{wa[1]}, v{wa[1]}, v{vT0}
        v_xor_b32 v{wa[2]}, v{wa[2]}, v{vT0}
        v_add_u32 v{wa[0]}, v{wa[0]}, v{vT2}
        v_add_u32 v{wa[1]}, v{wa[1]}, v{vT2}
        v_add_u32 v{wa[2]}, v{wa[2]}, v{vT2}
        v_and_b32 v{vT0}, 31, v{vL}
        v_mov_b32 v{vT1}, 0x3f803f80
        v_cmp_eq_u32 vcc, 28, v{vT0}
        v_cndmask_b32 v{vPad}, 0, v{vT1}, vcc
        s_mul_i32 s{sT0}, s{sG}, 3
        """)
        for t in range(3):
            k(f"s_cmp_lt_u32 s{sT0}, {16 - t}")
            k(f"s_cselect_b32 s{sSc[t]}, {f32(28 ** -0.5 * LOG2E)}, 1.0")
            k(f"s_mov_b32 s{sSc[t]+1}, s{sSc[t]}")
        k(f"""
        s_lshl_b32 s{sT0}, s{sT0}, 6
        s_add_u32 s{sT0}, s{sT0}, s{sTT}
        s_lshl_b32 s{sSt}, s{sT0}, 11
        s_add_u32 s{sSt}, s{sSt}, {WS_QKV}
        """)

        def p1_role0(swap):
            pass1(0, acc, Wf, swap)
            for t in range(3):
                a = acc[t]
                if swap[t]:
                    if t == 0 or not swap[t - 1]:
                        k(f"s_mov_b32 s{sM}, 0xf0000000")
                        k(f"s_mov_b32 s{sM+1}, 0xf0000000")
                    for r in range(8):
                        k(f"v_cvt_pk_bf16_f32 v{a+r}, v{a+2*r}, v{a+2*r+1}")
                    for r in range(8):
                        k(f"v_cndmask_b32 v{a+r}, v{a+r}, v{vPad}, {s(sM,2)}")
                else:
                    if t == 0:
                        k(f"s_mov_b32 s{sM}, 0")
                        k(f"s_mov_b32 s{sM+1}, -1")
                    for r in range(0, 16, 2):
                        k(f"v_pk_mul_f32 {v(a+r,2)}, {v(a+r,2)}, {s(sSc[t],2)}")
                    for r in range(8):
                        k(f"v_cvt_pk_bf16_f32 v{a+r}, v{a+2*r}, v{a+2*r+1}")
                    for r in (6, 7):
                        k(f"v_cndmask_b32 v{a+r}, v{a+r}, 0, {s(sM,2)}")
                for i in range(2):
                    k(f"buffer_store_dwordx4 {v(a+4*i,4)}, v{vL16}, {s(sWS,4)}, s{sSt} offen offset:{1024*i}{SC}", wr=["qkv"])
                if t < 2:
                    k(f"s_add_u32 s{sSt}, s{sSt}, {64*2048}")

        k(f"s_cmp_lt_u32 s{sG}, 10")
        with k.if_("s_cbranch_scc0") as v0:
            p1_role0([0, 0, 0])
            v0.else_()
            k(f"s_cmp_eq_u32 s{sG}, 10")
            with k.if_("s_cbranch_scc0") as v1:
                p1_role0([0, 0, 1])
                v1.else_()
                p1_role0([1, 1, 1])
        stamp(5)
        sK, sV = sX, sQ
        sH, sQB, sOff, sIt = sRB, sG, sO0, sFS
        vLp, vIdx, vFa, vFd = 6, 7, 8, 9
        Q = [16 + 8 * j for j in range(4)]
        KB = [48 + 8 * j for j in range(4)]
        VB = [80 + 8 * j for j in range(4)]
        S = [112 + 16 * j for j in range(4)]
        O = [176 + 16 * j for j in range(4)]
        k(f"""
        s_add_u32 s{sC}, s10, {WS_FQ}
        s_and_b32 s{sH}, s2, 7
        s_lshl_b32 s{sH}, s{sH}, 1
        s_bfe_u32 s3, s2, 0x10003
        s_add_u32 s{sH}, s{sH}, s3
        s_lshr_b32 s{sQB}, s2, 4
        v_and_b32 v{vT0}, 0x33, v{vL}
        v_bfe_u32 v{vT1}, v{vL}, 2, 1
        v_bfe_u32 v{vT2}, v{vL}, 3, 1
        v_lshl_or_b32 v{vT0}, v{vT1}, 3, v{vT0}
        v_lshl_or_b32 v{vT0}, v{vT2}, 2, v{vT0}
        v_lshlrev_b32 v{vLp}, 4, v{vT0}
        s_lshl_b32 s{sT0}, s{sH}, 17
        s_add_u32 s{sT0}, s{sT0}, {WS_QKV}
        s_lshl_b32 s{sT1}, s{sWv}, 15
        s_add_u32 s{sT1}, s{sT1}, s{sT0}
        s_add_u32 s3, s{sT1}, {16*64*2048}
        """)
        srd(k, sK, 20, 21, "s3", 32768)
        k(f"s_add_u32 s3, s{sT1}, {32*64*2048}")
        srd(k, sV, 20, 21, "s3", 32768)
        k(f"""
        v_lshrrev_b32 v{vT0}, 2, v{vL}
        v_add_u32 v{vT0}, 1, v{vT0}
        v_cmp_gt_u32 vcc, 8, v{vL}
        v_cndmask_b32 v{vT0}, 0, v{vT0}, vcc
        v_lshl_add_u32 v{vT0}, v{vT0}, 4, s{sH}
        v_mul_u32_u24 v{vT0}, 43, v{vT0}
        v_lshrrev_b32 v{vT0}, 7, v{vT0}
        v_and_b32 v{vT1}, 3, v{vL}
        s_lshl_b32 s3, s{sWv}, 2
        v_add_u32 v{vT1}, s3, v{vT1}
        v_mov_b32 v{vT2}, s{sQB}
        v_cndmask_b32 v{vT1}, v{vT2}, v{vT1}, vcc
        v_lshl_add_u32 v{vT0}, v{vT0}, 4, v{vT1}
        v_lshlrev_b32 v{vT0}, 7, v{vT0}
        v_add_u32 v{vT2}, {WS_FQ}, v{vT0}
        s_lshl_b32 s3, s{sQB}, 13
        s_add_u32 s{sT0}, s{sT0}, s3
        """)
        for j in range(4):
            for r in range(16):
                k(f"v_mov_b32 v{O[j]+r}, 0")
        for r in range(8, 16):
            k(f"v_mov_b32 v{S[3]+r}, 0")
        for r in range(4, 8):
            k(f"v_mov_b32 v{VB[3]+r}, 0")
        k(f"v_mov_b32 v{vIdx}, 0xdddd")
        k(f"s_mov_b32 s{sIt}, 4")
        sR = [4, 5, 6]
        if OPT.get("nokrot"):
            k(f"s_mov_b32 s{sR[0]}, 0")
        else:
            k(f"s_lshl_b32 s{sR[0]}, s{sQB}, 11")
        prev = sR[0]
        for r in sR[1:] + [sOff]:
            k(f"s_add_u32 s{r}, s{prev}, 2048")
            k(f"s_and_b32 s{r}, s{r}, 0x7fff")
            prev = r
        sQo = [7, 10, 11, 12]
        for j in range(4):
            k(f"""
            s_add_u32 s3, s{sWv}, {1+j}
            s_and_b32 s3, s3, 3
            s_lshl_b32 s3, s3, 11
            s_add_u32 s{sQo[j]}, s3, s{sT0}
            """)
        k.need("qkv")
        flag_last(2, f"s{sC}", vT0, vT1)
        stamp(6)
        poll(vT2, vFd, "0x1ff")
        stamp(7)

        def ldK(buf, so):
            for i in range(2):
                k(f"buffer_load_dwordx4 {v(KB[buf]+4*i,4)}, v{vLp}, {s(sK,4)}, {so} offen offset:{1024*i}{SC}")

        def ldV(buf, so):
            for i in range(2):
                k(f"buffer_load_dwordx4 {v(VB[buf]+4*i,4)}, v{vL16}, {s(sV,4)}, {so} offen offset:{1024*i}{SC}")

        def ldQ(j):
            for i in range(2):
                k(f"buffer_load_dwordx4 {v(Q[j]+4*i,4)}, v{vL16}, {s(sWS,4)}, s{sQo[j]} offen offset:{1024*i}{SC}")

        ldK(0, f"s{sR[0]}")
        ldQ(0)
        ldQ(1)
        ldQ(2)
        ldV(0, f"s{sR[0]}")
        ldQ(3)
        ldK(1, f"s{sR[1]}")
        ldV(1, f"s{sR[1]}")
        ldK(2, f"s{sR[2]}")
        ldV(2, f"s{sR[2]}")
        ldK(3, f"s{sOff}")
        k("s_setprio 1")

        def QK(u, half):
            j, t = u & 3, (u >> 2) & 3
            c = "0" if half == 0 else v(S[j], 16)
            k(f"{MFMA} {v(S[j],16)}, {v(KB[t]+4*half,4)}, {v(Q[j]+4*half,4)}, {c}")

        def PV(u, half):
            j, t = u & 3, (u >> 2) & 3
            k(f"{SMF} {v(O[j],16)}, {v(VB[t]+4*half,4)}, {v(S[j]+8*half,8)}, v{vIdx}")

        def EX(u, a, b):
            for r in range(a, b):
                k(f"v_exp_f32 v{S[u&3]+r}, v{S[u&3]+r}")

        for u in range(2):
            QK(u, 0)
            QK(u, 1)
        stamp(8)
        with k.loop(4, align=6) as lp:
            for u in range(16):
                i = u >> 2
                QK(u + 2, 0)
                EX(u, 0, 4)
                QK(u + 2, 1)
                if u & 3 == 1:
                    ldK(i, f"s{sOff}")
                EX(u, 4, 8)
                PV(u - 1, 1)
                if u & 3 == 0:
                    ldV((i - 1) & 3, f"s{sOff}")
                    k(f"s_add_u32 s{sOff}, s{sOff}, 2048")
                    k(f"s_and_b32 s{sOff}, s{sOff}, 0x7fff")
                if u == 0:
                    k(f"s_cmp_eq_u32 s{sIt}, 1")
                    k(f"s_cselect_b32 s{sK+2}, 0, 32768")
                    k(f"s_cselect_b32 s{sV+2}, 0, 32768")
                EX(u, 8, 12)
                PV(u, 0)
                if u == 15:
                    k(f"s_sub_u32 s{sIt}, s{sIt}, 1")
                    k(f"s_cmp_lg_u32 s{sIt}, 0")
                EX(u, 12, 16)
            lp.back("s_cbranch_scc1")
        PV(15, 1)
        k("s_setprio 3")
        stamp(9)
        cnt_wait(0, 12, vT0, vT1)
        for j in range(3):
            k(f"""
            s_add_u32 s3, s{sWv}, {1+j}
            s_and_b32 s3, s3, 3
            s_mul_i32 s3, s3, 12288
            s_add_u32 s3, s3, {L_ORED+4096*j}
            v_add_u32 v{vT0}, s3, v{vL16}
            """)
            for i in range(4):
                k(f"ds_write_b128 v{vT0}, {v(O[j]+4*i,4)} offset:{1024*i}", wr=["red"])
        vIn = vFa
        k(f"s_mul_i32 s3, s{sWv}, 12288")
        k(f"s_add_u32 s3, s3, {L_ORED}")
        k(f"v_add_u32 v{vIn}, s3, v{vL16}")
        k.need("red")
        cnt_add(1, vT0, vT1)
        cnt_wait(1, 4, vT0, vT1)
        for j in range(3):
            for i in range(4):
                k(f"ds_read_b128 {v(S[j]+4*i,4)}, v{vIn} offset:{4096*j+1024*i}")
        A = O[3]
        for j in range(3):
            for r in range(0, 16, 2):
                k(f"v_pk_add_f32 {v(A+r,2)}, {v(A+r,2)}, {v(S[j]+r,2)}")

        def get_l():
            k(f"""
            v_mov_b32 v{vT0}, v{A+12}
            v_mov_b32 v{vT1}, v{A+12}
            v_permlane32_swap_b32 v{vT0}, v{vT1}
            """)
        get_l()
        k(f"v_mul_f32 v{vT2}, 0, v{A}")
        for r in range(1, 16):
            k(f"v_fma_f32 v{vT2}, v{A+r}, 0, v{vT2}")
        k(f"""
        v_add_f32 v{vT2}, v{vT2}, v{vT1}
        v_cmp_nlt_f32 vcc, {f32(2.0**-30)}, v{vT2}
        s_mov_b64 {s(sM,2)}, vcc
        v_cmp_ngt_f32 vcc, {f32(2.0**40)}, v{vT2}
        s_or_b64 {s(sM,2)}, {s(sM,2)}, vcc
        """)
        if OPT.get("force_fb"):
            k(f"s_mov_b64 {s(sM,2)}, -1")
        k(f"s_cmp_lg_u64 {s(sM,2)}, 0")
        with k.if_("s_cbranch_scc0"):
            k(f"s_lshl_b32 s{sT1}, s{sH}, 17")
            k(f"s_add_u32 s3, s{sT1}, {WS_QKV+16*64*2048}")
            srd(k, sK, 20, 21, "s3", 131072)
            k(f"s_add_u32 s3, s{sT1}, {WS_QKV+32*64*2048}")
            srd(k, sV, 20, 21, "s3", 131072)
            k(f"v_mov_b32 v{vT0}, 0xff800000")
            k(f"s_mov_b32 s{sOff}, 0")
            with k.loop(3) as l1:
                ldK(0, f"s{sOff}")
                QK(3, 0)
                QK(3, 1)
                for r in range(0, 16, 2):
                    k(f"v_max3_f32 v{vT0}, v{S[3]+r}, v{S[3]+r+1}, v{vT0}")
                k(f"s_add_u32 s{sOff}, s{sOff}, 2048")
                k(f"s_cmp_lt_u32 s{sOff}, 131072")
                l1.back("s_cbranch_scc1")
            k(f"""
            v_mov_b32 v{vT1}, v{vT0}
            v_permlane32_swap_b32 v{vT0}, v{vT1}
            v_max_f32 v{vT0}, v{vT0}, v{vT1}
            """)
            for r in range(16):
                k(f"v_mul_f32 v{S[0]+r}, -1.0, v{vT0}")
                k(f"v_mov_b32 v{A+r}, 0")
            k(f"s_mov_b32 s{sOff}, 0")
            with k.loop(3) as l2:
                ldK(0, f"s{sOff}")
                ldV(0, f"s{sOff}")
                k(f"{MFMA} {v(S[3],16)}, {v(KB[0],4)}, {v(Q[3],4)}, {v(S[0],16)}")
                QK(3, 1)
                EX(3, 0, 16)
                PV(3, 0)
                PV(3, 1)
                k(f"s_add_u32 s{sOff}, s{sOff}, 2048")
                k(f"s_cmp_lt_u32 s{sOff}, 131072")
                k("s_nop 4")
                l2.back("s_cbranch_scc1")
            get_l()
        k(f"v_rcp_f32 v{vT1}, v{vT1}")
        k(f"""
        s_lshl_b32 s{sT0}, s{sQB}, 2
        s_add_u32 s{sT0}, s{sT0}, s{sWv}
        s_lshl_b32 s3, s{sT0}, 4
        s_add_u32 s3, s3, s{sH}
        s_lshl_b32 s3, s3, 11
        s_add_u32 s3, s3, {WS_OF}
        s_mov_b32 s{sM}, 0
        s_mov_b32 s{sM+1}, -1
        """)
        assert vT1 % 2 == 0
        k(f"v_mov_b32 v{vT2}, v{vT1}")
        for r in range(0, 16, 2):
            k(f"v_pk_mul_f32 {v(A+r,2)}, {v(A+r,2)}, {v(vT1,2)}")
        for r in range(8):
            k(f"v_cvt_pk_bf16_f32 v{A+r}, v{A+2*r}, v{A+2*r+1}")
        for r in (6, 7):
            k(f"v_cndmask_b32 v{A+r}, v{A+r}, 0, {s(sM,2)}")
        for i in range(2):
            k(f"buffer_store_dwordx4 {v(A+4*i,4)}, v{vL16}, {s(sWS,4)}, s3 offen offset:{1024*i}{SC}", wr=["o"])
        stamp(10)
        k(f"""
        s_lshl_b32 s3, s{sT0}, 4
        s_add_u32 s3, s3, s{sH}
        s_lshl_b32 s3, s3, 7
        s_add_u32 s{sC}, s3, {WS_FO}
        s_cmp_ge_u32 s2, 224
        """)
        with k.if_("s_cbranch_scc0"):
            k.need("o")
            flag(f"s{sC}")
            endpgm(2)
        WO = 16
        OFr = 144
        fac = [208, 240]
        wA, wB, wC, wD, vG, vSt = 10, 11, 232, 233, 6, 0
        sOUT, sHH, sTo, sCT = sW, sRB, sG, sFS
        k(f"""
        s_lshr_b32 s{sHH}, s{sWv}, 1
        s_bfe_u32 s{sTo}, s2, 0x20001
        s_lshl_b32 s{sTo}, s{sTo}, 2
        s_bfe_u32 s3, s2, 0x20003
        s_add_u32 s{sTo}, s{sTo}, s3
        s_lshl_b32 s{sTo}, s{sTo}, 1
        s_and_b32 s3, s2, 1
        s_add_u32 s{sTo}, s{sTo}, s3
        s_lshl_b32 s{sTo}, s{sTo}, 1
        s_and_b32 s3, s{sWv}, 1
        s_add_u32 s{sTo}, s{sTo}, s3
        s_lshr_b32 s{sCT}, s2, 5
        """)
        tr_parts(vT0, vT1)
        k(f"""
        v_lshlrev_b32 v{wB}, 7, v{vT0}
        v_lshl_add_u32 v{wB}, v{vT1}, 3, v{wB}
        v_lshrrev_b32 v{vT0}, 1, v{vT0}
        v_xor_b32 v{vT0}, s{sHH}, v{vT0}
        v_lshl_add_u32 v{wB}, v{vT0}, 6, v{wB}
        s_mul_i32 s3, s{sHH}, {224*128}
        v_add_u32 v{wB}, s3, v{wB}
        v_lshrrev_b32 v{vT2}, 5, v{vL}
        v_lshl_add_u32 v{wA}, v{vT2}, 9, v{wB}
        v_xor_b32 v{wC}, 64, v{wA}
        v_xor_b32 v{wD}, 64, v{wB}
        """)
        for n in range(16):
            hh, st = n >> 1, n & 1
            for t in range(2):
                for e in range(2):
                    a = [[wA, wB], [wC, wD]][t][st == 1 and e == 1]
                    k(f"ds_read_b64_tr_b16 {v(WO+8*n+4*t+2*e,2)}, v{a} offset:{(28*hh+16*st+8*e)*128}")
        k(f"""
        s_lshl_b32 s3, s{sTo}, 1
        s_add_u32 s3, s3, s{sHH}
        s_lshl_b32 s3, s3, 10
        s_add_u32 s3, s3, {WS_FO}
        v_lshl_add_u32 v{vIdx}, v{vL}, 7, s3
        s_lshr_b32 s3, s{sTo}, 2
        s_lshl_b32 s3, s3, 7
        s_add_u32 s3, s3, {WS_FA + 48*128}
        v_writelane_b32 v{vIdx}, s3, 8
        s_lshl_b32 s3, s{sTo}, 7
        s_add_u32 s{sT1}, s3, {WS_G}
        v_and_b32 v{vT0}, 31, v{vL}
        v_lshlrev_b32 v{vG}, 2, v{vT0}
        v_mul_u32_u24 v{vSt}, 896, v{vT0}
        v_lshl_add_u32 v{vSt}, v{vT2}, 4, v{vSt}
        s_lshl_b32 s3, s{sCT}, 1
        s_add_u32 s3, s3, s{sHH}
        s_lshl_b32 s3, s3, 6
        v_add_u32 v{vSt}, s3, v{vSt}
        s_lshl_b32 s{sT0}, s{sTo}, 1
        s_add_u32 s{sT0}, s{sT0}, s{sHH}
        s_lshl_b32 s{sT0}, s{sT0}, 14
        s_add_u32 s{sT0}, s{sT0}, {WS_OF}
        s_mul_i32 s3, s{sTo}, {32*896}
        """)
        srd(k, sOUT, 22, 23, "s3", 32 * 896)
        k.need("o")
        flag(f"s{sC}")
        poll(vIdx, vFd, "0x1ff")
        stamp(11)
        for n in range(16):
            if n and n % 4 == 0:
                k(f"s_add_u32 s{sT0}, s{sT0}, 4096")
            k(f"buffer_load_dwordx4 {v(OFr+4*n,4)}, v{vL16}, {s(sWS,4)}, s{sT0} offen offset:{(n%4)*1024}{SC}")
        k(f"buffer_load_dword v{vG}, v{vG}, {s(sWS,4)}, s{sT1} offen{SC}")
        k(f"""
        s_xor_b32 s3, s{sWv}, 2
        s_mul_i32 s3, s3, 12288
        s_add_u32 s3, s3, {L_ORED}
        v_add_u32 v{vT1}, s3, v{vL16}
        v_add_u32 v{vT2}, {L_FRED - L_ORED + (1 << 32)}, v{vIn}
        """)
        for n in range(16):
            for t in (1, 0):
                k(f"{MFMA} {v(fac[t],16)}, {v(WO+8*n+4*t,4)}, {v(OFr+4*n,4)}, {'0' if n == 0 else v(fac[t],16)}")
        for i in range(4):
            k(f"ds_write_b128 v{vIn}, {v(fac[1]+4*i,4)} offset:{1024*i}", wr=["xch"])
        k.need("xch")
        k("s_barrier")
        stamp(12)
        P, B = 16, 32
        for i in range(4):
            k(f"ds_read_b128 {v(P+4*i,4)}, v{vT1} offset:{1024*i}")
            k(f"ds_read_b128 {v(B+4*i,4)}, v{vT2} offset:{1024*i}")
        a = fac[0]
        k(f"v_mov_b32 v{vT1}, v{vG}")
        k(f"v_mov_b32 v{vT2}, v{vG}")
        for q in range(2):
            for r in range(8 * q, 8 * q + 8, 2):
                k(f"v_pk_add_f32 {v(P+r,2)}, {v(P+r,2)}, {v(B+r,2)} neg_lo:[0,1] neg_hi:[0,1]")
            for r in range(8 * q, 8 * q + 8, 2):
                k(f"v_pk_add_f32 {v(a+r,2)}, {v(a+r,2)}, {v(P+r,2)}")
            for r in range(8 * q, 8 * q + 8, 2):
                k(f"v_pk_fma_f32 {v(a+r,2)}, {v(a+r,2)}, {v(vT1,2)}, {v(B+r,2)}")
            for r in range(4):
                k(f"v_cvt_pk_bf16_f32 v{P+8*q+r}, v{a+8*q+2*r}, v{a+8*q+2*r+1}")
            k(f"v_permlane32_swap_b32 v{P+8*q}, v{P+8*q+2}")
            k(f"v_permlane32_swap_b32 v{P+8*q+1}, v{P+8*q+3}")
            k(f"buffer_store_dwordx4 {v(P+8*q,4)}, v{vSt}, {s(sOUT,4)}, 0 offen offset:{32*q}{OPT.get('ost', '')}")
        endpgm()

        role.else_()
        acc = [128, 144, 160, 176]
        Wf = [[192 + 12 * t + 4 * i for i in range(3)] for t in range(2)]
        tmp = 216
        BA, BZ = 224, 228
        vD, wr0, wr1, vFa, vFd = 6, 7, 8, 9, 10
        sJ, sSt, sKH, sR2, sCT = sA, 4, 5, 6, 7
        k("s_setprio 2")
        k(f"""
        s_add_u32 s{sT1}, s{sT1}, 128
        s_sub_u32 s{sEe}, s{sEe}, 128
        s_mul_i32 s{sEe}, s{sEe}, s{sLong}
        """)
        srd(k, sWA, 12, 13, f"s{sT1}", f"s{sEe}")
        k(f"""
        s_lshl_b32 s3, s{sFS}, 6
        v_lshlrev_b32 v{BA+1}, 1, v{vL}
        v_add_u32 v{BA+1}, s3, v{BA+1}
        global_load_ushort v{BA}, v{BA+1}, s[14:15]
        global_load_ushort v{BA+2}, v{BA+1}, s[14:15] offset:128
        v_lshrrev_b32 v{wa[1]}, 1, v{vT0}
        v_lshlrev_b32 v{wa[1]}, 6, v{wa[1]}
        v_lshl_add_u32 v{wa[1]}, v{vT1}, 3, v{wa[1]}
        v_lshl_add_u32 v{wa[0]}, v{vT2}, 7, v{wa[1]}
        v_add_u32 v{wa[0]}, {L_W1A}, v{wa[0]}
        v_lshrrev_b32 v{vT2}, 5, v{vL}
        v_lshl_add_u32 v{vT2}, v{vT2}, 2, v{vT0}
        v_lshl_add_u32 v{wr0}, v{vT2}, 7, v{wa[1]}
        v_xor_b32 v{wa[1]}, 64, v{wa[0]}
        s_lshl_b32 s3, s{sJ}, 11
        v_add_u32 v{wr0}, s3, v{wr0}
        s_lshr_b32 s3, s{sJ}, 1
        s_lshl_b32 s3, s3, 6
        v_xor_b32 v{wr0}, s3, v{wr0}
        v_xor_b32 v{wr1}, 64, v{wr0}
        v_lshrrev_b32 v{vT0}, 3, v{vL}
        v_mul_u32_u24 v{vD}, 896, v{vT0}
        v_and_b32 v{vT0}, 127, v{vW}
        v_add_u32 v{vD}, v{vD}, v{vT0}
        s_mul_i32 s{sSt}, s{sTT}, 56
        s_add_u32 s{sSt}, s{sSt}, s{sFS}
        s_lshl_b32 s{sSt}, s{sSt}, 11
        s_add_u32 s{sSt}, s{sSt}, {WS_ACT}
        s_and_b32 s{sKH}, s2, 1
        s_bfe_u32 s{sR2}, s2, 0x20001
        s_lshl_b32 s{sR2}, s{sR2}, 2
        s_bfe_u32 s3, s2, 0x20003
        s_add_u32 s{sR2}, s{sR2}, s3
        s_lshr_b32 s{sCT}, s2, 5
        s_lshl_b32 s{sT0}, s{sKH}, 2
        s_add_u32 s{sT0}, s{sT0}, s{sJ}
        s_mul_i32 s{sT0}, s{sT0}, {224*896}
        s_lshl_b32 s3, s{sCT}, 7
        s_add_u32 s{sT0}, s{sT0}, s3
        s_sub_u32 s{sT1}, {224*896}, s3
        s_cmp_lt_u32 s2, 224
        s_cselect_b32 s{sT1}, s{sT1}, 0
        """)
        srd(k, sW2, 16, 17, f"s{sT0}", f"s{sT1}")
        k(f"""
        s_mul_i32 s{sT0}, s{sJ}, {16*896}
        s_add_u32 s{sT0}, s{sT0}, s3
        s_sub_u32 s{sT1}, {448*896}, s{sT0}
        s_cmp_lt_u32 s2, 224
        s_cselect_b32 s{sT1}, s{sT1}, 0
        """)
        srd(k, sWO, 8, 9, f"s{sT0}", f"s{sT1}")
        k(f"s_lshl_b32 s{sB}, s{sJ}, 11")
        for r in range(10):
            k(f"v_mov_b32 v{BZ+r}, 0")
        k(f"""
        v_mov_b32 v{vT0}, 0x3f80
        v_cmp_gt_u32 vcc, 32, v{vL}
        v_cndmask_b32 v{BZ+2}, 0, v{vT0}, vcc
        v_cndmask_b32 v{BZ+6}, v{vT0}, v{BZ+6}, vcc
        v_mov_b32 v{BA+1}, 0
        v_mov_b32 v{BA+3}, 0
        """)

        k(f"""
        s_sub_u32 s3, s{sJ}, 4
        s_mul_i32 s3, s3, {8*3584}
        v_add_u32 v{vPad}, s3, v{vW}
        """)

        def dma_w1b(js):
            out = []
            for j in js:
                out += [[E(k, f"s_add_u32 m0, s{sB}, {L_W1B+8192*j}"), E(k, f"s_mul_i32 s{sSo}, s{sC}, {64*3584}"),
                         E(k, f"buffer_load_dwordx4 v{vPad}, {s(sWA,4)}, s{sSo} offen lds", wr=["w1b"])],
                        [E(k, f"s_add_u32 s{sSo}, s{sSo}, {8*3584-1024}"),
                         E(k, f"buffer_load_dwordx4 v{vPad}, {s(sWA,4)}, s{sSo} offen offset:1024 lds", wr=["w1b"])] + nxt()]
            return out

        def dma_rot(srdn, n, gstride, tag, hook=None):
            for i in range(n):
                if hook and i == hook[0]:
                    hook[1]()
                k(f"""
                s_lshl_b32 s3, s{sD}, 13
                s_add_u32 m0, s3, s{sB}
                s_mul_i32 s{sSo}, s{sD}, {gstride}
                """)
                k(f"buffer_load_dwordx4 v{vD}, {s(srdn,4)}, s{sSo} offen lds", wr=[tag])
                k(f"s_add_u32 s{sSo}, s{sSo}, {8*896-1024}")
                k(f"buffer_load_dwordx4 v{vD}, {s(srdn,4)}, s{sSo} offen offset:1024 lds", wr=[tag])
                if i < n - 1:
                    k(f"s_add_u32 s{sD}, s{sD}, 1")
                    k(f"s_cmp_eq_u32 s{sD}, {n}")
                    k(f"s_cselect_b32 s{sD}, 0, s{sD}")

        bias = [E(k, f"{MFMA} {v(acc[t],16)}, {v(BA,4)}, {v(w,4)}, {v(acc[t],16) if t < 1 else 0}")
                for t, w in enumerate((BZ + 2, BZ + 6, BZ, BZ + 4))]
        pass1(1, acc, Wf, [0], {5: dma_w1b(range(4)), 6: dma_w1b([4, 5, 6])}, bias)
        stamp(5)

        def act_store(t):
            return [E(k, f"buffer_store_dwordx4 {v(acc[t]+4*i,4)}, v{vL16}, {s(sWS,4)}, s{sSt} offen offset:{1024*i}{SC}", wr=["act"])
                    for i in range(2)] + [E(k, f"s_add_u32 s{sSt}, s{sSt}, 2048")]

        W6 = Wf[1] + Wf[0]
        D = 3

        def rd2(m):
            t, n = divmod(m, 28)
            j, st = n >> 2, n & 3
            return [E(k, f"ds_read_b64_tr_b16 {v(W6[m%6]+2*e,2)}, v{wa[1-t%2]} offset:{8192*j+(16*st+4*e)*128}") for e in range(2)]

        def tile(t, lim):
            d = acc[(t + 1) & 1]
            groups = []
            for n in range(28):
                m = 28 * t + n
                c = v(acc[t + 1], 16) if n == 0 else v(d, 16)
                g = [E(k, f"{MFMA} {v(d,16)}, {v(W6[m%6],4)}, {v(X+4*n,4)}, {c}")]
                if m + D < lim:
                    g += rd2(m + D)
                groups.append(g)
            run(groups[:2])
            spread(k, groups[2:26], mish_ops(k, acc[t & 1], tmp) + act_store(t & 1))
            run(groups[26:])

        for m in range(D):
            run([rd2(m)])
        tile(0, 28)
        for r in wa[:2]:
            k(f"v_subrev_u32 v{r}, {L_W1A - L_W1B}, v{r}")
        k.need("w1b")
        cnt_add(0, vT0, vT1)
        cnt_wait(0, 4, vT0, vT1)
        k(f"s_cmp_eq_u32 s{sLong}, 1")
        with k.if_("s_cbranch_scc0") as lg:
            for m in range(28, 28 + D):
                run([rd2(m)])
            tile(1, 84)
            tile(2, 84)
            lg.else_()
            k(f"s_cmp_eq_u32 s{sG}, 3")
            with k.if_("s_cbranch_scc0"):
                srd(k, sX, 18, 19, 0, 896)
                k(f"""
                s_lshl_b32 s3, s{sC}, 7
                v_add_u32 v{vT0}, s3, v{vL16}
                v_subrev_u32 v{vT1}, 896, v{vT0}
                v_min_u32 v{vT0}, v{vT0}, v{vT1}
                s_lshr_b32 s3, s{sB}, 1
                s_add_u32 m0, s3, {L_GW}
                v_lshrrev_b32 v{vT1}, 5, v{vL}
                v_lshlrev_b32 v{vT1}, 4, v{vT1}
                v_add_u32 v{vT1}, m0, v{vT1}
                """)
                k(f"buffer_load_dwordx4 v{vT0}, {s(sX,4)}, 0 offen lds", wr=["gw"])
                k.need("gw")
                GF = Wf[0] + Wf[1]
                rd = lambda n: k(f"ds_read_b128 {v(GF[n%6],4)}, v{vT1} offset:{32*n}")
                for n in range(4):
                    rd(n)
                a = acc[0]
                for n in range(28):
                    k(f"{MFMA} {v(a,16)}, {v(GF[n%6],4)}, {v(X+4*n,4)}, {'0' if n == 0 else v(a,16)}")
                    if n + 4 < 28:
                        rd(n + 4)
                k(f"""
                s_lshl_b32 s3, s{sTT}, 7
                s_add_u32 s{sT0}, s3, {WS_G}
                v_and_b32 v{vT0}, 31, v{vL}
                v_lshlrev_b32 v{vT0}, 2, v{vT0}
                v_mul_f32 v{a}, {f32(-LOG2E)}, v{a}
                v_exp_f32 v{a}, v{a}
                v_add_f32 v{a}, 1.0, v{a}
                v_rcp_f32 v{a}, v{a}
                """)
                k(f"buffer_store_dword v{a}, v{vT0}, {s(sWS,4)}, s{sT0} offen{SC}", wr=["act"])
        W2 = X
        cnt_add(0, vT0, vT1)
        for f in mish_ops(k, acc[1], tmp) + act_store(1)[:2]:
            f()
        stamp(6)
        k(f"""
        s_add_u32 s10, s10, {WS_FA}
        s_and_b32 s3, s{sR2}, 3
        s_mul_i32 s{sD}, s3, 7
        s_lshr_b32 s{sD}, s{sD}, 1
        """)
        cnt_wait(0, 8, vT0, vT1)

        k("s_setprio 0")

        def pub_act():
            k.need("act")
            k("s_setprio 2")
            flag_last(3, "s10", vT0, vT1)
            k("s_setprio 0")
            stamp(7)
        dma_rot(sW2, 14, 16 * 896, "w2", (4, pub_act))
        k.need("w2")
        k("s_setprio 2")
        for st in range(14):
            if st == 7:
                for r in (wr0, wr1):
                    k(f"v_add_u32 v{r}, 57344, v{r}")
            for t in range(2):
                for e in range(2):
                    k(f"ds_read_b64_tr_b16 {v(W2+8*st+4*t+2*e,2)}, v{[wr0, wr1][t]} offset:{8192*(st%7)+8*e*128}", wr=[f"r{st//7}"])
        k(f"s_and_b32 s{sD}, s{sR2}, 3")
        k(f"s_lshl_b32 s{sD}, s{sD}, 1")
        k.need("r0")
        k("s_setprio 0")
        dma_rot(sWO, 7, 64 * 896, "wo")
        k.need("wo", "r1")
        k("s_setprio 2")
        cnt_add(0, vT0, vT1)
        k("s_cmp_ge_u32 s2, 224")
        with k.if_("s_cbranch_scc0"):
            k("s_lshl_b32 s3, s2, 2")
            k(f"s_add_u32 s3, s3, s{sJ}")
            k("s_cmp_eq_u32 s3, 1023")
            with k.if_("s_cbranch_scc0"):
                k(f"v_lshlrev_b32 v{vT0}, 9, v{vL}")
                k(f"v_add_u32 v{vT0}, {WS_FQ}, v{vT0}")
                poll(vT0, 192, -1, (0, 128, 256, 384))
                flag("0")
            endpgm(2)
        RING = 192
        sAo = [10, 11, 12, 13]
        sPx = [14, 15]
        sFp = [16, 17]
        k(f"""
        s_lshl_b32 s{sT0}, s{sKH}, 2
        s_add_u32 s{sT0}, s{sT0}, s{sJ}
        s_mul_i32 s{sT0}, s{sT0}, 7
        s_lshl_b32 s3, s{sKH}, 7
        s_add_u32 s3, s3, s{sR2}
        s_lshl_b32 s3, s3, 7
        s_add_u32 s3, s3, {WS_FA}
        v_lshl_add_u32 v{vT2}, v{vL}, 11, s3
        s_lshl_b32 s{sT1}, s{sR2}, 1
        s_add_u32 s{sT1}, s{sT1}, s{sKH}
        s_lshl_b32 s{sT1}, s{sT1}, 1
        s_and_b32 s3, s{sJ}, 1
        s_add_u32 s{sT1}, s{sT1}, s3
        s_lshl_b32 s{sCT}, s{sCT}, 1
        s_lshr_b32 s3, s{sJ}, 1
        s_add_u32 s{sCT}, s{sCT}, s3
        """)
        for q in range(4):
            k(f"""
            s_xor_b32 s3, s{sT1}, {3-q}
            s_mul_i32 s3, s3, 56
            s_add_u32 s3, s3, s{sT0}
            s_lshl_b32 s3, s3, 11
            s_add_u32 s{sAo[q]}, s3, {WS_ACT}
            """)
        for q in range(2):
            k(f"""
            s_xor_b32 s3, s{sT1}, {2-2*q}
            s_mul_i32 s{sPx[q]}, s3, 14
            s_add_u32 s{sPx[q]}, s{sPx[q]}, s{sCT}
            s_lshl_b32 s{sPx[q]}, s{sPx[q]}, 12
            s_add_u32 s{sPx[q]}, s{sPx[q]}, {WS_PX}
            s_lshl_b32 s3, s3, 4
            s_add_u32 s3, s3, s{sCT}
            s_lshl_b32 s3, s3, 7
            s_add_u32 s{sFp[q]}, s3, {WS_FP}
            """)
        vO = [11, 6, 7, 8]
        for i in range(4):
            k(f"""
            s_xor_b32 s3, s{sJ}, {i}
            s_mul_i32 s3, s3, 12288
            s_add_u32 s3, s3, {L_FRED + 4096*max(i-1, 0)}
            v_add_u32 v{vO[i]}, s3, v{vL16}
            """)
        poll(vT2, vFd, "0xff")
        stamp(8)

        def ldA(f):
            q, st = divmod(f, 14)
            if st % 4 == 0:
                k(f"s_add_u32 s{sSo}, s{sAo[q]}, {st*1024}")
            k(f"buffer_load_dwordx4 {v(RING+4*(f%16),4)}, v{vL16}, {s(sWS,4)}, s{sSo} offen offset:{(st%4)*1024}{SC}")

        def send(i):
            return [E(k, f"ds_write_b128 v{vO[i]}, {v(acc[i]+4*c,4)} offset:{1024*c}", wr=["fw"]) for c in range(4)]

        k("s_setprio 0")
        for f in range(16):
            ldA(f)
        for ph in range(2):
            for f in range(28 * ph, 28 * ph + 28):
                q, st = divmod(f, 14)
                tl = 1 - (q & 1)
                for t in range(2):
                    a = acc[tl + 2 * t]
                    k(f"{MFMA} {v(a,16)}, {v(W2+8*st+4*t,4)}, {v(RING+4*(f%16),4)}, {'0' if st == 0 else v(a,16)}")
                if f + 16 < 56:
                    ldA(f + 16)
                if tl == 0 and st == 1:
                    cnt_wait(0, 12 + 8 * ph, vT0, vT1)
                    run([send(1), send(3)])
            stamp(9 + 2 * ph)
            k("s_setprio 2")
            run([send(2)])
            k.need("fw")
            cnt_add(0, vT0, vT1)
            if ph == 1:
                k(f"v_mov_b32 v{vT2}, s{sFp[1]}")
                poll(vT2, vFd, 1)
                for c in range(4):
                    k(f"buffer_load_dwordx4 {v(RING+4*c,4)}, v{vL16}, {s(sWS,4)}, s{sPx[1]} offen offset:{1024*c}{SC}")
            cnt_wait(0, 16 + 8 * ph, vT0, vT1)
            for i in range(1, 4):
                for c in range(4):
                    k(f"ds_read_b128 {v(acc[i]+4*c,4)}, v{vO[0]} offset:{4096*(i-1)+1024*c}", wr=["fr"])
            for src in acc[1:] + ([RING] if ph else []):
                for r in range(0, 16, 2):
                    k(f"v_pk_add_f32 {v(acc[0]+r,2)}, {v(acc[0]+r,2)}, {v(src+r,2)}")
            if ph == 0:
                for c in range(4):
                    k(f"buffer_store_dwordx4 {v(acc[0]+4*c,4)}, v{vL16}, {s(sWS,4)}, s{sPx[0]} offen offset:{1024*c}{SC}", wr=["px"])
                cnt_add(0, vT0, vT1)
                k.need("px")
                flag(f"s{sFp[0]}")
                k("s_setprio 0")
                stamp(10)
        for c in range(4):
            k(f"ds_write_b128 v{vO[0]}, {v(acc[0]+4*c,4)} offset:{1024*c}", wr=["b"])
        k.need("b")
        stamp(12)
        k("s_barrier")
        endpgm(1)
    return k


def main():
    for a in sys.argv[2:]:
        kk, vv = a.split("=")
        try:
            vv = int(vv)
        except ValueError:
            vv = " " + vv.replace("+", " ")
        OPT[kk] = vv
    out = sys.argv[1]
    open(out, "w").write(build([(NAME + "_kernel", gen, 256, 512, 163840)]))


if __name__ == "__main__":
    main()
```

```python
import math, struct, sys, os
sys.path.insert(0, os.path.dirname(os.path.abspath(__file__)))
from asmlib import *
from gen import f32, MFMA, SMF, LOG2E, NAME, srd, spread, E, mish_ops, build

OPT = dict()
WS_FQ, WS_FA, WS_FO, WS_FP, WS_G = 0x8000, 0x10000, 0x20000, 0x40000, 0x60000
WS_QKV, WS_ACT, WS_OF, WS_PX, WS_DBG, WS_SIZE = 0x100000, 0x700000, 0xE00000, 0x1000000, 0x1400000, 0x1500000
SLOT = 32768
SLOTS = [0, 32768, 65536]
L_W1B = 32768
L_W1A, L_FRED, L_ORED, L_CNT, L_GW = 98304, 57344, 106496, 155648, 159744
SST = 74
SC = " sc1"
SPIN = 1 << 16


def gen(code_size):
    k = Prog("f5")
    sX, sQ, sW, sWS, sWA, sW2, sWO = 24, 28, 32, 36, 40, 44, 48
    sWv, sRB, sG, sTT, sFS, sLong, sO0, sT0, sT1, sL2, sL1, sC, sSo, sTag, sCnt, sA, sM, _, sB, sD, sEe, sF = range(52, 74)
    vL, vL16, vT0, vT1, vT2 = 1, 2, 3, 4, 5
    vX0, vX1, vQ0, vQ1, vW = 240, 241, 242, 243, 244
    xa = [245, 246, 247, 248]
    wa = [249, 250, 251]
    vPad, vE, vPF = 252, 253, 254
    X = 16
    vTag = 12

    def dstamp(lvl, i):
        if OPT.get("dbg", 0) == lvl:
            stamp(i)

    def stamp(i):
        if OPT.get("stamp") == 2:
            k(f"s_memtime {s(SST + 2 * i, 2)}")
        elif OPT.get("stamp"):
            k(f"s_memrealtime {s(SST + 2 * i, 2)}")

    def endpgm(role=0):
        if OPT.get("pad"):
            k("s_waitcnt vmcnt(0)")
            stamp(13)
            ps = OPT.get("ps%d" % role, 0)
            k(f"s_add_u32 s{SST}, s{SST + 2 * ps}, {OPT['pad'] * 100}")
            if "padwg" in OPT:
                k(f"s_cmp_eq_u32 s2, {OPT['padwg']}")
                k(f"s_cselect_b32 s{SST}, s{SST}, s{SST + 2 * ps}")
            with k.loop([1, 2]) as lp:
                k(f"s_memrealtime {s(SST + 2, 2)}")
                k(f"s_sub_u32 s3, s{SST + 2}, s{SST}")
                k("s_cmp_lt_i32 s3, 0")
                lp.back("s_cbranch_scc1")
            k("s_endpgm")
            return
        if OPT.get("stamp"):
            k("s_waitcnt vmcnt(0)")
            stamp(13)
            k(f"""
            s_lshl_b32 s3, s2, 3
            s_add_u32 s3, s3, s{sWv}
            s_lshl_b32 s3, s3, 6
            s_add_u32 s3, s3, {WS_DBG}
            v_mov_b32 v1, 0
            """)
            for i in range(14):
                k(f"v_mov_b32 v2, s{SST + 2 * i}")
                k(f"buffer_store_dword v2, v1, {s(sWS, 4)}, s3 offen offset:{4 * i}")
        k("s_endpgm")

    def poll(vA, vD, mask, offs=(0,)):
        k(f"s_mov_b32 s{sCnt}, {SPIN}")
        k(f"s_mov_b64 exec, {mask}")
        with k.loop([1, 2]) as lp:
            for i, o in enumerate(offs):
                if OPT.get("pa"):
                    k(f"v_mov_b32 v{vD+i}, 0")
                    k(f"buffer_atomic_or v{vD+i}, v{vA}, {s(sWS,4)}, 0 offen offset:{o} sc0 sc1")
                else:
                    k(f"buffer_load_dword v{vD+i}, v{vA}, {s(sWS,4)}, 0 offen offset:{o}{OPT.get('pf', SC)}")
            k(f"s_sub_u32 s{sCnt}, s{sCnt}, 1")
            k(f"v_cmp_ne_u32 vcc, s{sTag}, v{vD}")
            for i in range(1, len(offs)):
                k(f"v_cmp_ne_u32 {s(sM,2)}, s{sTag}, v{vD+i}")
                k(f"s_or_b64 vcc, vcc, {s(sM,2)}")
            k(f"""
            s_cmp_lg_u64 vcc, 0
            s_cselect_b32 s3, s{sCnt}, 0
            s_cmp_lg_u32 s3, 0
            """)
            lp.back("s_cbranch_scc1")
        k("s_mov_b64 exec, -1")

    def flag(so):
        k("s_mov_b64 exec, 0xff")
        k(f"buffer_store_dwordx4 {v(vTag,4)}, v{vL16}, {s(sWS,4)}, {so} offen{OPT.get('ff', SC)}")
        k("s_mov_b64 exec, -1")

    def flag_last(which, so, va, vb):
        k(f"v_mov_b32 v{va}, {L_CNT}")
        k(f"v_mov_b32 v{vb}, 1")
        k("s_mov_b64 exec, 1")
        k(f"ds_add_rtn_u32 v{vb}, v{va}, v{vb} offset:{4*which}")
        k("s_mov_b64 exec, -1")
        k(f"v_readfirstlane_b32 s3, v{vb}")
        k("s_cmp_eq_u32 s3, 3")
        with k.if_("s_cbranch_scc0"):
            flag(so)

    def cnt_add(which, va, vb, val=1):
        k(f"v_mov_b32 v{va}, {L_CNT}")
        k(f"v_mov_b32 v{vb}, {val}")
        k("s_mov_b64 exec, 1")
        k(f"ds_add_u32 v{va}, v{vb} offset:{4*which}")
        k("s_mov_b64 exec, -1")

    def cnt_wait(which, target, va, vb, mask=None):
        k(f"v_mov_b32 v{va}, {L_CNT}")
        k(f"s_mov_b32 s{sCnt}, {SPIN * 16}")
        with k.loop([1, 2]) as lp:
            k(f"""
            ds_read_b32 v{vb}, v{va} offset:{4*which}
            s_sub_u32 s{sCnt}, s{sCnt}, 1
            v_readfirstlane_b32 s3, v{vb}
            {f"s_and_b32 s3, s3, {mask}" if mask else ""}
            s_cmp_lt_u32 s3, {target}
            s_cselect_b32 s3, s{sCnt}, 0
            s_cmp_lg_u32 s3, 0
            """)
            lp.back("s_cbranch_scc1")

    def tr_parts(r, p):
        k(f"""
        v_bfe_u32 v{p}, v{vL}, 4, 1
        v_and_b32 v{r}, 3, v{vL}
        v_lshl_add_u32 v{p}, v{p}, 2, v{r}
        v_bfe_u32 v{r}, v{vL}, 2, 2
        """)

    k("s_load_dwordx16 s[4:19], s[0:1], 0")
    k("s_load_dwordx2 s[20:21], s[0:1], 80")
    k("s_load_dwordx2 s[22:23], s[0:1], 64")
    k("s_cmp_ge_u32 s2, 256")
    with k.if_("s_cbranch_scc0"):
        k("s_endpgm")
    stamp(0)
    k(f"""
    v_lshrrev_b32 v{vT0}, 6, v0
    v_and_b32 v{vL}, 63, v0
    s_getpc_b64 {s(sM, 2)}
    v_readfirstlane_b32 s{sWv}, v{vT0}
    """)
    nl = code_size // 128 + 1
    per = (nl + 31) // 32
    assert per <= 64
    k(f"s_cmp_eq_u32 s{sWv}, 7")
    with k.if_("s_cbranch_scc0"):
        k(f"""
        s_lshr_b32 s3, s2, 3
        s_mul_i32 s3, s3, {per}
        v_min_u32 v{vPF}, {per - 1}, v{vL}
        v_add_u32 v{vPF}, s3, v{vPF}
        v_lshlrev_b32 v{vPF}, 7, v{vPF}
        v_min_u32 v{vPF}, {max(code_size - 64, 0) & ~3}, v{vPF}
        global_load_dword v{vPF}, v{vPF}, {s(sM, 2)}
        """)
    k(f"""
    s_and_b32 s3, s2, 4
    s_lshl_b32 s3, s3, 1
    s_bfe_u32 s{sRB}, s2, 0x30003
    s_add_u32 s{sRB}, s{sRB}, s3
    s_and_b32 s3, s2, 3
    s_lshl_b32 s3, s3, 2
    s_lshr_b32 s{sG}, s2, 6
    s_add_u32 s{sG}, s{sG}, s3
    s_add_u32 s{sC}, s{sRB}, s{sG}
    s_mul_i32 s3, s{sC}, 37
    s_lshr_b32 s3, s3, 8
    s_mul_i32 s3, s3, 7
    s_sub_u32 s{sC}, s{sC}, s3
    s_and_b32 s{sA}, s{sWv}, 3
    s_lshl_b32 s{sTT}, s{sRB}, 2
    s_add_u32 s{sTT}, s{sTT}, s{sA}
    s_lshl_b32 s{sL2}, s{sWv}, 11
    s_mul_i32 s{sT0}, s{sG}, 168
    s_bitcmp1_b32 0x1248, s{sG}
    s_cselect_b32 s{sLong}, 0, 1
    s_cselect_b32 s3, 15, 127
    s_and_b32 s{sO0}, s{sT0}, s3
    s_sub_u32 s{sT0}, s{sT0}, s{sO0}
    v_lshrrev_b32 v{vT0}, 3, v{vL}
    s_lshl_b32 s3, s{sWv}, 4
    v_add_u32 v{vT1}, s3, v{vT0}
    v_mul_u32_u24 v{vX0}, 896, v{vT1}
    v_lshrrev_b32 v{vT1}, 4, v{vL}
    v_and_b32 v{vT2}, 7, v{vL}
    v_xor_b32 v{vX1}, v{vT2}, v{vT1}
    v_lshl_add_u32 v{vQ0}, v{vX1}, 4, v{vX0}
    v_xor_b32 v{vX1}, 4, v{vX1}
    v_lshl_add_u32 v{vX1}, v{vX1}, 4, v{vX0}
    v_add_u32 v{vX1}, {8*896-1024}, v{vX1}
    v_mov_b32 v{vX0}, v{vQ0}
    s_lshl_b32 s3, s{sWv}, 3
    v_add_u32 v{vT0}, s3, v{vT1}
    v_mul_u32_u24 v{vQ0}, 2688, v{vT0}
    v_lshlrev_b32 v{vT0}, 2, v{vT1}
    v_and_b32 v{vT2}, 15, v{vL}
    v_xor_b32 v{vT0}, v{vT0}, v{vT2}
    v_lshl_add_u32 v{vQ0}, v{vT0}, 4, v{vQ0}
    v_add_u32 v{vQ1}, {4*2688-1024}, v{vQ0}
    v_mov_b32 v{vE}, 0
    s_mul_i32 s{sB}, s{sRB}, {128*896}
    s_sub_u32 s{sD}, {448*2688}, s{sT0}
    """)
    srd(k, sX, 4, 5, f"s{sB}", 128 * 896)
    srd(k, sQ, 6, 7, f"s{sT0}", f"s{sD}")

    def nxt():
        return [E(k, f"s_add_u32 s{sC}, s{sC}, 1"), E(k, f"s_cmp_eq_u32 s{sC}, 7"), E(k, f"s_cselect_b32 s{sC}, 0, s{sC}")]

    def dma_chunk(c, halves=(0,)):
        so = SLOTS[c % 3]
        t = dict(wr=[f"ch{c}"])
        out = []
        for hf in halves:
            out += [
                [E(k, f"s_add_u32 m0, s{sL2}, {so+8192*hf}"),
                 E(k, f"s_lshl_b32 s{sSo}, s{sC}, 7" if hf == 0 else f"s_add_u32 s{sSo}, s{sSo}, {64*896}"),
                 E(k, f"buffer_load_dwordx4 v{vX0}, {s(sX,4)}, s{sSo} offen lds", **t)],
                [E(k, f"buffer_load_dwordx4 v{vX1}, {s(sX,4)}, s{sSo} offen offset:1024 lds", **t)]]
        for hf in halves:
            out += [
                [E(k, f"s_add_u32 m0, s{sL2}, {so+16384+8192*hf}"),
                 E(k, f"s_mul_i32 s{sSo}, s{sC}, {64*2688}" if hf == 0 else f"s_add_u32 s{sSo}, s{sSo}, {32*2688}"),
                 E(k, f"buffer_load_dwordx4 v{vQ0}, {s(sQ,4)}, s{sSo} offen lds", **t)],
                [E(k, f"buffer_load_dwordx4 v{vQ1}, {s(sQ,4)}, s{sSo} offen offset:1024 lds", **t)]]
        out[-1] += nxt()
        return out

    def run(groups):
        for g in groups:
            for f in g:
                f()

    stamp(1)
    run(dma_chunk(0))
    k(f"global_load_dword v{vE}, v{vE}, s[20:21]{SC}")
    if OPT.get("t1", 1):
        k(f"s_cmp_eq_u32 s{sWv}, 5")
        with k.if_("s_cbranch_scc0"):
            k(f"""
            s_bfe_u32 s{sT0}, s2, 0x10002
            s_lshl_b32 s{sT0}, s{sT0}, 5
            s_lshr_b32 s3, s2, 3
            s_add_u32 s{sT0}, s{sT0}, s3
            s_mul_i32 s{sT0}, s{sT0}, {7*3584}
            s_and_b32 s3, s2, 3
            s_mul_i32 s3, s3, 896
            s_add_u32 s{sT0}, s{sT0}, s3
            v_min_u32 v{vT0}, 48, v{vL}
            v_mul_u32_u24 v{vT1}, 37, v{vT0}
            v_lshrrev_b32 v{vT1}, 8, v{vT1}
            v_mul_u32_u24 v{vT1}, {3584-896}, v{vT1}
            v_lshl_add_u32 v{vT0}, v{vT0}, 7, v{vT1}
            v_add_u32 v{vT0}, s{sT0}, v{vT0}
            global_load_dword v{vPF}, v{vT0}, s[12:13]
            """)
    k("s_barrier")
    run(dma_chunk(1))
    srd(k, sWS, 20, 21, 0, WS_SIZE)
    k(f"""
    v_lshlrev_b32 v{vL16}, 4, v{vL}
    v_mov_b32 v{vT0}, {L_CNT}
    v_mov_b32 v{vT1}, 0
    v_mov_b32 v{vT2}, 0
    s_lshl_b32 s{sF}, s{sG}, 4
    s_add_u32 s{sF}, s{sF}, s{sRB}
    s_lshl_b32 s10, s{sF}, 7
    """)
    k(f"ds_write_b64 v{vT0}, {v(vT1,2)}", wr=["ch0"])
    k(f"ds_write_b64 v{vT0}, {v(vT1,2)} offset:8", wr=["ch0"])
    k(f"ds_write_b64 v{vT0}, {v(vT1,2)} offset:16", wr=["ch0"])
    k(f"""
    v_and_b32 v{vT0}, 31, v{vL}
    s_lshl_b32 s3, s{sA}, 5
    v_add_u32 v{vT1}, s3, v{vT0}
    v_lshlrev_b32 v{vT1}, 7, v{vT1}
    v_bfe_u32 v{vT0}, v{vL}, 1, 3
    v_lshrrev_b32 v{vT2}, 5, v{vL}
    v_xor_b32 v{vT0}, v{vT0}, v{vT2}
    v_lshl_add_u32 v{xa[0]}, v{vT0}, 4, v{vT1}
    v_xor_b32 v{xa[1]}, 32, v{xa[0]}
    v_xor_b32 v{xa[2]}, 64, v{xa[0]}
    v_xor_b32 v{xa[3]}, 96, v{xa[0]}
    """)
    k(f"""
    s_bfm_b32 s3, s{sG}, 0
    s_and_b32 s3, s3, 0x1248
    s_bcnt1_i32_b32 s3, s3
    s_lshl_b32 s{sFS}, s{sG}, 1
    s_sub_u32 s{sFS}, s{sFS}, s3
    s_lshl_b32 s{sFS}, s{sFS}, 1
    s_lshl_b32 s{sL2}, s{sA}, 11
    v_bfe_u32 v{vT1}, v{vL}, 4, 1
    v_lshlrev_b32 v{vT1}, 2, v{vT1}
    v_and_b32 v{vT0}, 7, v{vL}
    v_xor_b32 v{vT1}, v{vT1}, v{vT0}
    v_lshrrev_b32 v{vT0}, 3, v{vL}
    s_lshl_b32 s3, s{sA}, 4
    v_add_u32 v{vT0}, s3, v{vT0}
    v_mul_u32_u24 v{vW}, 3584, v{vT0}
    v_lshl_add_u32 v{vW}, v{vT1}, 4, v{vW}
    """)
    tr_parts(vT0, vT1)
    k(f"v_lshl_add_u32 v{vT2}, v{vT2}, 3, v{vT0}")

    def dma_w1(srdn, base, js, tag):
        out = []
        for j in js:
            out += [[E(k, f"s_add_u32 m0, s{sL2}, {base+8192*j}"), E(k, f"s_mul_i32 s{sSo}, s{sC}, {64*3584}"),
                     E(k, f"buffer_load_dwordx4 v{vW}, {s(srdn,4)}, s{sSo} offen lds", wr=[tag])],
                    [E(k, f"s_add_u32 s{sSo}, s{sSo}, {8*3584-1024}"),
                     E(k, f"buffer_load_dwordx4 v{vW}, {s(srdn,4)}, s{sSo} offen offset:1024 lds", wr=[tag])] + nxt()]
        return out

    def make_tag():
        k(f"v_readfirstlane_b32 s{sTag}, v{vE}")
        k(f"s_mul_i32 s{sTag}, s{sTag}, 0x9E3779B1")
        k(f"s_add_u32 s{sTag}, s{sTag}, 0x7F4A7C15")
        for i in range(4):
            k(f"v_mov_b32 v{vTag+i}, s{sTag}")

    def rebase(st8, c, regs):
        out = []
        if SLOTS[c % 3] - st8["base"] not in (0, SLOT):
            nb = SLOT if SLOTS[c % 3] == 2 * SLOT else 0
            d = "v_add_u32" if nb > st8["base"] else "v_subrev_u32"
            out = [E(k, f"{d} v{r}, {SLOT}, v{r}") for r in regs]
            st8["base"] = nb
        return out

    LV = lambda n: 0x400 + 4 * n

    k(f"s_cmp_lt_u32 s{sWv}, 4")
    with k.if_("s_cbranch_scc0") as role:
        acc = [112, 128, 144]
        Xr = [16 + 4 * i for i in range(4)]
        Wf = [[32 + 16 * t + 4 * i for i in range(4)] for t in range(3)]
        sSc, sSt, sR, sOff, sQo = [4, 6, 14], 11, [12, 13, 18], 19, [sRB, sTT, sFS, sO0]
        sH, sQB, sIt, sOFs, sFO, sOFl, sGl, sHH = range(44, 52)
        sTo, sCT = sB, sD
        vTc, vTd = 0, 255
        sK, sV, sOUT = sX, sQ, sW
        vLp, vIdx, vIn, vFd, vCn, vCv = 6, 7, 8, 9, 10, 11
        vOut, vPq = [240, 241, 242], 243
        wA, wB, wC, wD, vPo, vG, vSt, vPi, vBi = range(245, 254)
        Q = [16 + 8 * j for j in range(4)]
        KB = [48 + 8 * j for j in range(4)]
        VB = [80 + 8 * j for j in range(4)]
        S = [112 + 16 * j for j in range(4)]
        O = [176 + 16 * j for j in range(4)]
        k("s_setprio 3")
        k(f"""
        s_lshl_b32 s{sT1}, s{sFS}, 6
        s_add_u32 s{sT1}, s{sT1}, 128
        s_sub_u32 s{sEe}, {448*3584}, s{sT1}
        s_add_u32 s{sC}, s{sC}, 5
        s_cmp_ge_u32 s{sC}, 7
        s_cselect_b32 s3, 7, 0
        s_sub_u32 s{sC}, s{sC}, s3
        """)
        srd(k, sWA, 12, 13, f"s{sT1}", f"s{sEe}")
        k(f"""
        s_bfe_u32 s{sT0}, s2, 0x30003
        s_lshl_b32 s{sT0}, s{sT0}, 2
        s_add_u32 s{sT0}, s{sT0}, s{sWv}
        s_and_b32 s3, s2, 7
        s_lshl_b32 s3, s3, 5
        s_add_u32 s{sT1}, s{sT0}, s3
        s_mul_i32 s{sT1}, s{sT1}, 13
        s_bfe_u32 s3, s2, 0x20001
        s_lshl_b32 s3, s3, 5
        s_add_u32 s{sT0}, s{sT0}, s3
        s_and_b32 s3, s2, 1
        s_lshl_b32 s3, s3, 7
        s_add_u32 s{sT0}, s{sT0}, s3
        s_mul_i32 s{sT0}, s{sT0}, 49
        v_min_u32 v{vTc}, 48, v{vL}
        v_add_u32 v{vTc}, s{sT0}, v{vTc}
        v_lshlrev_b32 v{vTc}, 7, v{vTc}
        v_min_u32 v{vTd}, 12, v{vL}
        v_add_u32 v{vTd}, s{sT1}, v{vTd}
        v_min_u32 v{vTd}, {448*7-1}, v{vTd}
        v_lshlrev_b32 v{vTd}, 7, v{vTd}
        """)
        k(f"""
        v_min_u32 v{wa[0]}, 6, v{vT1}
        v_lshlrev_b32 v{wa[0]}, 3, v{wa[0]}
        v_add_u32 v{wa[0]}, s{sO0}, v{wa[0]}
        v_add_u32 v{wa[1]}, 56, v{wa[0]}
        v_add_u32 v{wa[2]}, 112, v{wa[0]}
        v_lshlrev_b32 v{vT0}, 6, v{vT0}
        v_lshlrev_b32 v{vT2}, 8, v{vT2}
        v_add_u32 v{vT2}, 16384, v{vT2}
        v_xor_b32 v{wa[0]}, v{wa[0]}, v{vT0}
        v_xor_b32 v{wa[1]}, v{wa[1]}, v{vT0}
        v_xor_b32 v{wa[2]}, v{wa[2]}, v{vT0}
        v_add_u32 v{wa[0]}, v{wa[0]}, v{vT2}
        v_add_u32 v{wa[1]}, v{wa[1]}, v{vT2}
        v_add_u32 v{wa[2]}, v{wa[2]}, v{vT2}
        v_and_b32 v{vT0}, 31, v{vL}
        v_mov_b32 v{vT1}, 0x3f803f80
        v_cmp_eq_u32 vcc, 28, v{vT0}
        v_cndmask_b32 v{vPad}, 0, v{vT1}, vcc
        s_mul_i32 s{sT0}, s{sG}, 3
        """)
        for t in range(3):
            k(f"s_cmp_lt_u32 s{sT0}, {16 - t}")
            k(f"s_cselect_b32 s{sSc[t]}, {f32(28 ** -0.5 * LOG2E)}, 1.0")
            k(f"s_mov_b32 s{sSc[t]+1}, s{sSc[t]}")
        k(f"""
        s_lshl_b32 s{sT0}, s{sT0}, 6
        s_add_u32 s{sT0}, s{sT0}, s{sTT}
        s_lshl_b32 s{sSt}, s{sT0}, 11
        s_add_u32 s{sSt}, s{sSt}, {WS_QKV}
        s_add_u32 s10, s10, {WS_FQ}
        s_and_b32 s{sH}, s2, 7
        s_lshl_b32 s{sH}, s{sH}, 1
        s_bfe_u32 s3, s2, 0x10003
        s_add_u32 s{sH}, s{sH}, s3
        s_lshr_b32 s{sQB}, s2, 4
        v_and_b32 v{vT0}, 0x33, v{vL}
        v_bfe_u32 v{vT1}, v{vL}, 2, 1
        v_bfe_u32 v{vT2}, v{vL}, 3, 1
        v_lshl_or_b32 v{vT0}, v{vT1}, 3, v{vT0}
        v_lshl_or_b32 v{vT0}, v{vT2}, 2, v{vT0}
        v_lshlrev_b32 v{vLp}, 4, v{vT0}
        s_lshl_b32 s{sT0}, s{sH}, 17
        s_add_u32 s{sT0}, s{sT0}, {WS_QKV}
        s_lshl_b32 s{sT1}, s{sWv}, 15
        s_add_u32 s{sT1}, s{sT1}, s{sT0}
        s_add_u32 s3, s{sT1}, {16*64*2048}
        """)
        srd(k, sK, 20, 21, "s3", 32768)
        k(f"s_add_u32 s3, s{sT1}, {32*64*2048}")
        srd(k, sV, 20, 21, "s3", 32768)
        k(f"""
        v_lshrrev_b32 v{vT0}, 4, v{vL}
        v_add_u32 v{vT0}, 1, v{vT0}
        v_cmp_gt_u32 vcc, 32, v{vL}
        v_cndmask_b32 v{vT0}, 0, v{vT0}, vcc
        v_lshl_add_u32 v{vT0}, v{vT0}, 4, s{sH}
        v_mul_u32_u24 v{vT0}, 43, v{vT0}
        v_lshrrev_b32 v{vT0}, 7, v{vT0}
        v_and_b32 v{vT1}, 15, v{vL}
        v_mov_b32 v{vT2}, s{sQB}
        v_cndmask_b32 v{vT1}, v{vT2}, v{vT1}, vcc
        v_lshl_add_u32 v{vT0}, v{vT0}, 4, v{vT1}
        v_lshlrev_b32 v{vT0}, 7, v{vT0}
        v_add_u32 v{vPq}, {WS_FQ}, v{vT0}
        s_lshl_b32 s3, s{sQB}, 13
        s_add_u32 s{sT0}, s{sT0}, s3
        """)
        for j in range(4):
            for r in range(16):
                k(f"v_mov_b32 v{O[j]+r}, 0")
        for r in range(8, 16):
            k(f"v_mov_b32 v{S[3]+r}, 0")
        for r in range(4, 8):
            k(f"v_mov_b32 v{VB[3]+r}, 0")
        k(f"v_mov_b32 v{vIdx}, 0xdddd")
        k(f"v_mov_b32 v{vCn}, {L_CNT}")
        k(f"s_mov_b32 s{sIt}, 3")
        k(f"s_lshl_b32 s{sR[0]}, s{sQB}, 11")
        k(f"s_and_b32 s{sR[0]}, s{sR[0]}, {OPT.get('rot', 15) << 11}")
        prev = sR[0]
        for r in sR[1:] + [sOff]:
            k(f"s_add_u32 s{r}, s{prev}, 2048")
            k(f"s_and_b32 s{r}, s{r}, 0x7fff")
            prev = r
        for j in range(4):
            k(f"""
            s_add_u32 s3, s{sWv}, {1+j}
            s_and_b32 s3, s3, 3
            s_mul_i32 s{sT1}, s3, 12288
            s_add_u32 s{sT1}, s{sT1}, {L_ORED + 4096 * (j % 3)}
            v_add_u32 v{(vOut + [vIn])[j]}, s{sT1}, v{vL16}
            s_lshl_b32 s3, s3, 11
            s_add_u32 s{sQo[j]}, s3, s{sT0}
            """)
        k(f"""
        s_lshl_b32 s{sT0}, s{sQB}, 2
        s_add_u32 s{sT0}, s{sT0}, s{sWv}
        s_lshl_b32 s3, s{sT0}, 4
        s_add_u32 s3, s3, s{sH}
        s_lshl_b32 s{sOFs}, s3, 11
        s_add_u32 s{sOFs}, s{sOFs}, {WS_OF}
        s_lshl_b32 s{sFO}, s3, 7
        s_add_u32 s{sFO}, s{sFO}, {WS_FO}
        s_lshr_b32 s{sHH}, s{sWv}, 1
        s_bfe_u32 s{sTo}, s2, 0x20001
        s_lshl_b32 s{sTo}, s{sTo}, 2
        s_bfe_u32 s3, s2, 0x20003
        s_add_u32 s{sTo}, s{sTo}, s3
        s_lshl_b32 s{sTo}, s{sTo}, 1
        s_and_b32 s3, s2, 1
        s_add_u32 s{sTo}, s{sTo}, s3
        s_lshl_b32 s{sTo}, s{sTo}, 1
        s_and_b32 s3, s{sWv}, 1
        s_add_u32 s{sTo}, s{sTo}, s3
        s_lshr_b32 s{sCT}, s2, 5
        s_lshl_b32 s3, s{sTo}, 7
        s_add_u32 s{sGl}, s3, {WS_G}
        s_lshl_b32 s{sOFl}, s{sTo}, 1
        s_add_u32 s{sOFl}, s{sOFl}, s{sHH}
        s_lshl_b32 s{sOFl}, s{sOFl}, 14
        s_add_u32 s{sOFl}, s{sOFl}, {WS_OF}
        s_mul_i32 s3, s{sTo}, {32*896}
        """)
        srd(k, sOUT, 22, 23, "s3", 32 * 896)

        def p1_role0(swap):
            st8 = dict(base=0)

            def rdX(n):
                c, st = n >> 2, n & 3
                out = rebase(st8, c, xa + wa) if st == 0 else []
                return out + [E(k, f"ds_read_b128 {v(Xr[n%4],4)}, v{xa[st]} offset:{SLOTS[c%3]-st8['base']}", wr=[f"rd{c}"])]

            def rdW(n, t):
                c, st = n >> 2, n & 3
                return [E(k, f"ds_read_b64_tr_b16 {v(Wf[t][n%4]+2*e,2)}, v{wa[t]} offset:{SLOTS[c%3]-st8['base']+(16*st+4*e)*256}",
                          wr=[f"rd{c}"]) for e in range(2)]

            def reads(n):
                return rdX(n) + rdW(n, 0) + rdW(n, 1) + rdW(n, 2)

            def mm(n, t):
                a, b = v(Wf[t][n % 4], 4), v(Xr[n % 4], 4)
                if swap[t]:
                    a, b = b, a
                return [E(k, f"{MFMA} {v(acc[t],16)}, {a}, {b}, {'0' if n == 0 else v(acc[t],16)}")]

            def epi(t):
                a = acc[t]
                out = []
                if swap[t]:
                    if t == 0 or not swap[t - 1]:
                        out += [E(k, f"s_mov_b32 s{sM}, 0xf0000000"), E(k, f"s_mov_b32 s{sM+1}, 0xf0000000")]
                    for i in range(2):
                        R = range(4 * i, 4 * i + 4)
                        out += [E(k, f"v_cvt_pk_bf16_f32 v{a+r}, v{a+2*r}, v{a+2*r+1}") for r in R]
                        out += [E(k, f"v_cndmask_b32 v{a+r}, v{a+r}, v{vPad}, {s(sM,2)}") for r in R]
                        out += [E(k, f"buffer_store_dwordx4 {v(a+4*i,4)}, v{vL16}, {s(sWS,4)}, s{sSt} offen offset:{1024*i}{SC}", wr=["qkv"])]
                else:
                    if t == 0:
                        out += [E(k, f"s_mov_b32 s{sM}, 0"), E(k, f"s_mov_b32 s{sM+1}, -1")]
                    for i in range(2):
                        R = range(4 * i, 4 * i + 4)
                        out += [E(k, f"v_pk_mul_f32 {v(a+2*r,2)}, {v(a+2*r,2)}, {s(sSc[t],2)}") for r in R]
                        out += [E(k, f"v_cvt_pk_bf16_f32 v{a+r}, v{a+2*r}, v{a+2*r+1}") for r in R]
                        out += [E(k, f"v_cndmask_b32 v{a+r}, v{a+r}, 0, {s(sM,2)}") for r in R if r >= 6]
                        out += [E(k, f"buffer_store_dwordx4 {v(a+4*i,4)}, v{vL16}, {s(sWS,4)}, s{sSt} offen offset:{1024*i}{SC}", wr=["qkv"])]
                if t < 2:
                    out += [E(k, f"s_add_u32 s{sSt}, s{sSt}, {64*2048}")]
                return out

            k.need("ch0")
            k("s_barrier")
            stamp(2)
            run([reads(0), reads(1)])
            for n in range(24):
                ms = [mm(n, t) for t in range(3)]
                c = (n + 2) // 4
                if n >= 22:
                    run(ms)
                elif (n + 2) % 4 == 0:
                    run(ms)
                    k.need(f"rd{c-1}", f"ch{c}")
                    k("s_barrier")
                    if c == 3:
                        stamp(3)
                    run([reads(n + 2)])
                    if c == 1:
                        make_tag()
                else:
                    spread(k, ms, reads(n + 2))
            k.need("rd5")
            k("s_barrier")
            stamp(4)
            for n in range(24, 28):
                run([rdX(n), rdW(n, 0)])
            for t in (1, 2):
                for n in range(24, 28):
                    run([rdW(n, t)])
            run([mm(n, 0) for n in range(24, 28)] + [mm(24, 1), mm(25, 1)])
            spread(k, [mm(26, 1), mm(27, 1), mm(24, 2), mm(25, 2)], epi(0))
            k(f"v_mov_b32 v{vCv}, 0x100")
            spread(k, [mm(26, 2), mm(27, 2)], epi(1)[:4])
            k("s_mov_b64 exec, 1")
            k(f"ds_add_u32 v{vCn}, v{vCv}", rd=["rd6"])
            k("s_mov_b64 exec, -1")
            run([epi(1)[4:], epi(2)])
            assert st8["base"] == 0

        k(f"s_cmp_lt_u32 s{sG}, 10")
        with k.if_("s_cbranch_scc0") as v0:
            p1_role0([0, 0, 0])
            v0.else_()
            k(f"s_cmp_eq_u32 s{sG}, 10")
            with k.if_("s_cbranch_scc0") as v1:
                p1_role0([0, 0, 1])
                v1.else_()
                p1_role0([1, 1, 1])
        stamp(5)
        nb1 = OPT.get("nb1", 4)
        k(f"s_cmp_eq_u32 s{sLong}, 1")
        with k.if_("s_cbranch_scc0") as lg0:
            run(dma_w1(sWA, L_W1B, range(nb1), "wb1"))
            k.need("qkv")
            flag_last(2, "s10", vT0, vT1)
            stamp(6)
            run(dma_w1(sWA, L_W1B, range(nb1, 4), "wb1"))
            run(dma_w1(sWA, L_W1B, range(max(nb1, 4), 7), "wb2"))
            k.need("wb1")
            cnt_add(1, vT0, vT1)
            k.need("wb2")
            cnt_add(1, vT0, vT1, 0x100)
            lg0.else_()
            if OPT.get("t2", 1) == 2:
                k(f"global_load_dword v{vTc}, v{vTc}, s[16:17]")
                k(f"global_load_dword v{vTd}, v{vTd}, s[8:9]")
            k.need("qkv")
            flag_last(2, "s10", vT0, vT1)
            stamp(6)
            if OPT.get("t2", 1) == 1:
                k(f"global_load_dword v{vTc}, v{vTc}, s[16:17]")
                k(f"global_load_dword v{vTd}, v{vTd}, s[8:9]")
        tr_parts(vT0, vT1)
        k(f"""
        v_lshlrev_b32 v{wB}, 7, v{vT0}
        v_lshl_add_u32 v{wB}, v{vT1}, 3, v{wB}
        v_lshrrev_b32 v{vT0}, 1, v{vT0}
        v_xor_b32 v{vT0}, s{sHH}, v{vT0}
        v_lshl_add_u32 v{wB}, v{vT0}, 6, v{wB}
        s_mul_i32 s3, s{sHH}, {224*128}
        v_add_u32 v{wB}, s3, v{wB}
        v_lshrrev_b32 v{vT2}, 5, v{vL}
        v_lshl_add_u32 v{wA}, v{vT2}, 9, v{wB}
        v_xor_b32 v{wC}, 64, v{wA}
        v_xor_b32 v{wD}, 64, v{wB}
        s_lshl_b32 s3, s{sTo}, 1
        s_add_u32 s3, s3, s{sHH}
        s_lshl_b32 s3, s3, 10
        s_add_u32 s3, s3, {WS_FO}
        v_lshl_add_u32 v{vPo}, v{vL}, 7, s3
        s_lshr_b32 s3, s{sTo}, 2
        s_lshl_b32 s3, s3, 7
        s_add_u32 s3, s3, {WS_FA + 48*128}
        v_writelane_b32 v{vPo}, s3, 8
        v_and_b32 v{vT0}, 31, v{vL}
        v_lshlrev_b32 v{vG}, 2, v{vT0}
        v_mul_u32_u24 v{vSt}, 896, v{vT0}
        v_lshl_add_u32 v{vSt}, v{vT2}, 4, v{vSt}
        s_lshl_b32 s3, s{sCT}, 1
        s_add_u32 s3, s3, s{sHH}
        s_lshl_b32 s3, s3, 6
        v_add_u32 v{vSt}, s3, v{vSt}
        s_xor_b32 s3, s{sWv}, 2
        s_mul_i32 s3, s3, 12288
        s_add_u32 s3, s3, {L_ORED}
        v_add_u32 v{vPi}, s3, v{vL16}
        v_add_u32 v{vBi}, {L_FRED - L_ORED + (1 << 32)}, v{vIn}
        """)
        if OPT.get("xb"):
            k(f"s_add_u32 s{sEe}, s{SST}, {OPT['xb']}")
            with k.loop([1, 2]) as lp:
                k(f"s_memrealtime {s(sM, 2)}")
                k(f"s_sub_u32 s3, s{sM}, s{sEe}")
                k("s_cmp_lt_i32 s3, 0")
                lp.back("s_cbranch_scc1")
        k(f"s_cmp_eq_u32 s{sWv}, 0")
        with k.if_("s_cbranch_scc0") as pl:
            poll(vPq, vFd, -1)
            cnt_add(4, vCn, vCv, 0x100)
            pl.else_()
            cnt_wait(4, 0x100, vCn, vCv)
        stamp(7)

        def ldK(buf, so):
            for i in range(2):
                k(f"buffer_load_dwordx4 {v(KB[buf]+4*i,4)}, v{vLp}, {s(sK,4)}, {so} offen offset:{1024*i}{SC}")

        def ldV(buf, so):
            for i in range(2):
                k(f"buffer_load_dwordx4 {v(VB[buf]+4*i,4)}, v{vL16}, {s(sV,4)}, {so} offen offset:{1024*i}{SC}")

        def ldQ(j):
            for i in range(2):
                k(f"buffer_load_dwordx4 {v(Q[j]+4*i,4)}, v{vL16}, {s(sWS,4)}, s{sQo[j]} offen offset:{1024*i}{SC}")

        ldK(0, f"s{sR[0]}")
        ldQ(0)
        ldQ(1)
        ldQ(2)
        ldV(0, f"s{sR[0]}")
        ldQ(3)
        ldK(1, f"s{sR[1]}")
        ldV(1, f"s{sR[1]}")
        ldK(2, f"s{sR[2]}")
        ldV(2, f"s{sR[2]}")
        ldK(3, f"s{sOff}")
        cnt_add(1, vT0, vT1, 0x10000)
        k(f"s_setprio {OPT.get('aprio', 1)}")

        def QK(u, half):
            j, t = u & 3, (u >> 2) & 3
            c = "0" if half == 0 else v(S[j], 16)
            k(f"{MFMA} {v(S[j],16)}, {v(KB[t]+4*half,4)}, {v(Q[j]+4*half,4)}, {c}")

        def PV(u, half):
            j, t = u & 3, (u >> 2) & 3
            k(f"{SMF} {v(O[j],16)}, {v(VB[t]+4*half,4)}, {v(S[j]+8*half,8)}, v{vIdx}")

        def EX(u, a, b):
            for r in range(a, b):
                k(f"v_exp_f32 v{S[u&3]+r}, v{S[u&3]+r}")

        def putO(j, i):
            k(f"ds_write_b128 v{vOut[j]}, {v(O[j]+4*i,4)} offset:{1024*i}", wr=["red"])

        def unit(u, last):
            i = u >> 2
            if not (last and u >= 14):
                QK(u + 2, 0)
            EX(u, 0, 4)
            if not (last and u >= 14):
                QK(u + 2, 1)
            else:
                PV(u - 1, 1)
            if u & 3 == 1 and not last:
                ldK(i, f"s{sOff}")
            if last and u >= 14:
                for q in range(4):
                    EX(u, 4 + q, 5 + q)
                    putO(u - 14, q)
            else:
                EX(u, 4, 8)
                PV(u - 1, 1)
            if u & 3 == 0 and (u == 0 or not last):
                ldV((i - 1) & 3, f"s{sOff}")
                if not last:
                    k(f"s_add_u32 s{sOff}, s{sOff}, 2048")
                    k(f"s_and_b32 s{sOff}, s{sOff}, 0x7fff")
            if last and u == 8:
                k(f"ds_read_b32 v{vCv}, v{vCn}")
            if last and u == 12:
                k(f"v_readfirstlane_b32 s3, v{vCv}")
                k(f"s_cmp_lt_u32 s3, {LV(5)}")
                with k.if_("s_cbranch_scc0"):
                    cnt_wait(0, LV(5), vCn, vCv)
            if last and u == 15:
                PV(u, 0)
                for q in range(4):
                    EX(u, 8 + 2 * q, 10 + 2 * q)
                    putO(2, q)
                PV(u, 1)
                return
            EX(u, 8, 12)
            PV(u, 0)
            if u == 15:
                k(f"s_sub_u32 s{sIt}, s{sIt}, 1")
                k(f"s_cmp_lg_u32 s{sIt}, 0")
            EX(u, 12, 16)

        for u in range(2):
            QK(u, 0)
            QK(u, 1)
        stamp(8)
        with k.loop(3, align=6) as lp:
            for u in range(16):
                unit(u, False)
                if OPT.get("it") and u == 3:
                    k(f"s_mov_b32 s{SST+8}, s{SST+10}")
                    k(f"s_mov_b32 s{SST+10}, s{SST+12}")
                    stamp(6)
            if OPT.get("it"):
                k(f"s_mov_b32 s{SST+2}, s{SST+4}")
                k(f"s_mov_b32 s{SST+4}, s{SST+6}")
                stamp(3)
            lp.back("s_cbranch_scc1")
        for u in range(16):
            unit(u, True)
        k("s_setprio 3")
        stamp(9)
        k.need("red")
        cnt_add(4, vCn, vCv)
        cnt_wait(4, 0x104, vCn, vCv)
        for j in range(3):
            for i in range(4):
                k(f"ds_read_b128 {v(S[j]+4*i,4)}, v{vIn} offset:{4096*j+1024*i}")
        A = O[3]
        for j in range(3):
            for r in range(0, 16, 2):
                k(f"v_pk_add_f32 {v(A+r,2)}, {v(A+r,2)}, {v(S[j]+r,2)}")

        def get_l():
            k(f"""
            v_mov_b32 v{vT0}, v{A+12}
            v_mov_b32 v{vT1}, v{A+12}
            v_permlane32_swap_b32 v{vT0}, v{vT1}
            """)
        get_l()
        k(f"v_pk_mul_f32 {v(vCn,2)}, {v(A,2)}, 0")
        for r in range(2, 16, 2):
            k(f"v_pk_fma_f32 {v(vCn,2)}, {v(A+r,2)}, 0, {v(vCn,2)}")
        k(f"""
        v_add_f32 v{vT2}, v{vCn}, v{vCv}
        v_add_f32 v{vT2}, v{vT2}, v{vT1}
        v_cmp_nlt_f32 vcc, {f32(2.0**-30)}, v{vT2}
        s_mov_b64 {s(sM,2)}, vcc
        v_cmp_ngt_f32 vcc, {f32(2.0**40)}, v{vT2}
        s_or_b64 {s(sM,2)}, {s(sM,2)}, vcc
        """)
        if OPT.get("force_fb"):
            k(f"s_mov_b64 {s(sM,2)}, -1")
        k(f"s_cmp_lg_u64 {s(sM,2)}, 0")
        with k.if_("s_cbranch_scc0"):
            k(f"s_lshl_b32 s{sT1}, s{sH}, 17")
            k(f"s_add_u32 s3, s{sT1}, {WS_QKV+16*64*2048}")
            srd(k, sK, 20, 21, "s3", 131072)
            k(f"s_add_u32 s3, s{sT1}, {WS_QKV+32*64*2048}")
            srd(k, sV, 20, 21, "s3", 131072)
            k(f"v_mov_b32 v{vT0}, 0xff800000")
            k(f"s_mov_b32 s{sOff}, 0")
            with k.loop(3) as l1:
                ldK(0, f"s{sOff}")
                QK(3, 0)
                QK(3, 1)
                for r in range(0, 16, 2):
                    k(f"v_max3_f32 v{vT0}, v{S[3]+r}, v{S[3]+r+1}, v{vT0}")
                k(f"s_add_u32 s{sOff}, s{sOff}, 2048")
                k(f"s_cmp_lt_u32 s{sOff}, 131072")
                l1.back("s_cbranch_scc1")
            k(f"""
            v_mov_b32 v{vT1}, v{vT0}
            v_permlane32_swap_b32 v{vT0}, v{vT1}
            v_max_f32 v{vT0}, v{vT0}, v{vT1}
            """)
            for r in range(16):
                k(f"v_mul_f32 v{S[0]+r}, -1.0, v{vT0}")
                k(f"v_mov_b32 v{A+r}, 0")
            k(f"s_mov_b32 s{sOff}, 0")
            with k.loop(3) as l2:
                ldK(0, f"s{sOff}")
                ldV(0, f"s{sOff}")
                k(f"{MFMA} {v(S[3],16)}, {v(KB[0],4)}, {v(Q[3],4)}, {v(S[0],16)}")
                QK(3, 1)
                EX(3, 0, 16)
                PV(3, 0)
                PV(3, 1)
                k(f"s_add_u32 s{sOff}, s{sOff}, 2048")
                k(f"s_cmp_lt_u32 s{sOff}, 131072")
                k("s_nop 4")
                l2.back("s_cbranch_scc1")
            get_l()
        k(f"v_rcp_f32 v{vT1}, v{vT1}")
        k(f"s_mov_b32 s{sM}, 0")
        k(f"s_mov_b32 s{sM+1}, -1")
        assert vT1 % 2 == 0
        k(f"v_mov_b32 v{vT2}, v{vT1}")
        for i in range(2):
            R = range(4 * i, 4 * i + 4)
            for r in R:
                k(f"v_pk_mul_f32 {v(A+2*r,2)}, {v(A+2*r,2)}, {v(vT1,2)}")
            for r in R:
                k(f"v_cvt_pk_bf16_f32 v{A+r}, v{A+2*r}, v{A+2*r+1}")
            for r in R:
                if r >= 6:
                    k(f"v_cndmask_b32 v{A+r}, v{A+r}, 0, {s(sM,2)}")
            k(f"buffer_store_dwordx4 {v(A+4*i,4)}, v{vL16}, {s(sWS,4)}, s{sOFs} offen offset:{1024*i}{SC}", wr=["o"])
        stamp(10)
        k("s_cmp_ge_u32 s2, 224")
        with k.if_("s_cbranch_scc0"):
            k.need("o")
            flag(f"s{sFO}")
            endpgm(2)
        WO = 16
        OFr = 144
        fac = [208, 224]
        cnt_wait(5, 4, vCn, vCv)
        for n in range(16):
            hh, st = n >> 1, n & 1
            for t in range(2):
                for e in range(2):
                    a = [[wA, wB], [wC, wD]][t][st == 1 and e == 1]
                    k(f"ds_read_b64_tr_b16 {v(WO+8*n+4*t+2*e,2)}, v{a} offset:{(28*hh+16*st+8*e)*128}")
        k.need("o")
        flag(f"s{sFO}")
        poll(vPo, vFd, "0x1ff")
        stamp(11)
        for n in range(16):
            if n and n % 4 == 0:
                k(f"s_add_u32 s{sOFl}, s{sOFl}, 4096")
            k(f"buffer_load_dwordx4 {v(OFr+4*n,4)}, v{vL16}, {s(sWS,4)}, s{sOFl} offen offset:{(n%4)*1024}{SC}")
        k(f"buffer_load_dword v{vG}, v{vG}, {s(sWS,4)}, s{sGl} offen{SC}")
        for n in range(16):
            for t in (1, 0):
                k(f"{MFMA} {v(fac[t],16)}, {v(WO+8*n+4*t,4)}, {v(OFr+4*n,4)}, {'0' if n == 0 else v(fac[t],16)}")
        for i in range(4):
            k(f"ds_write_b128 v{vIn}, {v(fac[1]+4*i,4)} offset:{1024*i}", wr=["xch"])
        k.need("xch")
        k("s_barrier")
        stamp(12)
        P, B = 16, 32
        for i in range(4):
            k(f"ds_read_b128 {v(P+4*i,4)}, v{vPi} offset:{1024*i}")
            k(f"ds_read_b128 {v(B+4*i,4)}, v{vBi} offset:{1024*i}")
        a = fac[0]
        k(f"v_mov_b32 v{vT1}, v{vG}")
        k(f"v_mov_b32 v{vT2}, v{vG}")
        for q in range(2):
            for r in range(8 * q, 8 * q + 8, 2):
                k(f"v_pk_add_f32 {v(P+r,2)}, {v(P+r,2)}, {v(B+r,2)} neg_lo:[0,1] neg_hi:[0,1]")
            for r in range(8 * q, 8 * q + 8, 2):
                k(f"v_pk_add_f32 {v(a+r,2)}, {v(a+r,2)}, {v(P+r,2)}")
            for r in range(8 * q, 8 * q + 8, 2):
                k(f"v_pk_fma_f32 {v(a+r,2)}, {v(a+r,2)}, {v(vT1,2)}, {v(B+r,2)}")
            for r in range(4):
                k(f"v_cvt_pk_bf16_f32 v{P+8*q+r}, v{a+8*q+2*r}, v{a+8*q+2*r+1}")
            k(f"v_permlane32_swap_b32 v{P+8*q}, v{P+8*q+2}")
            k(f"v_permlane32_swap_b32 v{P+8*q+1}, v{P+8*q+3}")
            k(f"buffer_store_dwordx4 {v(P+8*q,4)}, v{vSt}, {s(sOUT,4)}, 0 offen offset:{32*q}{OPT.get('ost', '')}")
        endpgm()

        role.else_()
        acc = [128, 144, 160, 176]
        W6 = [192 + 4 * i for i in range(6)]
        tmp = 216
        BA, BZ = 224, 228
        vD, wr0, wr1, vGW, vFd, vTc, vTd = 6, 7, 8, 9, 10, 255, 0
        sJ, sSt, sKH, sR2, sCT = sA, 4, 5, 6, 7
        k("s_setprio 2")
        k(f"""
        s_lshl_b32 s{sT1}, s{sFS}, 6
        v_lshlrev_b32 v{BA+1}, 1, v{vL}
        v_add_u32 v{BA+1}, s{sT1}, v{BA+1}
        global_load_ushort v{BA}, v{BA+1}, s[14:15]
        global_load_ushort v{BA+2}, v{BA+1}, s[14:15] offset:128
        s_sub_u32 s{sEe}, {448*3584}, s{sT1}
        """)
        srd(k, sW, 12, 13, f"s{sT1}", f"s{sEe}")
        k(f"""
        v_subrev_u32 v{vX0}, {64*896}, v{vX0}
        v_subrev_u32 v{vX1}, {64*896}, v{vX1}
        v_subrev_u32 v{vQ0}, {32*2688}, v{vQ0}
        v_subrev_u32 v{vQ1}, {32*2688}, v{vQ1}
        v_lshrrev_b32 v{wa[1]}, 1, v{vT0}
        v_lshlrev_b32 v{wa[1]}, 6, v{wa[1]}
        v_lshl_add_u32 v{wa[1]}, v{vT1}, 3, v{wa[1]}
        v_lshl_add_u32 v{wa[0]}, v{vT2}, 7, v{wa[1]}
        v_add_u32 v{wa[0]}, {L_W1A}, v{wa[0]}
        v_lshrrev_b32 v{vT2}, 5, v{vL}
        v_lshl_add_u32 v{vT2}, v{vT2}, 2, v{vT0}
        v_lshl_add_u32 v{wr0}, v{vT2}, 7, v{wa[1]}
        v_xor_b32 v{wa[1]}, 64, v{wa[0]}
        v_add_u32 v{wr0}, s{sL2}, v{wr0}
        s_lshr_b32 s3, s{sJ}, 1
        s_lshl_b32 s3, s3, 6
        v_xor_b32 v{wr0}, s3, v{wr0}
        v_xor_b32 v{wr1}, 64, v{wr0}
        v_lshrrev_b32 v{vT0}, 3, v{vL}
        v_mul_u32_u24 v{vD}, 896, v{vT0}
        v_and_b32 v{vT0}, 127, v{vW}
        v_add_u32 v{vD}, v{vD}, v{vT0}
        s_cmp_eq_u32 s{sG}, 3
        """)
        with k.if_("s_cbranch_scc0"):
            srd(k, sW2, 18, 19, 0, 896)
            k(f"""
            s_add_u32 s3, s{sC}, 5
            s_lshl_b32 s3, s3, 7
            v_add_u32 v{vT0}, s3, v{vL16}
            v_subrev_u32 v{vT1}, 896, v{vT0}
            v_min_u32 v{vT0}, v{vT0}, v{vT1}
            v_subrev_u32 v{vT1}, 896, v{vT0}
            v_min_u32 v{vT0}, v{vT0}, v{vT1}
            s_lshr_b32 s3, s{sL2}, 1
            s_add_u32 m0, s3, {L_GW}
            v_lshrrev_b32 v{vGW}, 5, v{vL}
            v_lshlrev_b32 v{vGW}, 4, v{vGW}
            v_add_u32 v{vGW}, m0, v{vGW}
            """)
            k(f"buffer_load_dwordx4 v{vT0}, {s(sW2,4)}, 0 offen lds", wr=["gw"])
        k(f"""
        s_mul_i32 s{sSt}, s{sTT}, 56
        s_add_u32 s{sSt}, s{sSt}, s{sFS}
        s_lshl_b32 s{sSt}, s{sSt}, 11
        s_add_u32 s{sSt}, s{sSt}, {WS_ACT}
        s_and_b32 s{sKH}, s2, 1
        s_bfe_u32 s{sR2}, s2, 0x20001
        s_lshl_b32 s{sR2}, s{sR2}, 2
        s_bfe_u32 s3, s2, 0x20003
        s_add_u32 s{sR2}, s{sR2}, s3
        s_lshr_b32 s{sCT}, s2, 5
        s_lshl_b32 s{sT0}, s{sKH}, 2
        s_add_u32 s{sT0}, s{sT0}, s{sJ}
        s_mul_i32 s{sT0}, s{sT0}, {224*896}
        s_lshl_b32 s3, s{sCT}, 7
        s_add_u32 s{sT0}, s{sT0}, s3
        s_sub_u32 s{sT1}, {224*896}, s3
        s_cmp_lt_u32 s2, 224
        s_cselect_b32 s{sT1}, s{sT1}, 0
        """)
        srd(k, sW2, 16, 17, f"s{sT0}", f"s{sT1}")
        k(f"""
        s_mul_i32 s{sT0}, s{sJ}, {16*896}
        s_add_u32 s{sT0}, s{sT0}, s3
        s_sub_u32 s{sT1}, {448*896}, s{sT0}
        s_cmp_lt_u32 s2, 224
        s_cselect_b32 s{sT1}, s{sT1}, 0
        """)
        srd(k, sWO, 8, 9, f"s{sT0}", f"s{sT1}")
        for r in range(10):
            k(f"v_mov_b32 v{BZ+r}, 0")
        k(f"""
        v_mov_b32 v{vT0}, 0x3f80
        v_cmp_gt_u32 vcc, 32, v{vL}
        v_cndmask_b32 v{BZ+2}, 0, v{vT0}, vcc
        v_cndmask_b32 v{BZ+6}, v{vT0}, v{BZ+6}, vcc
        v_mov_b32 v{BA+1}, 0
        v_mov_b32 v{BA+3}, 0
        """)

        t3 = OPT.get("t3", 0)

        def touch(pos):
            if t3 == pos:
                k(f"global_load_dword v{vTc}, v{vTc}, s[16:17]")
            if OPT.get("t4", t3) == pos:
                k(f"global_load_dword v{vTd}, v{vTd}, s[8:9]")
        if t3:
            k(f"""
            s_lshr_b32 s3, s2, 3
            s_lshl_b32 s3, s3, 2
            s_add_u32 s3, s3, s{sJ}
            s_mul_i32 s{sT1}, s3, 25
            s_lshl_b32 s{sT0}, s{sKH}, 7
            s_add_u32 s3, s3, s{sT0}
            s_mul_i32 s{sT0}, s3, 49
            v_min_u32 v{vTc}, 48, v{vL}
            v_add_u32 v{vTc}, s{sT0}, v{vTc}
            v_lshlrev_b32 v{vTc}, 7, v{vTc}
            v_min_u32 v{vTd}, 24, v{vL}
            v_add_u32 v{vTd}, s{sT1}, v{vTd}
            v_min_u32 v{vTd}, {448*7-1}, v{vTd}
            v_lshlrev_b32 v{vTd}, 7, v{vTd}
            """)
        W2ROW = [0, 1, 2, 3, 11, 12, 13, 14, 15, 16, 17, 18, 7, 8]

        TH = OPT.get("th", 0)

        def thr():
            return [E(k, f"s_waitcnt vmcnt({TH - 1})")] if TH else []

        def dma_rows(srdn, items, gstride, tag):
            out = []
            for st, row in items:
                out += [[E(k, f"s_add_u32 m0, s{sL2}, {8192*row}"), E(k, f"s_mov_b32 s{sSo}, {st*gstride}"), *thr(),
                         E(k, f"buffer_load_dwordx4 v{vD}, {s(srdn,4)}, s{sSo} offen lds", wr=[tag])],
                        [E(k, f"s_mov_b32 s{sSo}, {st*gstride+8*896-1024}"), *thr(),
                         E(k, f"buffer_load_dwordx4 v{vD}, {s(srdn,4)}, s{sSo} offen offset:1024 lds", wr=[tag])]]
            return out

        def dma_w2(sts, tag):
            return dma_rows(sW2, [(st, W2ROW[st]) for st in sts], 16 * 896, tag)

        st8 = dict(base=0)
        for c in range(7):
            if c == 0:
                k.need("ch0")
            else:
                k.need(f"rd{c-1}", f"ch{c}")
            k("s_barrier")
            if c in (0, 6):
                stamp(2 + c // 3)
            dm = dma_chunk(c + 2, (0, 1)) if c <= 4 else dma_w1(sW, L_W1A, range(4), "wa1") if c == 5 else dma_w1(sW, L_W1A, [4, 5, 6], "wa2")
            run(dm[:2])
            run([rebase(st8, c, xa)])
            for st in range(4):
                k(f"ds_read_b128 {v(X+16*c+4*st,4)}, v{xa[st]} offset:{SLOTS[c%3]-st8['base']}", wr=[f"rd{c}"])
            run(dm[2:])
            if c == 1:
                make_tag()
            if c == 2:
                for t, w in enumerate((BZ + 2, BZ + 6, BZ, BZ + 4)):
                    k(f"{MFMA} {v(acc[t],16)}, {v(BA,4)}, {v(w,4)}, 0")

        def act_store(t):
            out = []
            for i in range(2):
                if OPT.get("ths", 1):
                    out += thr()
                out += [E(k, f"buffer_store_dwordx4 {v(acc[t]+4*i,4)}, v{vL16}, {s(sWS,4)}, s{sSt} offen offset:{1024*i}{SC}", wr=["act"])]
            return out + [E(k, f"s_add_u32 s{sSt}, s{sSt}, 2048")]

        D = 3

        def rd2(m):
            t, n = divmod(m, 28)
            j, st = n >> 2, n & 3
            return [E(k, f"ds_read_b64_tr_b16 {v(W6[m%6]+2*e,2)}, v{wa[t%2]} offset:{8192*j+(16*st+4*e)*128}", wr=["wrd"]) for e in range(2)]

        def G(groups):
            return [lambda g=g: [f() for f in g] for g in groups]

        def merge(a, b):
            out, d = [], 0
            for i, x in enumerate(a):
                tgt = len(b) * i // len(a) + 1
                while d < min(tgt, len(b)):
                    out.append(b[d])
                    d += 1
                out.append(x)
            return out + b[d:]

        def tile(t, lim, fill, hooks={}):
            groups = []
            for n in range(28):
                m = 28 * t + n
                g = [E(k, f"{MFMA} {v(acc[t],16)}, {v(W6[m%6],4)}, {v(X+4*n,4)}, {v(acc[t],16)}")]
                if n in hooks:
                    g += [hooks[n]]
                if m + D < lim:
                    g += rd2(m + D)
                groups.append(g)
            run(groups[:2])
            spread(k, groups[2:26], fill)
            run(groups[26:])

        def mark(*tags):
            k.need(*tags)
            cnt_add(0, vT0, vT1)

        mark("wa1", "rd6")
        cnt_wait(0, LV(1), vT0, vT1)
        stamp(3)
        for m in range(D):
            run([rd2(m)])
        tile(0, 56, [],
             {OPT.get("m2", 9): lambda: mark("wa2"), 16 - D: lambda: cnt_wait(0, LV(2), vT0, vT1)})
        dstamp(1, 7)
        w2a, w2b, w2c = OPT.get("w2a", 0), OPT.get("w2b", 0), OPT.get("w2c", 0)
        assert w2a <= 5 and w2a <= w2b <= w2c <= 12
        w2s = OPT.get("w2s", w2a)
        mo = mish_ops(k, acc[0], tmp)
        tile(1, 56, mo[:len(mo) // 2] + merge(mo[len(mo) // 2:], G(dma_w2(range(w2a), "w2"))))
        for r in wa[:2]:
            k(f"v_subrev_u32 v{r}, {L_W1A - L_W1B}, v{r}")
        mark("wrd")
        dstamp(1, 8)
        W2 = X

        def rdw2(sts, tag):
            out = []
            for st in sts:
                row = W2ROW[st]
                if st == 4:
                    out += [E(k, f"v_add_u32 v{r}, {11*8192}, v{r}") for r in (wr0, wr1)]
                if st == 12:
                    out += [E(k, f"v_subrev_u32 v{r}, {4*8192}, v{r}") for r in (wr0, wr1)]
                row -= 0 if st < 4 else 11 if st < 12 else 7
                for t in range(2):
                    for e in range(2):
                        out.append(E(k, f"ds_read_b64_tr_b16 {v(W2+8*st+4*t+2*e,2)}, v{[wr0, wr1][t]} offset:{8192*row+8*e*128}",
                                     wr=[tag], rd=["w2"]))
            return out

        def finish(t, done):
            mark("wrd")
            touch(3)
            run([mish_ops(k, acc[t], tmp)])
            dstamp(1, 11)
            cnt_wait(0, LV(4), vT0, vT1)
            cnt_wait(1, 0x40000, vT0, vT1)
            dstamp(1, 12)
            dstamp(2, 7)
            k(f"s_setprio {OPT.get('sprio', 0)}")
            touch(1)
            sts = [x for i in range(t + 1) for x in act_store(i)]
            if OPT.get("ao", 1) == 0:
                run([merge(G(dma_w2(range(done, 14), "w2")), sts)])
            else:
                run([sts])
                dstamp(2, 8)
                touch(4)
                run(dma_w2(range(done, 14), "w2"))

        k(f"s_cmp_eq_u32 s{sLong}, 1")
        with k.if_("s_cbranch_scc0") as lg:
            cnt_wait(1, 4, vT0, vT1, 0xff)
            stamp(5)
            for m in range(56, 56 + D):
                run([rd2(m)])
            if w2b > 5:
                cnt_wait(0, LV(3), vT0, vT1)
            tile(2, 112, merge(mish_ops(k, acc[1], tmp), G(dma_w2(range(w2a, w2b), "w2"))),
                 {16 - D: lambda: cnt_wait(1, 0x400, vT0, vT1, 0xff00)})
            dstamp(1, 9)
            touch(2)
            if w2c > 5 >= w2b:
                cnt_wait(0, LV(3), vT0, vT1)
            tile(3, 112, merge(mish_ops(k, acc[2], tmp), G(dma_w2(range(w2b, w2c), "w2"))))
            dstamp(1, 10)
            finish(3, w2c)
            lg.else_()
            stamp(5)
            run(dma_w2(range(w2a, w2s), "w2"))
            k(f"s_cmp_eq_u32 s{sG}, 3")
            with k.if_("s_cbranch_scc0"):
                k.need("gw")
                rd = lambda n: k(f"ds_read_b128 {v(W6[n%6],4)}, v{vGW} offset:{32*n}")
                for n in range(4):
                    rd(n)
                a = acc[2]
                for n in range(28):
                    k(f"{MFMA} {v(a,16)}, {v(W6[n%6],4)}, {v(X+4*n,4)}, {'0' if n == 0 else v(a,16)}")
                    if n + 4 < 28:
                        rd(n + 4)
                k(f"""
                s_lshl_b32 s3, s{sTT}, 7
                s_add_u32 s{sT0}, s3, {WS_G}
                v_and_b32 v{vT0}, 31, v{vL}
                v_lshlrev_b32 v{vT0}, 2, v{vT0}
                v_mul_f32 v{a}, {f32(-LOG2E)}, v{a}
                v_exp_f32 v{a}, v{a}
                v_add_f32 v{a}, 1.0, v{a}
                v_rcp_f32 v{a}, v{a}
                """)
                k(f"buffer_store_dword v{a}, v{vT0}, {s(sWS,4)}, s{sT0} offen{SC}", wr=["act"])
            touch(2)
            finish(1, w2s)
        stamp(6)
        k(f"s_add_u32 s10, s10, {WS_FA}")
        k.need("act")
        k("s_setprio 2")
        flag_last(3, "s10", vT0, vT1)
        dstamp(0, 7)
        dstamp(2, 9)
        k.need("w2")
        dstamp(2, 10)
        run([rdw2(range(14), "r0")])
        mark("r0")
        dstamp(2, 11)
        k("s_cmp_ge_u32 s2, 224")
        with k.if_("s_cbranch_scc0"):
            k("s_lshl_b32 s3, s2, 2")
            k(f"s_add_u32 s3, s3, s{sJ}")
            k("s_cmp_eq_u32 s3, 1023")
            with k.if_("s_cbranch_scc0"):
                k(f"v_lshlrev_b32 v{vT0}, 9, v{vL}")
                k(f"v_add_u32 v{vT0}, {WS_FQ}, v{vT0}")
                poll(vT0, 192, -1, (0, 128, 256, 384))
                flag("0")
            endpgm(2)
        wop = OPT.get("wop", 0)
        dma_wo = dma_rows(sWO, [(i, i) for i in range(7)], 64 * 896, "wo")
        if wop == 0:
            k(f"s_setprio {OPT.get('sprio', 0)}")
            run(dma_wo)
            k("s_setprio 2")
            dstamp(2, 12)
        RING = 192
        sAo = [10, 11, 12, 13]
        sPx = [14, 15]
        sFp = [16, 17]
        k(f"""
        s_lshl_b32 s{sT0}, s{sKH}, 2
        s_add_u32 s{sT0}, s{sT0}, s{sJ}
        s_mul_i32 s{sT0}, s{sT0}, 7
        s_mul_i32 s3, s{sR2}, 224
        s_add_u32 s3, s3, s{sT0}
        s_add_u32 s3, s3, s{sCT}
        s_lshl_b32 s3, s3, 11
        s_add_u32 s3, s3, {WS_ACT}
        v_lshrrev_b32 v{vT0}, 4, v{vL}
        v_mul_u32_u24 v{vT0}, {56*2048 - 2048}, v{vT0}
        v_lshl_add_u32 v{vT0}, v{vL}, 7, v{vT0}
        v_add_u32 v{vTd}, s3, v{vT0}
        s_lshl_b32 s3, s{sKH}, 7
        s_add_u32 s3, s3, s{sR2}
        s_lshl_b32 s3, s3, 7
        s_add_u32 s3, s3, {WS_FA}
        v_lshl_add_u32 v{vT2}, v{vL}, 11, s3
        s_lshl_b32 s{sT1}, s{sR2}, 1
        s_add_u32 s{sT1}, s{sT1}, s{sKH}
        s_lshl_b32 s{sT1}, s{sT1}, 1
        s_and_b32 s3, s{sJ}, 1
        s_add_u32 s{sT1}, s{sT1}, s3
        s_lshl_b32 s{sCT}, s{sCT}, 1
        s_lshr_b32 s3, s{sJ}, 1
        s_add_u32 s{sCT}, s{sCT}, s3
        """)
        for q in range(4):
            k(f"""
            s_xor_b32 s3, s{sT1}, {3-q}
            s_mul_i32 s3, s3, 56
            s_add_u32 s3, s3, s{sT0}
            s_lshl_b32 s3, s3, 11
            s_add_u32 s{sAo[q]}, s3, {WS_ACT}
            """)
        for q in range(2):
            k(f"""
            s_xor_b32 s3, s{sT1}, {2-2*q}
            s_mul_i32 s{sPx[q]}, s3, 14
            s_add_u32 s{sPx[q]}, s{sPx[q]}, s{sCT}
            s_lshl_b32 s{sPx[q]}, s{sPx[q]}, 12
            s_add_u32 s{sPx[q]}, s{sPx[q]}, {WS_PX}
            s_lshl_b32 s3, s3, 4
            s_add_u32 s3, s3, s{sCT}
            s_lshl_b32 s3, s3, 7
            s_add_u32 s{sFp[q]}, s3, {WS_FP}
            """)
        vO = [11, 9, 7, 8]
        for i in range(4):
            k(f"""
            s_xor_b32 s3, s{sJ}, {i}
            s_mul_i32 s3, s3, 12288
            s_add_u32 s3, s3, {L_FRED + 4096*max(i-1, 0)}
            v_add_u32 v{vO[i]}, s3, v{vL16}
            """)
        poll(vT2, vFd, "0xff")
        if OPT.get("ta", 0):
            k(f"buffer_load_dword v{vTd}, v{vTd}, {s(sWS,4)}, 0 offen{SC}")
        if wop == 2:
            k("s_setprio 0")
            run(dma_wo)
        if wop == 0:
            k.need("wo")
            cnt_add(5, vT0, vT1)
        dstamp(0, 8)

        def ldA(f):
            q, st = divmod(f, 14)
            if st % 4 == 0:
                k(f"s_add_u32 s{sA}, s{sAo[q]}, {st*1024}")
            if f < OPT.get("thf", 44):
                run([thr()])
            k(f"buffer_load_dwordx4 {v(RING+4*(f%16),4)}, v{vL16}, {s(sWS,4)}, s{sA} offen offset:{(st%4)*1024}{SC}")

        def send(i):
            return [E(k, f"ds_write_b128 v{vO[i]}, {v(acc[i]+4*c,4)} offset:{1024*c}", wr=["fw"]) for c in range(4)]

        fprio = OPT.get("fprio", 0)
        k(f"s_setprio {fprio}")
        for f in range(16):
            ldA(f)
        for ph in range(2):
            for f in range(28 * ph, 28 * ph + 28):
                q, st = divmod(f, 14)
                tl = 1 - (q & 1)
                for t in range(2):
                    a = acc[tl + 2 * t]
                    k(f"{MFMA} {v(a,16)}, {v(W2+8*st+4*t,4)}, {v(RING+4*(f%16),4)}, {'0' if st == 0 else v(a,16)}")
                if f + 16 < 56:
                    ldA(f + 16)
                elif wop == 1 and f < 54:
                    run(dma_wo[f - 40:f - 39])
                if wop == 2 and f == 0:
                    k.need("wo")
                    cnt_add(5, vT0, vT1)
                if f == OPT.get("fpx", 39):
                    k.need("px")
                    flag(f"s{sFp[0]}")
                    dstamp(0, 10)
                if tl == 0 and st == 1:
                    cnt_wait(0, LV(5 + 2 * ph), vT0, vT1)
                    run([send(1), send(3)])
            dstamp(0, 9 + 2 * ph)
            k("s_setprio 2")
            run([send(2)])
            mark("fw")
            if ph == 1:
                k(f"v_mov_b32 v{vT2}, s{sFp[1]}")
                poll(vT2, vFd, 1)
                if wop == 1:
                    k.need("wo")
                    cnt_add(5, vT0, vT1)
                for c in range(4):
                    k(f"buffer_load_dwordx4 {v(RING+4*c,4)}, v{vL16}, {s(sWS,4)}, s{sPx[1]} offen offset:{1024*c}{SC}")
            cnt_wait(0, LV(6 + 2 * ph), vT0, vT1)
            for i in range(1, 4):
                for c in range(4):
                    k(f"ds_read_b128 {v(acc[i]+4*c,4)}, v{vO[0]} offset:{4096*(i-1)+1024*c}", wr=["fr"])
            for src in acc[1:] + [RING] * ph:
                for r in range(0, 16, 2):
                    k(f"v_pk_add_f32 {v(acc[0]+r,2)}, {v(acc[0]+r,2)}, {v(src+r,2)}")
            if ph == 0:
                for c in range(4):
                    k(f"buffer_store_dwordx4 {v(acc[0]+4*c,4)}, v{vL16}, {s(sWS,4)}, s{sPx[0]} offen offset:{1024*c}{SC}", wr=["px"])
                mark("fr")
                k(f"s_setprio {fprio}")
        for c in range(4):
            k(f"ds_write_b128 v{vO[0]}, {v(acc[0]+4*c,4)} offset:{1024*c}", wr=["b"])
        k.need("b")
        dstamp(0, 12)
        k("s_barrier")
        endpgm(1)
    return k


def main():
    for a in sys.argv[2:]:
        kk, vv = a.split("=")
        try:
            vv = int(vv)
        except ValueError:
            vv = " " + vv.replace("+", " ")
        OPT[kk] = vv
    out = sys.argv[1]
    open(out, "w").write(build([(NAME + "_kernel", gen, 256, 512, 163840)]))


if __name__ == "__main__":
    main()
```

```python
import math, struct, sys, os
sys.path.insert(0, os.path.dirname(os.path.abspath(__file__)))
from asmlib import *
from gen import f32, MFMA, SMF, LOG2E, NAME, srd, spread, E, mish_ops, build

OPT = dict()
WS_FQ, WS_FA, WS_FO, WS_FP, WS_G = 0x8000, 0x10000, 0x20000, 0x40000, 0x60000
WS_QKV, WS_ACT, WS_OF, WS_PX, WS_DBG, WS_SIZE = 0x100000, 0x700000, 0xE00000, 0x1000000, 0x1400000, 0x1500000
SLOT = 32768
SLOTS = [0, 32768, 65536]
L_W1B = 32768
L_W1A, L_FRED, L_ORED, L_CNT, L_GW = 98304, 57344, 106496, 155648, 159744
SST = 74
SC = " sc1"
SPIN = 1 << 16


def gen(code_size):
    k = Prog("f5")
    sX, sQ, sW, sWS, sWA, sW2, sWO = 24, 28, 32, 36, 40, 44, 48
    sWv, sRB, sG, sTT, sFS, sLong, sO0, sT0, sT1, sL2, sL1, sC, sSo, sTag, sCnt, sA, sM, _, sB, sD, sEe, sF = range(52, 74)
    vL, vL16, vT0, vT1, vT2 = 1, 2, 3, 4, 5
    vX0, vX1, vQ0, vQ1, vW = 240, 241, 242, 243, 244
    xa = [245, 246, 247, 248]
    wa = [249, 250, 251]
    vPad, vE, vPF = 252, 253, 254
    X = 16
    vTag = 12

    def dstamp(lvl, i):
        if OPT.get("dbg", 0) == lvl:
            stamp(i)

    def stamp(i):
        if OPT.get("stamp") == 2:
            k(f"s_memtime {s(SST + 2 * i, 2)}")
        elif OPT.get("stamp"):
            k(f"s_memrealtime {s(SST + 2 * i, 2)}")

    def endpgm(role=0):
        if OPT.get("pad"):
            k("s_waitcnt vmcnt(0)")
            stamp(13)
            ps = OPT.get("ps%d" % role, 0)
            k(f"s_add_u32 s{SST}, s{SST + 2 * ps}, {OPT['pad'] * 100}")
            if "padwg" in OPT:
                k(f"s_cmp_eq_u32 s2, {OPT['padwg']}")
                k(f"s_cselect_b32 s{SST}, s{SST}, s{SST + 2 * ps}")
            with k.loop([1, 2]) as lp:
                k(f"s_memrealtime {s(SST + 2, 2)}")
                k(f"s_sub_u32 s3, s{SST + 2}, s{SST}")
                k("s_cmp_lt_i32 s3, 0")
                lp.back("s_cbranch_scc1")
            k("s_endpgm")
            return
        if OPT.get("stamp"):
            k("s_waitcnt vmcnt(0)")
            stamp(13)
            k(f"""
            s_lshl_b32 s3, s2, 3
            s_add_u32 s3, s3, s{sWv}
            s_lshl_b32 s3, s3, 6
            s_add_u32 s3, s3, {WS_DBG}
            v_mov_b32 v1, 0
            """)
            for i in range(14):
                k(f"v_mov_b32 v2, s{SST + 2 * i}")
                k(f"buffer_store_dword v2, v1, {s(sWS, 4)}, s3 offen offset:{4 * i}")
        k("s_endpgm")

    def poll(vA, vD, mask, offs=(0,), prio=None, req=None):
        k(f"s_mov_b32 s{sCnt}, {SPIN}")
        if prio is not None:
            k("s_setprio 0")
        k(f"s_mov_b64 exec, {mask}")
        with k.loop([1, 2]) as lp:
            for i, o in enumerate(offs):
                if OPT.get("pa"):
                    k(f"v_mov_b32 v{vD+i}, 0")
                    k(f"buffer_atomic_or v{vD+i}, v{vA}, {s(sWS,4)}, 0 offen offset:{o} sc0 sc1")
                else:
                    k(f"buffer_load_dword v{vD+i}, v{vA}, {s(sWS,4)}, 0 offen offset:{o}{OPT.get('pf', SC)}")
            k(f"s_sub_u32 s{sCnt}, s{sCnt}, 1")
            k(f"v_cmp_ne_u32 vcc, s{sTag}, v{vD}")
            for i in range(1, len(offs)):
                k(f"v_cmp_ne_u32 {s(sM,2)}, s{sTag}, v{vD+i}")
                k(f"s_or_b64 vcc, vcc, {s(sM,2)}")
            k(f"""
            {"s_cmp_lg_u64 vcc, 0" if req is None else f"s_and_b32 s3, vcc_lo, {req}"}
            s_cselect_b32 s3, s{sCnt}, 0
            s_cmp_lg_u32 s3, 0
            """)
            lp.back("s_cbranch_scc1")
        if prio is not None:
            k(f"s_setprio {prio}")
        k("s_mov_b64 exec, -1")

    def flag(so):
        k("s_mov_b64 exec, 0xff")
        k(f"buffer_store_dwordx4 {v(vTag,4)}, v{vL16}, {s(sWS,4)}, {so} offen{OPT.get('ff', SC)}")
        k("s_mov_b64 exec, -1")

    def flag_last(which, so, va, vb):
        k(f"v_mov_b32 v{va}, {L_CNT}")
        k(f"v_mov_b32 v{vb}, 1")
        k("s_mov_b64 exec, 1")
        k(f"ds_add_rtn_u32 v{vb}, v{va}, v{vb} offset:{4*which}")
        k("s_mov_b64 exec, -1")
        k(f"v_readfirstlane_b32 s3, v{vb}")
        k("s_cmp_eq_u32 s3, 3")
        with k.if_("s_cbranch_scc0"):
            flag(so)

    def cnt_add(which, va, vb, val=1):
        k(f"v_mov_b32 v{va}, {L_CNT}")
        k(f"v_mov_b32 v{vb}, {val}")
        k("s_mov_b64 exec, 1")
        k(f"ds_add_u32 v{va}, v{vb} offset:{4*which}")
        k("s_mov_b64 exec, -1")

    def cnt_wait(which, target, va, vb, mask=None, prio=None):
        k(f"v_mov_b32 v{va}, {L_CNT}")
        if prio is not None:
            k("s_setprio 0")
        k(f"s_mov_b32 s{sCnt}, {SPIN * 16}")
        with k.loop([1, 2]) as lp:
            k(f"""
            ds_read_b32 v{vb}, v{va} offset:{4*which}
            s_sub_u32 s{sCnt}, s{sCnt}, 1
            v_readfirstlane_b32 s3, v{vb}
            {f"s_and_b32 s3, s3, {mask}" if mask else ""}
            s_cmp_lt_u32 s3, {target}
            s_cselect_b32 s3, s{sCnt}, 0
            s_cmp_lg_u32 s3, 0
            """)
            lp.back("s_cbranch_scc1")
        if prio is not None:
            k(f"s_setprio {prio}")

    def padd(d, a, b, n=16, pk=False):
        if pk:
            return [E(k, f"v_pk_add_f32 {v(d+r,2)}, {v(a+r,2)}, {v(b+r,2)}") for r in range(0, n, 2)]
        return [E(k, f"v_add_f32 v{d+r}, v{a+r}, v{b+r}") for r in range(n)]

    def fmap(r2, kh):
        if OPT.get("loc", 1):
            return f"""s_and_b32 s{r2}, s2, 7
            s_lshl_b32 s{r2}, s{r2}, 1
            s_bfe_u32 s3, s2, 0x10003
            s_add_u32 s{r2}, s{r2}, s3
            s_bfe_u32 s{kh}, s2, 0x10004"""
        return f"""s_bfe_u32 s{r2}, s2, 0x20001
            s_lshl_b32 s{r2}, s{r2}, 2
            s_bfe_u32 s3, s2, 0x20003
            s_add_u32 s{r2}, s{r2}, s3
            s_and_b32 s{kh}, s2, 1"""

    def tr_parts(r, p):
        k(f"""
        v_bfe_u32 v{p}, v{vL}, 4, 1
        v_and_b32 v{r}, 3, v{vL}
        v_lshl_add_u32 v{p}, v{p}, 2, v{r}
        v_bfe_u32 v{r}, v{vL}, 2, 2
        """)

    k.label("KST")
    k("s_load_dwordx16 s[4:19], s[0:1], 0")
    k("s_load_dwordx2 s[20:21], s[0:1], 80")
    k("s_load_dwordx2 s[22:23], s[0:1], 64")
    k("s_cmp_ge_u32 s2, 256")
    with k.if_("s_cbranch_scc0"):
        k("s_endpgm")
    stamp(0)
    k(f"""
    v_lshrrev_b32 v{vT0}, 6, v0
    v_and_b32 v{vL}, 63, v0
    s_getpc_b64 {s(sM, 2)}
    v_readfirstlane_b32 s{sWv}, v{vT0}
    """)
    nl = code_size // 128 + 1
    per = (nl + 31) // 32
    assert per <= 64
    k(f"s_cmp_eq_u32 s{sWv}, 7")
    with k.if_("s_cbranch_scc0"):
        k(f"""
        s_lshr_b32 s3, s2, 3
        s_mul_i32 s3, s3, {per}
        v_min_u32 v{vPF}, {per - 1}, v{vL}
        v_add_u32 v{vPF}, s3, v{vPF}
        v_lshlrev_b32 v{vPF}, 7, v{vPF}
        v_min_u32 v{vPF}, {max(code_size - 64, 0) & ~3}, v{vPF}
        global_load_dword v{vPF}, v{vPF}, {s(sM, 2)}
        """)
    k(f"""
    s_and_b32 s3, s2, 4
    s_lshl_b32 s3, s3, 1
    s_bfe_u32 s{sRB}, s2, 0x30003
    s_add_u32 s{sRB}, s{sRB}, s3
    s_and_b32 s3, s2, 3
    s_lshl_b32 s3, s3, 2
    s_lshr_b32 s{sG}, s2, 6
    s_add_u32 s{sG}, s{sG}, s3
    s_add_u32 s{sC}, s{sRB}, s{sG}
    s_mul_i32 s3, s{sC}, 37
    s_lshr_b32 s3, s3, 8
    s_mul_i32 s3, s3, 7
    s_sub_u32 s{sC}, s{sC}, s3
    s_and_b32 s{sA}, s{sWv}, 3
    s_lshl_b32 s{sTT}, s{sRB}, 2
    s_add_u32 s{sTT}, s{sTT}, s{sA}
    s_lshl_b32 s{sL2}, s{sWv}, 11
    s_mul_i32 s{sT0}, s{sG}, 168
    s_bitcmp1_b32 0x1248, s{sG}
    s_cselect_b32 s{sLong}, 0, 1
    s_cselect_b32 s3, 15, 127
    s_and_b32 s{sO0}, s{sT0}, s3
    s_sub_u32 s{sT0}, s{sT0}, s{sO0}
    v_lshrrev_b32 v{vT0}, 3, v{vL}
    s_lshl_b32 s3, s{sWv}, 4
    v_add_u32 v{vT1}, s3, v{vT0}
    v_mul_u32_u24 v{vX0}, 896, v{vT1}
    v_lshrrev_b32 v{vT1}, 4, v{vL}
    v_and_b32 v{vT2}, 7, v{vL}
    v_xor_b32 v{vX1}, v{vT2}, v{vT1}
    v_lshl_add_u32 v{vQ0}, v{vX1}, 4, v{vX0}
    v_xor_b32 v{vX1}, 4, v{vX1}
    v_lshl_add_u32 v{vX1}, v{vX1}, 4, v{vX0}
    v_add_u32 v{vX1}, {8*896-1024}, v{vX1}
    v_mov_b32 v{vX0}, v{vQ0}
    s_lshl_b32 s3, s{sWv}, 3
    v_add_u32 v{vT0}, s3, v{vT1}
    v_mul_u32_u24 v{vQ0}, 2688, v{vT0}
    v_lshlrev_b32 v{vT0}, 2, v{vT1}
    v_and_b32 v{vT2}, 15, v{vL}
    v_xor_b32 v{vT0}, v{vT0}, v{vT2}
    v_lshl_add_u32 v{vQ0}, v{vT0}, 4, v{vQ0}
    v_add_u32 v{vQ1}, {4*2688-1024}, v{vQ0}
    v_mov_b32 v{vE}, 0
    s_mul_i32 s{sB}, s{sRB}, {128*896}
    s_sub_u32 s{sD}, {448*2688}, s{sT0}
    """)
    srd(k, sX, 4, 5, f"s{sB}", 128 * 896)
    srd(k, sQ, 6, 7, f"s{sT0}", f"s{sD}")

    def nxt():
        return [E(k, f"s_add_u32 s{sC}, s{sC}, 1"), E(k, f"s_cmp_eq_u32 s{sC}, 7"), E(k, f"s_cselect_b32 s{sC}, 0, s{sC}")]

    def dma_chunk(c, halves=(0,)):
        so = SLOTS[c % 3]
        t = dict(wr=[f"ch{c}"])
        out = []
        for hf in halves:
            out += [
                [E(k, f"s_add_u32 m0, s{sL2}, {so+8192*hf}"),
                 E(k, f"s_lshl_b32 s{sSo}, s{sC}, 7" if hf == 0 else f"s_add_u32 s{sSo}, s{sSo}, {64*896}"),
                 E(k, f"buffer_load_dwordx4 v{vX0}, {s(sX,4)}, s{sSo} offen lds", **t)],
                [E(k, f"buffer_load_dwordx4 v{vX1}, {s(sX,4)}, s{sSo} offen offset:1024 lds", **t)]]
        for hf in halves:
            out += [
                [E(k, f"s_add_u32 m0, s{sL2}, {so+16384+8192*hf}"),
                 E(k, f"s_mul_i32 s{sSo}, s{sC}, {64*2688}" if hf == 0 else f"s_add_u32 s{sSo}, s{sSo}, {32*2688}"),
                 E(k, f"buffer_load_dwordx4 v{vQ0}, {s(sQ,4)}, s{sSo} offen lds", **t)],
                [E(k, f"buffer_load_dwordx4 v{vQ1}, {s(sQ,4)}, s{sSo} offen offset:1024 lds", **t)]]
        out[-1] += nxt()
        return out

    def run(groups):
        for g in groups:
            for f in g:
                f()

    stamp(1)
    run(dma_chunk(0))
    k(f"global_load_dword v{vE}, v{vE}, s[20:21]{SC}")
    if OPT.get("t1", 1):
        k(f"s_cmp_eq_u32 s{sWv}, 5")
        with k.if_("s_cbranch_scc0"):
            k(f"""
            s_bfe_u32 s{sT0}, s2, 0x10002
            s_lshl_b32 s{sT0}, s{sT0}, 5
            s_lshr_b32 s3, s2, 3
            s_add_u32 s{sT0}, s{sT0}, s3
            s_mul_i32 s{sT0}, s{sT0}, {7*3584}
            s_and_b32 s3, s2, 3
            s_mul_i32 s3, s3, 896
            s_add_u32 s{sT0}, s{sT0}, s3
            v_min_u32 v{vT0}, 48, v{vL}
            v_mul_u32_u24 v{vT1}, 37, v{vT0}
            v_lshrrev_b32 v{vT1}, 8, v{vT1}
            v_mul_u32_u24 v{vT1}, {3584-896}, v{vT1}
            v_lshl_add_u32 v{vT0}, v{vT0}, 7, v{vT1}
            v_add_u32 v{vT0}, s{sT0}, v{vT0}
            global_load_dword v{vPF}, v{vT0}, s[12:13]
            """)
    k("s_barrier")
    run(dma_chunk(1))
    srd(k, sWS, 20, 21, 0, WS_SIZE)
    k(f"""
    v_lshlrev_b32 v{vL16}, 4, v{vL}
    v_mov_b32 v{vT0}, {L_CNT}
    v_mov_b32 v{vT1}, 0
    v_mov_b32 v{vT2}, 0
    s_lshl_b32 s{sF}, s{sG}, 4
    s_add_u32 s{sF}, s{sF}, s{sRB}
    s_lshl_b32 s10, s{sF}, 7
    """)
    k(f"ds_write_b64 v{vT0}, {v(vT1,2)}", wr=["ch0"])
    k(f"ds_write_b64 v{vT0}, {v(vT1,2)} offset:8", wr=["ch0"])
    k(f"ds_write_b64 v{vT0}, {v(vT1,2)} offset:16", wr=["ch0"])
    k(f"""
    v_and_b32 v{vT0}, 31, v{vL}
    s_lshl_b32 s3, s{sA}, 5
    v_add_u32 v{vT1}, s3, v{vT0}
    v_lshlrev_b32 v{vT1}, 7, v{vT1}
    v_bfe_u32 v{vT0}, v{vL}, 1, 3
    v_lshrrev_b32 v{vT2}, 5, v{vL}
    v_xor_b32 v{vT0}, v{vT0}, v{vT2}
    v_lshl_add_u32 v{xa[0]}, v{vT0}, 4, v{vT1}
    v_xor_b32 v{xa[1]}, 32, v{xa[0]}
    v_xor_b32 v{xa[2]}, 64, v{xa[0]}
    v_xor_b32 v{xa[3]}, 96, v{xa[0]}
    """)
    k(f"""
    s_bfm_b32 s3, s{sG}, 0
    s_and_b32 s3, s3, 0x1248
    s_bcnt1_i32_b32 s3, s3
    s_lshl_b32 s{sFS}, s{sG}, 1
    s_sub_u32 s{sFS}, s{sFS}, s3
    s_lshl_b32 s{sFS}, s{sFS}, 1
    s_lshl_b32 s{sL2}, s{sA}, 11
    v_bfe_u32 v{vT1}, v{vL}, 4, 1
    v_lshlrev_b32 v{vT1}, 2, v{vT1}
    v_and_b32 v{vT0}, 7, v{vL}
    v_xor_b32 v{vT1}, v{vT1}, v{vT0}
    v_lshrrev_b32 v{vT0}, 3, v{vL}
    s_lshl_b32 s3, s{sA}, 4
    v_add_u32 v{vT0}, s3, v{vT0}
    v_mul_u32_u24 v{vW}, 3584, v{vT0}
    v_lshl_add_u32 v{vW}, v{vT1}, 4, v{vW}
    """)
    tr_parts(vT0, vT1)
    k(f"v_lshl_add_u32 v{vT2}, v{vT2}, 3, v{vT0}")

    def dma_w1(srdn, base, js, tag):
        out = []
        for j in js:
            out += [[E(k, f"s_add_u32 m0, s{sL2}, {base+8192*j}"), E(k, f"s_mul_i32 s{sSo}, s{sC}, {64*3584}"),
                     E(k, f"buffer_load_dwordx4 v{vW}, {s(srdn,4)}, s{sSo} offen lds", wr=[tag])],
                    [E(k, f"s_add_u32 s{sSo}, s{sSo}, {8*3584-1024}"),
                     E(k, f"buffer_load_dwordx4 v{vW}, {s(srdn,4)}, s{sSo} offen offset:1024 lds", wr=[tag])] + nxt()]
        return out

    def make_tag():
        k(f"v_readfirstlane_b32 s{sTag}, v{vE}")
        k(f"s_mul_i32 s{sTag}, s{sTag}, 0x9E3779B1")
        k(f"s_add_u32 s{sTag}, s{sTag}, 0x7F4A7C15")
        for i in range(4):
            k(f"v_mov_b32 v{vTag+i}, s{sTag}")

    def rebase(st8, c, regs):
        out = []
        if SLOTS[c % 3] - st8["base"] not in (0, SLOT):
            nb = SLOT if SLOTS[c % 3] == 2 * SLOT else 0
            d = "v_add_u32" if nb > st8["base"] else "v_subrev_u32"
            out = [E(k, f"{d} v{r}, {SLOT}, v{r}") for r in regs]
            st8["base"] = nb
        return out

    LV = lambda n: 0x400 + 4 * n

    k(f"s_cmp_lt_u32 s{sWv}, 4")
    with k.if_("s_cbranch_scc0") as role:
        acc = [112, 128, 144]
        Xr = [16 + 4 * i for i in range(4)]
        Wf = [[32 + 16 * t + 4 * i for i in range(4)] for t in range(3)]
        sSc, sSt, sR, sOff, sQo = [4, 6, 14], 11, [12, 13, 18], 19, [sRB, sTT, sFS, sO0]
        sH, sQB, sIt, sOFs, sFO, sOFl, sGl, sHH = range(44, 52)
        sTo, sCT, sPx, sPxW, sTagH, sSel, sRot = sB, sD, sF, 4, 5, [6, 7, 15], 14
        vTc, vTd = 0, 255
        sK, sV, sOUT = sX, sQ, sW
        vLp, vIdx, vIn, vFd, vCn, vCv = 6, 7, 8, 9, 10, 11
        vOut, vPq = [240, 241, 242], 243
        wA, wB, wC, wD, vPo, vG, vSt, vPi, vBi = range(245, 254)
        Q = [16 + 8 * j for j in range(4)]
        KB = [48 + 8 * j for j in range(4)]
        VB = [80 + 8 * j for j in range(4)]
        S = [112 + 16 * j for j in range(4)]
        O = [176 + 16 * j for j in range(4)]
        k("s_setprio 3")
        k(f"""
        s_lshl_b32 s{sT1}, s{sFS}, 6
        s_lshl_b32 s3, s{sLong}, 7
        s_add_u32 s{sT1}, s{sT1}, s3
        s_sub_u32 s{sEe}, {448*3584}, s{sT1}
        s_add_u32 s{sC}, s{sC}, 5
        s_cmp_ge_u32 s{sC}, 7
        s_cselect_b32 s3, 7, 0
        s_sub_u32 s{sC}, s{sC}, s3
        """)
        srd(k, sWA, 12, 13, f"s{sT1}", f"s{sEe}")
        t2 = OPT.get("t2", 1)
        if t2 == 1:
            k(f"""
            s_lshr_b32 s3, s2, 1
            s_lshl_b32 s3, s3, 2
            s_add_u32 s{sT0}, s3, s{sWv}
            s_mul_i32 s{sT0}, s{sT0}, 49
            s_lshr_b32 s{sT0}, s{sT0}, 2
            s_and_b32 s3, s2, 1
            s_mul_i32 s3, s3, 6272
            s_add_u32 s{sT0}, s{sT0}, s3
            s_lshl_b32 s3, s2, 2
            s_add_u32 s{sT1}, s3, s{sWv}
            s_mul_i32 s{sT1}, s{sT1}, 49
            s_lshr_b32 s{sT1}, s{sT1}, 4
            """)
            n2, no = 13, 4
        else:
            k(f"""
            s_lshr_b32 s3, s2, 3
            s_lshl_b32 s3, s3, 2
            s_add_u32 s3, s3, s{sWv}
            s_mul_i32 s{sT1}, s3, 49
            s_and_b32 s3, s2, 1
            s_mul_i32 s3, s3, 6272
            s_add_u32 s{sT0}, s{sT1}, s3
            s_lshr_b32 s{sT1}, s{sT1}, 1
            """)
            n2, no = 49, 25
        k(f"""
        v_min_u32 v{vTc}, {n2-1}, v{vL}
        v_add_u32 v{vTc}, s{sT0}, v{vTc}
        v_lshlrev_b32 v{vTc}, 7, v{vTc}
        v_min_u32 v{vTd}, {no-1}, v{vL}
        v_add_u32 v{vTd}, s{sT1}, v{vTd}
        v_lshlrev_b32 v{vTd}, 7, v{vTd}
        """)
        k(f"""
        v_min_u32 v{wa[0]}, 6, v{vT1}
        v_lshlrev_b32 v{wa[0]}, 3, v{wa[0]}
        v_add_u32 v{wa[0]}, s{sO0}, v{wa[0]}
        v_add_u32 v{wa[1]}, 56, v{wa[0]}
        v_add_u32 v{wa[2]}, 112, v{wa[0]}
        v_lshlrev_b32 v{vT0}, 6, v{vT0}
        v_lshlrev_b32 v{vT2}, 8, v{vT2}
        v_add_u32 v{vT2}, 16384, v{vT2}
        v_xor_b32 v{wa[0]}, v{wa[0]}, v{vT0}
        v_xor_b32 v{wa[1]}, v{wa[1]}, v{vT0}
        v_xor_b32 v{wa[2]}, v{wa[2]}, v{vT0}
        v_add_u32 v{wa[0]}, v{wa[0]}, v{vT2}
        v_add_u32 v{wa[1]}, v{wa[1]}, v{vT2}
        v_add_u32 v{wa[2]}, v{wa[2]}, v{vT2}
        v_and_b32 v{vT0}, 31, v{vL}
        v_mov_b32 v{vT1}, 0x3f803f80
        v_cmp_eq_u32 vcc, 28, v{vT0}
        v_cndmask_b32 v{vPad}, 0, v{vT1}, vcc
        s_mul_i32 s{sT0}, s{sG}, 3
        """)
        for t in range(3):
            k(f"s_cmp_lt_u32 s{sT0}, {16 - t}")
            k(f"s_cselect_b32 s{sSc[t]}, {f32(28 ** -0.5 * LOG2E)}, 1.0")
            k(f"s_mov_b32 s{sSc[t]+1}, s{sSc[t]}")
        k(f"""
        s_lshl_b32 s{sT0}, s{sT0}, 6
        s_add_u32 s{sT0}, s{sT0}, s{sTT}
        s_lshl_b32 s{sSt}, s{sT0}, 11
        s_add_u32 s{sSt}, s{sSt}, {WS_QKV}
        s_add_u32 s10, s10, {WS_FQ}
        s_and_b32 s{sH}, s2, 7
        s_lshl_b32 s{sH}, s{sH}, 1
        s_bfe_u32 s3, s2, 0x10003
        s_add_u32 s{sH}, s{sH}, s3
        s_lshr_b32 s{sQB}, s2, 4
        v_and_b32 v{vT0}, 0x33, v{vL}
        v_bfe_u32 v{vT1}, v{vL}, 2, 1
        v_bfe_u32 v{vT2}, v{vL}, 3, 1
        v_lshl_or_b32 v{vT0}, v{vT1}, 3, v{vT0}
        v_lshl_or_b32 v{vT0}, v{vT2}, 2, v{vT0}
        v_lshlrev_b32 v{vLp}, 4, v{vT0}
        s_lshl_b32 s{sT0}, s{sH}, 17
        s_add_u32 s{sT0}, s{sT0}, {WS_QKV}
        s_lshl_b32 s{sT1}, s{sWv}, 15
        s_add_u32 s{sT1}, s{sT1}, s{sT0}
        s_add_u32 s3, s{sT1}, {16*64*2048}
        """)
        srd(k, sK, 20, 21, "s3", 32768)
        k(f"s_add_u32 s3, s{sT1}, {32*64*2048}")
        srd(k, sV, 20, 21, "s3", 32768)
        k(f"""
        v_lshrrev_b32 v{vT0}, 4, v{vL}
        v_add_u32 v{vT0}, 1, v{vT0}
        v_cmp_gt_u32 vcc, 32, v{vL}
        v_cndmask_b32 v{vT0}, 0, v{vT0}, vcc
        v_lshl_add_u32 v{vT0}, v{vT0}, 4, s{sH}
        v_mul_u32_u24 v{vT0}, 43, v{vT0}
        v_lshrrev_b32 v{vT0}, 7, v{vT0}
        v_and_b32 v{vT1}, 15, v{vL}
        v_mov_b32 v{vT2}, s{sQB}
        v_cndmask_b32 v{vT1}, v{vT2}, v{vT1}, vcc
        v_lshl_add_u32 v{vT0}, v{vT0}, 4, v{vT1}
        v_lshlrev_b32 v{vT0}, 7, v{vT0}
        v_add_u32 v{vPq}, {WS_FQ}, v{vT0}
        s_lshl_b32 s3, s{sQB}, 13
        s_add_u32 s{sT0}, s{sT0}, s3
        """)
        for j in range(4):
            for r in range(16):
                k(f"v_mov_b32 v{O[j]+r}, 0")
        for r in range(8, 16):
            k(f"v_mov_b32 v{S[3]+r}, 0")
        for r in range(4, 8):
            k(f"v_mov_b32 v{VB[3]+r}, 0")
        k(f"v_mov_b32 v{vIdx}, 0xdddd")
        k(f"v_mov_b32 v{vCn}, {L_CNT}")
        k(f"s_mov_b32 s{sIt}, 3")
        k(f"s_lshl_b32 s{sR[0]}, s{sQB}, 11")
        k(f"s_and_b32 s{sR[0]}, s{sR[0]}, {OPT.get('rot', 0) << 11}")
        prev = sR[0]
        for r in sR[1:] + [sOff]:
            k(f"s_add_u32 s{r}, s{prev}, 2048")
            k(f"s_and_b32 s{r}, s{r}, 0x7fff")
            prev = r
        for j in range(4):
            k(f"""
            s_add_u32 s3, s{sWv}, {1+j}
            s_and_b32 s3, s3, 3
            s_mul_i32 s{sT1}, s3, 12288
            s_add_u32 s{sT1}, s{sT1}, {L_ORED + 4096 * (j % 3)}
            v_add_u32 v{(vOut + [vIn])[j]}, s{sT1}, v{vL16}
            s_lshl_b32 s3, s3, 11
            s_add_u32 s{sQo[j]}, s3, s{sT0}
            """)
        k(f"""
        s_lshl_b32 s{sT0}, s{sQB}, 2
        s_add_u32 s{sT0}, s{sT0}, s{sWv}
        s_lshl_b32 s3, s{sT0}, 4
        s_add_u32 s3, s3, s{sH}
        s_lshl_b32 s{sOFs}, s3, 11
        s_add_u32 s{sOFs}, s{sOFs}, {WS_OF}
        s_lshr_b32 s{sHH}, s{sWv}, 1
        {fmap(sTo, 3)}
        s_lshl_b32 s{sTo}, s{sTo}, 1
        s_add_u32 s{sTo}, s{sTo}, s3
        s_lshl_b32 s{sTo}, s{sTo}, 1
        s_and_b32 s3, s{sWv}, 1
        s_add_u32 s{sTo}, s{sTo}, s3
        s_lshr_b32 s{sCT}, s2, 5
        s_lshl_b32 s3, s{sTo}, 7
        s_add_u32 s{sGl}, s3, {WS_G}
        s_lshl_b32 s{sOFl}, s{sTo}, 1
        s_add_u32 s{sOFl}, s{sOFl}, s{sHH}
        s_lshl_b32 s{sOFl}, s{sOFl}, 14
        s_add_u32 s{sOFl}, s{sOFl}, {WS_OF}
        s_mul_i32 s3, s{sTo}, {32*896}
        """)
        srd(k, sOUT, 22, 23, "s3", 32 * 896)

        nb0, nb1 = OPT.get("nb0", 0), OPT.get("nb1", 4)
        assert nb0 <= nb1 <= 4

        def p1_role0(swap):
            st8 = dict(base=0)

            def rdX(n):
                c, st = n >> 2, n & 3
                out = rebase(st8, c, xa + wa) if st == 0 else []
                return out + [E(k, f"ds_read_b128 {v(Xr[n%4],4)}, v{xa[st]} offset:{SLOTS[c%3]-st8['base']}", wr=[f"rd{c}"])]

            def rdW(n, t):
                c, st = n >> 2, n & 3
                return [E(k, f"ds_read_b64_tr_b16 {v(Wf[t][n%4]+2*e,2)}, v{wa[t]} offset:{SLOTS[c%3]-st8['base']+(16*st+4*e)*256}",
                          wr=[f"rd{c}"]) for e in range(2)]

            def reads(n):
                return rdX(n) + rdW(n, 0) + rdW(n, 1) + rdW(n, 2)

            def mm(n, t):
                a, b = v(Wf[t][n % 4], 4), v(Xr[n % 4], 4)
                if swap[t]:
                    a, b = b, a
                return [E(k, f"{MFMA} {v(acc[t],16)}, {a}, {b}, {'0' if n == 0 else v(acc[t],16)}")]

            def epi(t):
                a = acc[t]
                out = []
                if swap[t]:
                    if t == 0 or not swap[t - 1]:
                        out += [E(k, f"s_mov_b32 s{sM}, 0xf0000000"), E(k, f"s_mov_b32 s{sM+1}, 0xf0000000")]
                    for i in range(2):
                        R = range(4 * i, 4 * i + 4)
                        out += [E(k, f"v_cvt_pk_bf16_f32 v{a+r}, v{a+2*r}, v{a+2*r+1}") for r in R]
                        out += [E(k, f"v_cndmask_b32 v{a+r}, v{a+r}, v{vPad}, {s(sM,2)}") for r in R]
                        out += [E(k, f"buffer_store_dwordx4 {v(a+4*i,4)}, v{vL16}, {s(sWS,4)}, s{sSt} offen offset:{1024*i}{OPT.get('sq', SC)}", wr=["qkv"])]
                else:
                    if t == 0:
                        out += [E(k, f"s_mov_b32 s{sM}, 0"), E(k, f"s_mov_b32 s{sM+1}, -1")]
                    for i in range(2):
                        R = range(4 * i, 4 * i + 4)
                        if OPT.get("epk", 0) >> t & 1:
                            out += [E(k, f"v_pk_mul_f32 {v(a+2*r,2)}, {v(a+2*r,2)}, {s(sSc[t],2)}") for r in R]
                        else:
                            out += [E(k, f"v_mul_f32 v{a+r}, s{sSc[t]}, v{a+r}") for r in range(8 * i, 8 * i + 8)]
                        out += [E(k, f"v_cvt_pk_bf16_f32 v{a+r}, v{a+2*r}, v{a+2*r+1}") for r in R]
                        out += [E(k, f"v_cndmask_b32 v{a+r}, v{a+r}, 0, {s(sM,2)}") for r in R if r >= 6]
                        out += [E(k, f"buffer_store_dwordx4 {v(a+4*i,4)}, v{vL16}, {s(sWS,4)}, s{sSt} offen offset:{1024*i}{OPT.get('sq', SC)}", wr=["qkv"])]
                if t < 2:
                    out += [E(k, f"s_add_u32 s{sSt}, s{sSt}, {64*2048}")]
                return out

            k.need("ch0")
            k("s_barrier")
            stamp(2)
            run([reads(0), reads(1)])
            for n in range(24):
                ms = [mm(n, t) for t in range(3)]
                c = (n + 2) // 4
                if n >= 22:
                    run(ms)
                elif (n + 2) % 4 == 0:
                    run(ms)
                    k.need(f"rd{c-1}", f"ch{c}")
                    k("s_barrier")
                    if c == 3:
                        stamp(3)
                    run([reads(n + 2)])
                    if c == 1:
                        make_tag()
                else:
                    spread(k, ms, reads(n + 2))
            k.need("rd5")
            k("s_barrier")
            stamp(4)
            for n in range(24, 28):
                run([rdX(n), rdW(n, 0)])
            for t in (1, 2):
                for n in range(24, 28):
                    run([rdW(n, t)])
            run(dma_w1(sWA, L_W1B, range(nb0), "wb1"))
            run([mm(n, 0) for n in range(24, 28)] + [mm(24, 1), mm(25, 1)])
            spread(k, [mm(26, 1), mm(27, 1), mm(24, 2), mm(25, 2)], epi(0))
            k(f"v_mov_b32 v{vCv}, 0x100")
            spread(k, [mm(26, 2), mm(27, 2)], epi(1)[:4])
            k("s_mov_b64 exec, 1")
            k(f"ds_add_u32 v{vCn}, v{vCv}", rd=["rd6"])
            k("s_mov_b64 exec, -1")
            run([epi(1)[4:], epi(2)])
            assert st8["base"] == 0

        k(f"s_cmp_lt_u32 s{sG}, 10")
        with k.if_("s_cbranch_scc0") as v0:
            p1_role0([0, 0, 0])
            v0.else_()
            k(f"s_cmp_eq_u32 s{sG}, 10")
            with k.if_("s_cbranch_scc0") as v1:
                p1_role0([0, 0, 1])
                v1.else_()
                p1_role0([1, 1, 1])
        stamp(5)
        run(dma_w1(sWA, L_W1B, range(nb0, nb1), "wb1"))
        k.need("qkv")
        flag_last(2, "s10", vT0, vT1)
        stamp(6)
        run(dma_w1(sWA, L_W1B, range(nb1, 4), "wb1"))
        run(dma_w1(sWA, L_W1B, range(4, 7), "wb2"))

        def touch(pos):
            if t2 and OPT.get("tp", 1) == pos:
                k(f"global_load_dword v{vTc}, v{vTc}, s[16:17]")
                k(f"global_load_dword v{vTd}, v{vTd}, s[8:9]")
        touch(1)
        k.need("wb1")
        cnt_add(1, vT0, vT1)
        k("s_setprio 0")
        tr_parts(vT0, vT1)
        k(f"""
        s_mul_i32 s3, s{sHH}, {224*128 + 64}
        s_and_b32 s{sRot}, s{sCT}, {1 if OPT.get("orot", 1) else 0}
        s_lshl_b32 s{sT0}, s{sRot}, 13
        s_add_u32 s{sOFl}, s{sOFl}, s{sT0}
        s_mul_i32 s{sRot}, s{sRot}, {112*128}
        s_add_u32 s3, s3, s{sRot}
        s_lshl_b32 s{sRot}, s{sRot}, 1
        s_sub_u32 s{sRot}, s{sRot}, {112*128}
        v_lshl_add_u32 v{wD}, v{vT1}, 3, s3
        v_lshrrev_b32 v{vT2}, 5, v{vL}
        v_lshl_add_u32 v{wA}, v{vT2}, 2, v{vT0}
        v_lshl_add_u32 v{wB}, v{vT2}, 1, v{vT0}
        v_add_u32 v{wB}, 16, v{wB}
        v_lshl_add_u32 v{wC}, v{vT2}, 2, 3
        v_cmp_gt_u32 vcc, 2, v{vT0}
        v_cndmask_b32 v{wB}, v{wC}, v{wB}, vcc
        """)
        for w in (wA, wB):
            k(f"""
            v_and_b32 v{vT1}, 2, v{w}
            v_lshlrev_b32 v{vT1}, 5, v{vT1}
            v_lshl_add_u32 v{w}, v{w}, 7, v{wD}
            v_xor_b32 v{w}, v{w}, v{vT1}
            """)
        k(f"""
        v_xor_b32 v{wC}, 64, v{wA}
        v_xor_b32 v{wD}, 64, v{wB}
        s_lshl_b32 s{sT0}, s{sCT}, 1
        s_add_u32 s{sT0}, s{sT0}, s{sHH}
        s_xor_b32 s3, s{sTo}, 2
        s_mul_i32 s{sPxW}, s3, 14
        s_add_u32 s{sPxW}, s{sPxW}, s{sT0}
        s_lshl_b32 s{sPxW}, s{sPxW}, 12
        s_add_u32 s{sPxW}, s{sPxW}, {WS_PX}
        s_lshl_b32 s{sTagH}, s{sTag}, 16
        s_mov_b32 s{sSel[0]}, 0x07060500
        s_mov_b32 s{sSel[1]}, 0x07060501
        s_mov_b32 s{sSel[2]}, 0x04000c0c
        s_mul_i32 s{sPx}, s{sTo}, 14
        s_add_u32 s{sPx}, s{sPx}, s{sT0}
        s_lshl_b32 s{sPx}, s{sPx}, 12
        s_add_u32 s{sPx}, s{sPx}, {WS_PX}
        v_and_b32 v{vT0}, 31, v{vL}
        v_lshlrev_b32 v{vG}, 2, v{vT0}
        v_mul_u32_u24 v{vSt}, 896, v{vT0}
        v_lshl_add_u32 v{vSt}, v{vT2}, 4, v{vSt}
        s_lshl_b32 s3, s{sT0}, 6
        v_add_u32 v{vSt}, s3, v{vSt}
        s_xor_b32 s3, s{sWv}, 2
        s_mul_i32 s3, s3, 12288
        s_add_u32 s3, s3, {L_ORED}
        v_add_u32 v{vPi}, s3, v{vL16}
        v_add_u32 v{vBi}, {L_FRED - L_ORED + (1 << 32)}, v{vIn}
        """)
        k("s_setprio 3")
        k.need("wb2")
        cnt_add(1, vT0, vT1, 0x100)
        k(f"s_cmp_eq_u32 s{sWv}, 0")
        with k.if_("s_cbranch_scc0") as pl:
            poll(vPq, vFd, -1)
            cnt_add(4, vCn, vCv, 0x100)
            pl.else_()
            cnt_wait(4, 0x100, vCn, vCv, prio=3)
        stamp(7)

        def ldK(buf, so, hs=(0, 1)):
            for i in hs:
                k(f"buffer_load_dwordx4 {v(KB[buf]+4*i,4)}, v{vLp}, {s(sK,4)}, {so} offen offset:{1024*i}{SC}")

        def ldV(buf, so, hs=(0, 1)):
            for i in hs:
                k(f"buffer_load_dwordx4 {v(VB[buf]+4*i,4)}, v{vL16}, {s(sV,4)}, {so} offen offset:{1024*i}{SC}")

        def ldQ(j):
            for i in range(2):
                k(f"buffer_load_dwordx4 {v(Q[j]+4*i,4)}, v{vL16}, {s(sWS,4)}, s{sQo[j]} offen offset:{1024*i}{SC}")

        ldK(0, f"s{sR[0]}")
        ldQ(0)
        ldQ(1)
        ldQ(2)
        ldV(0, f"s{sR[0]}")
        ldQ(3)
        ldK(1, f"s{sR[1]}")
        ldV(1, f"s{sR[1]}")
        ldK(2, f"s{sR[2]}")
        ldV(2, f"s{sR[2]}")
        ldK(3, f"s{sOff}")
        touch(0)
        if OPT.get("tpx"):
            k(f"v_min_u32 v{vPq}, 31, v{vL}")
            k(f"v_lshlrev_b32 v{vPq}, 7, v{vPq}")
            k(f"buffer_load_dword v{vPq}, v{vPq}, {s(sWS,4)}, s{sPxW} offen")
        cnt_add(1, vT0, vT1, 0x10000)
        k(f"s_setprio {OPT.get('aprio', 1)}")

        def QK(u, half):
            j, t = u & 3, (u >> 2) & 3
            c = "0" if half == 0 else v(S[j], 16)
            k(f"{MFMA} {v(S[j],16)}, {v(KB[t]+4*half,4)}, {v(Q[j]+4*half,4)}, {c}")

        def PV(u, half):
            j, t = u & 3, (u >> 2) & 3
            k(f"{SMF} {v(O[j],16)}, {v(VB[t]+4*half,4)}, {v(S[j]+8*half,8)}, v{vIdx}")

        def EX(u, a, b):
            for r in range(a, b):
                k(f"v_exp_f32 v{S[u&3]+r}, v{S[u&3]+r}")

        def putO(j, i):
            k(f"ds_write_b128 v{vOut[j]}, {v(O[j]+4*i,4)} offset:{1024*i}", wr=["red"])

        gate = OPT.get("gate", 10)

        def unit(u, last):
            i, q = u >> 2, u & 3
            if last and u == gate:
                k("s_barrier")
                k("s_setprio 3")
            if not (last and u >= 14):
                QK(u + 2, 0)
            if q < 2 and (u < 2 or not last):
                ldV((i - 1) & 3, f"s{sOff}", (q,))
            if q >= 2 and not last:
                ldK(i, f"s{sOff}", (q - 2,))
            EX(u, 0, 4)
            if not (last and u >= 14):
                QK(u + 2, 1)
            else:
                PV(u - 1, 1)
            if q & 1 and (not last or u < 12):
                k(f"s_waitcnt vmcnt({10 if not last else 11 - u})")
            if last and u >= 14:
                for c in range(4):
                    EX(u, 4 + c, 5 + c)
                    putO(u - 14, c)
            else:
                EX(u, 4, 8)
                PV(u - 1, 1)
            if q == 1 and not last:
                k(f"s_add_u32 s{sOff}, s{sOff}, 2048")
                k(f"s_and_b32 s{sOff}, s{sOff}, 0x7fff")
            if last and u == 15:
                PV(u, 0)
                for c in range(4):
                    EX(u, 8 + 2 * c, 10 + 2 * c)
                    putO(2, c)
                PV(u, 1)
                return
            EX(u, 8, 12)
            PV(u, 0)
            if u == 15:
                k(f"s_sub_u32 s{sIt}, s{sIt}, 1")
                k(f"s_cmp_lg_u32 s{sIt}, 0")
            EX(u, 12, 16)

        assert gate <= 14
        for u in range(2):
            QK(u, 0)
            QK(u, 1)
        stamp(8)
        with k.loop(3, align=6) as lp:
            for u in range(16):
                unit(u, False)
                if OPT.get("it") and u == 3:
                    k(f"s_mov_b32 s{SST+8}, s{SST+10}")
                    k(f"s_mov_b32 s{SST+10}, s{SST+12}")
                    stamp(6)
            if OPT.get("it"):
                k(f"s_mov_b32 s{SST+2}, s{SST+4}")
                k(f"s_mov_b32 s{SST+4}, s{SST+6}")
                stamp(3)
            lp.back("s_cbranch_scc1")
        for u in range(16):
            unit(u, True)
        stamp(9)
        k.need("red")
        cnt_add(4, vCn, vCv)
        cnt_wait(4, 0x104, vCn, vCv)
        for j in range(3):
            for i in range(4):
                k(f"ds_read_b128 {v(S[j]+4*i,4)}, v{vIn} offset:{4096*j+1024*i}")
        A = O[3]
        opk = OPT.get("opk", 0)
        for j in range(3):
            run([padd(A, A, S[j], pk=opk)])

        def get_l():
            k(f"""
            v_mov_b32 v{vT0}, v{A+12}
            v_mov_b32 v{vT1}, v{A+12}
            v_permlane32_swap_b32 v{vT0}, v{vT1}
            """)
        get_l()
        k(f"v_mul_f32 v{vCn}, v{A}, v{A+1}")
        k(f"v_mul_f32 v{vCv}, v{A+2}, v{A+3}")
        for r in range(4, 16, 2):
            k(f"v_fma_f32 v{vCn + (r >> 1 & 1)}, v{A+r}, v{A+r+1}, v{vCn + (r >> 1 & 1)}")
        k(f"""
        v_fma_f32 v{vT2}, v{vCn}, 0, v{vT1}
        v_fma_f32 v{vT2}, v{vCv}, 0, v{vT2}
        v_cmp_nlt_f32 vcc, {f32(2.0**-30)}, v{vT2}
        s_mov_b64 {s(sM,2)}, vcc
        v_cmp_ngt_f32 vcc, {f32(2.0**40)}, v{vT2}
        s_or_b64 {s(sM,2)}, {s(sM,2)}, vcc
        """)
        if OPT.get("force_fb"):
            k(f"s_mov_b64 {s(sM,2)}, -1")
        k(f"s_cmp_lg_u64 {s(sM,2)}, 0")
        with k.if_("s_cbranch_scc0"):
            k(f"s_lshl_b32 s{sT1}, s{sH}, 17")
            k(f"s_add_u32 s3, s{sT1}, {WS_QKV+16*64*2048}")
            srd(k, sK, 20, 21, "s3", 131072)
            k(f"s_add_u32 s3, s{sT1}, {WS_QKV+32*64*2048}")
            srd(k, sV, 20, 21, "s3", 131072)
            k(f"v_mov_b32 v{vT0}, 0xff800000")
            k(f"s_mov_b32 s{sOff}, 0")
            with k.loop(3) as l1:
                ldK(0, f"s{sOff}")
                QK(3, 0)
                QK(3, 1)
                for r in range(0, 16, 2):
                    k(f"v_max3_f32 v{vT0}, v{S[3]+r}, v{S[3]+r+1}, v{vT0}")
                k(f"s_add_u32 s{sOff}, s{sOff}, 2048")
                k(f"s_cmp_lt_u32 s{sOff}, 131072")
                l1.back("s_cbranch_scc1")
            k(f"""
            v_mov_b32 v{vT1}, v{vT0}
            v_permlane32_swap_b32 v{vT0}, v{vT1}
            v_max_f32 v{vT0}, v{vT0}, v{vT1}
            """)
            for r in range(16):
                k(f"v_mul_f32 v{S[0]+r}, -1.0, v{vT0}")
                k(f"v_mov_b32 v{A+r}, 0")
            k(f"s_mov_b32 s{sOff}, 0")
            with k.loop(3) as l2:
                ldK(0, f"s{sOff}")
                ldV(0, f"s{sOff}")
                k(f"{MFMA} {v(S[3],16)}, {v(KB[0],4)}, {v(Q[3],4)}, {v(S[0],16)}")
                QK(3, 1)
                EX(3, 0, 16)
                PV(3, 0)
                PV(3, 1)
                k(f"s_add_u32 s{sOff}, s{sOff}, 2048")
                k(f"s_cmp_lt_u32 s{sOff}, 131072")
                k("s_nop 4")
                l2.back("s_cbranch_scc1")
            get_l()
        k(f"v_rcp_f32 v{vT1}, v{vT1}")
        for i in range(2):
            for r in range(8 * i, 8 * i + 8):
                k(f"v_mul_f32 v{A+r}, v{A+r}, v{vT1}")
            if i == 0:
                k(f"v_cvt_pk_bf16_f32 v{vT0}, v{A+6}, v{A+7}")
                k(f"v_cvt_pk_bf16_f32 v{vT2}, v{A+7}, v{A+6}")
                for r in range(3):
                    k(f"v_cvt_pk_bf16_f32 v{A+r}, v{A+2*r}, v{A+2*r+1}")
                k(f"v_alignbit_b32 v{A+3}, v{vTag}, v{vT2}, 16")
            else:
                for r in (6, 7, 4, 5):
                    k(f"v_cvt_pk_bf16_f32 v{A+r}, v{A+2*r}, v{A+2*r+1}")
                k(f"v_permlane32_swap_b32 v{A+6}, v{A+7}")
                k(f"v_alignbit_b32 v{A+7}, v{vTag}, v{vT0}, 16")
            k(f"buffer_store_dwordx4 {v(A+4*i,4)}, v{vL16}, {s(sWS,4)}, s{sOFs} offen offset:{1024*i}{OPT.get('so', SC)}", wr=["o"])
        stamp(10)
        k("s_cmp_ge_u32 s2, 224")
        with k.if_("s_cbranch_scc0"):
            endpgm(2)
        WO = 16
        OFr = 144
        fac = [208, 224]

        orot = OPT.get("orot", 1)
        wth = OPT.get("wth", 2)

        def rdWO(ns, th=None):
            for n in ns:
                hh, st = n >> 1, n & 1
                if orot and n == 8:
                    for a in (wA, wB, wC, wD):
                        k(f"v_subrev_u32 v{a}, s{sRot}, v{a}")
                for t in range(2):
                    if th is not None:
                        k(f"s_waitcnt lgkmcnt({th})")
                    for e in range(2):
                        x = st == 1 and e == 1
                        a = [[wA, wB], [wC, wD]][t][x]
                        k(f"ds_read_b64_tr_b16 {v(WO+8*n+4*t+2*e,2)}, v{a} offset:{(28*(hh&3 if orot else hh)+(8 if x else 16*st+8*e))*128}")

        def ldO(hh):
            k(f"s_xor_b32 s3, s{sOFl}, {2048*hh}")
            for i in range(2):
                k(f"buffer_load_dwordx4 {v(OFr+8*hh+4*i,4)}, v{vL16}, {s(sWS,4)}, s3 offen offset:{1024*i}{SC}")

        PX = 240

        def ldP(sc=SC):
            for c in range(4):
                k(f"buffer_load_dwordx4 {v(PX+4*c,4)}, v{vL16}, {s(sWS,4)}, s{sPx} offen offset:{1024*c}{sc}")

        def chkO(g, ng):
            D = [OFr + 8 * ng * g + 4 * i + 3 for i in range(2 * ng)]
            out = []
            for i in range(0, 2 * ng, 2):
                out += [E(k, f"v_xor_b32 v{D[i]}, s{sTagH}, v{D[i]}"), E(k, f"v_xor_b32 v{D[i+1]}, s{sTagH}, v{D[i+1]}"),
                        E(k, f"v_or3_b32 v{vT0}, v{D[i]}, v{D[i+1]}, {'0' if i == 0 else f'v{vT0}'}")]
            return out + [E(k, f"v_cmp_lt_u32 vcc, 0xffff, v{vT0}")]

        def chkP():
            out = []
            for c in range(4):
                out += [E(k, f"v_perm_b32 v{vCn}, v{PX+4*c+1}, v{PX+4*c}, s{sSel[2]}"),
                        E(k, f"v_xor_b32 v{vCn}, s{sTagH}, v{vCn}"),
                        E(k, f"v_or_b32 v{vT0}, {'0' if c == 0 else f'v{vT0}'}, v{vCn}")]
            return out + [E(k, f"v_cmp_ne_u32 vcc, 0, v{vT0}")]

        def retry(load, chk):
            k("s_cmp_lg_u64 vcc, 0")
            with k.if_("s_cbranch_scc0"):
                with k.loop([1, 2]) as lp:
                    load()
                    run([chk])
                    k(f"""
                    s_sub_u32 s{sCnt}, s{sCnt}, 1
                    s_cmp_lg_u64 vcc, 0
                    s_cselect_b32 s3, s{sCnt}, 0
                    s_cmp_gt_i32 s3, 0
                    """)
                    lp.back("s_cbranch_scc1")

        def mmO(g, ng):
            return [[E(k, f"{MFMA} {v(fac[t],16)}, {v(WO+8*n+4*t,4)}, {v(OFr+4*n,4)}, {'0' if n == 0 else v(fac[t],16)}")]
                    for n in range(2 * ng * g, 2 * ng * (g + 1)) for t in (1, 0)]

        nw0 = OPT.get("nw0", 16)
        PT = OFr
        uG, uSt, uPi, uBi = vLp, vIdx, vFd, vTc
        k(f"buffer_load_dword v{uG}, v{vG}, {s(sWS,4)}, s{sGl} offen{SC}")
        for d, o in ((uSt, vSt), (uPi, vPi), (uBi, vBi)):
            k(f"v_mov_b32 v{d}, v{o}")
        rdWO(range(nw0), wth)
        dstamp(4, 4)
        cnt_wait(0, LV(5), vCn, vCv)
        dstamp(4, 8)
        for c in range(4):
            for i in range(2):
                k(f"ds_read_b128 {v(PT+16*i+4*c,4)}, v{uBi} offset:{4096*i+1024*c}", wr=["pr"])
        k(f"v_mov_b32 v{vCv}, 0x100")
        for c in range(4):
            run([padd(PT + 4 * c, PT + 4 * c, PT + 16 + 4 * c, 4)])
            for i in range(2):
                k(f"v_perm_b32 v{PT+4*c+i}, v{PT+4*c+i}, v{vTag}, s{sSel[i]}")
        k("s_mov_b64 exec, 1")
        k(f"ds_add_u32 v{vCn}, v{vCv}")
        k("s_mov_b64 exec, -1")
        for c in range(4):
            k(f"buffer_store_dwordx4 {v(PT+4*c,4)}, v{vL16}, {s(sWS,4)}, s{sPxW} offen offset:{1024*c}{SC[:0 if OPT.get('pxl') else 9]}", wr=["px"])
        dstamp(4, 7)
        rdWO(range(nw0, 16))
        if OPT.get("om", 80):
            cnt_wait(5, 4, vCn, vCv)
        dstamp(4, 6)
        dstamp(5, 0)
        ng = OPT.get("ng", 2)
        na = OPT.get("na", 4)
        G = 8 // ng
        for hh in range(na):
            ldO(hh)
        dstamp(4, 5)
        k(f"s_mov_b32 s{sCnt}, {SPIN}")
        todo = [(lambda hh=hh: ldO(hh)) for hh in range(na, 8)] + [lambda: ldP("" if OPT.get("pxl") == 2 else SC)]
        run([chkO(0, ng)])
        for g in range(G):
            retry(lambda: [ldO(hh) for hh in range(ng * g, ng * g + ng)], chkO(g, ng))
            dstamp(5, 1 + 2 * g)
            mm = mmO(g, ng)
            h = len(mm) // 2
            spread(k, mm[:h], todo[:ng])
            dstamp(5, 2 + 2 * g)
            todo = todo[ng:]
            if g < G - 1:
                spread(k, mm[h:], chkO(g + 1, ng))
        assert not todo
        spread(k, mm[h:], chkP())
        stamp(11)
        for i in range(4):
            k(f"ds_write_b128 v{vIn}, {v(fac[1]+4*i,4)} offset:{1024*i}", wr=["xch"])
        retry(ldP, chkP())
        pre = [E(k, f"v_sub_f32 v{vCn}, 1.0, v{uG}"), E(k, f"v_sub_f32 v{vCv}, 1.0, v{uG}"),
               E(k, f"v_mov_b32 v{vT1}, v{uG}"), E(k, f"v_mov_b32 v{vT2}, v{uG}")]
        pre += [E(k, f"v_and_b32 v{PX+r}, 0xffffff00, v{PX+r}") for r in range(16) if r & 3 < 2]
        pre += [E(k, f"v_pk_mul_f32 {v(PX+r,2)}, {v(PX+r,2)}, {v(vCn,2)}") for r in range(0, 16, 2)]
        run([pre])
        if OPT.get("dbg") == 4:
            k(f"s_sub_u32 s3, {SPIN}, s{sCnt}")
            k(f"s_mul_i32 s3, s3, 100")
            k(f"s_add_u32 s{SST+2*3}, s{SST}, s3")
        a = fac[0]
        for r in range(0, 16, 2):
            k(f"v_pk_fma_f32 {v(a+r,2)}, {v(a+r,2)}, {v(vT1,2)}, {v(PX+r,2)}")
        k.need("xch")
        k("s_barrier")
        stamp(12)
        P, B, B2 = 48, 32, 64
        for i in range(4):
            k(f"ds_read_b128 {v(P+4*i,4)}, v{uPi} offset:{1024*i}")
            k(f"ds_read_b128 {v(B+4*i,4)}, v{uBi} offset:{1024*i}")
            k(f"ds_read_b128 {v(B2+4*i,4)}, v{uBi} offset:{4096+1024*i}")
        for q in range(2):
            for r in range(8 * q, 8 * q + 8, 2):
                k(f"v_pk_fma_f32 {v(a+r,2)}, {v(P+r,2)}, {v(vT1,2)}, {v(a+r,2)}")
            for r in range(8 * q, 8 * q + 8, 2):
                k(f"v_pk_add_f32 {v(B+r,2)}, {v(B+r,2)}, {v(B2+r,2)}")
            for r in range(8 * q, 8 * q + 8, 2):
                k(f"v_pk_add_f32 {v(a+r,2)}, {v(a+r,2)}, {v(B+r,2)}")
            for r in range(4):
                k(f"v_cvt_pk_bf16_f32 v{P+8*q+r}, v{a+8*q+2*r}, v{a+8*q+2*r+1}")
            k(f"v_permlane32_swap_b32 v{P+8*q}, v{P+8*q+2}")
            k(f"v_permlane32_swap_b32 v{P+8*q+1}, v{P+8*q+3}")
            k(f"buffer_store_dwordx4 {v(P+8*q,4)}, v{uSt}, {s(sOUT,4)}, 0 offen offset:{32*q}{OPT.get('ost', '')}")
        endpgm()

        role.else_()
        acc = [128, 144, 160, 176]
        NS = 7
        W6 = [192 + 4 * i for i in range(NS)]
        tmp = 220
        BA, BZ = 224, 228
        vD, wr0, wr1, vGW, vFd = 6, 7, 8, 9, 10
        sJ, sSt, sKH, sR2, sCT = sA, 4, 5, 6, 7
        k("s_setprio 2")
        k(f"""
        s_lshl_b32 s{sT1}, s{sFS}, 6
        v_lshlrev_b32 v{BA+1}, 1, v{vL}
        v_add_u32 v{BA+1}, s{sT1}, v{BA+1}
        global_load_ushort v{BA}, v{BA+1}, s[14:15]
        s_lshl_b32 s3, s{sLong}, 7
        v_add_u32 v{BA+3}, s3, v{BA+1}
        global_load_ushort v{BA+2}, v{BA+3}, s[14:15]
        s_sub_u32 s{sEe}, {448*3584}, s{sT1}
        """)
        srd(k, sW, 12, 13, f"s{sT1}", f"s{sEe}")
        k(f"""
        v_subrev_u32 v{vX0}, {64*896}, v{vX0}
        v_subrev_u32 v{vX1}, {64*896}, v{vX1}
        v_subrev_u32 v{vQ0}, {32*2688}, v{vQ0}
        v_subrev_u32 v{vQ1}, {32*2688}, v{vQ1}
        v_lshrrev_b32 v{wa[1]}, 1, v{vT0}
        v_lshlrev_b32 v{wa[1]}, 6, v{wa[1]}
        v_lshl_add_u32 v{wa[1]}, v{vT1}, 3, v{wa[1]}
        v_lshl_add_u32 v{wa[0]}, v{vT2}, 7, v{wa[1]}
        v_add_u32 v{wa[0]}, {L_W1A}, v{wa[0]}
        v_lshrrev_b32 v{vT2}, 5, v{vL}
        v_lshl_add_u32 v{vT2}, v{vT2}, 2, v{vT0}
        v_lshl_add_u32 v{wr0}, v{vT2}, 7, v{wa[1]}
        v_xor_b32 v{wa[1]}, 64, v{wa[0]}
        v_add_u32 v{wr0}, s{sL2}, v{wr0}
        s_lshr_b32 s3, s{sJ}, 1
        s_lshl_b32 s3, s3, 6
        v_xor_b32 v{wr0}, s3, v{wr0}
        v_xor_b32 v{wr1}, 64, v{wr0}
        v_lshrrev_b32 v{vT0}, 3, v{vL}
        v_mul_u32_u24 v{vD}, 896, v{vT0}
        v_and_b32 v{vT0}, 127, v{vW}
        v_add_u32 v{vD}, v{vD}, v{vT0}
        s_cmp_eq_u32 s{sG}, 3
        """)
        with k.if_("s_cbranch_scc0"):
            srd(k, sW2, 18, 19, 0, 896)
            k(f"""
            s_add_u32 s3, s{sC}, 5
            s_lshl_b32 s3, s3, 7
            v_add_u32 v{vT0}, s3, v{vL16}
            v_subrev_u32 v{vT1}, 896, v{vT0}
            v_min_u32 v{vT0}, v{vT0}, v{vT1}
            v_subrev_u32 v{vT1}, 896, v{vT0}
            v_min_u32 v{vT0}, v{vT0}, v{vT1}
            s_lshr_b32 s3, s{sL2}, 1
            s_add_u32 m0, s3, {L_GW}
            v_lshrrev_b32 v{vGW}, 5, v{vL}
            v_lshlrev_b32 v{vGW}, 4, v{vGW}
            v_add_u32 v{vGW}, m0, v{vGW}
            """)
            k(f"buffer_load_dwordx4 v{vT0}, {s(sW2,4)}, 0 offen lds", wr=["gw"])
        k(f"""
        s_mul_i32 s{sSt}, s{sTT}, 56
        s_add_u32 s{sSt}, s{sSt}, s{sFS}
        s_lshl_b32 s{sSt}, s{sSt}, 11
        s_add_u32 s{sSt}, s{sSt}, {WS_ACT}
        {fmap(sR2, sKH)}
        s_lshr_b32 s{sCT}, s2, 5
        s_lshl_b32 s{sT0}, s{sKH}, 2
        s_add_u32 s{sT0}, s{sT0}, s{sJ}
        s_mul_i32 s{sT0}, s{sT0}, {224*896}
        s_lshl_b32 s3, s{sCT}, 7
        s_add_u32 s{sT0}, s{sT0}, s3
        s_sub_u32 s{sT1}, {224*896}, s3
        s_cmp_lt_u32 s2, 224
        s_cselect_b32 s{sT1}, s{sT1}, 0
        """)
        srd(k, sW2, 16, 17, f"s{sT0}", f"s{sT1}")
        k(f"""
        s_mul_i32 s{sT0}, s{sJ}, {16*896}
        s_add_u32 s{sT0}, s{sT0}, s3
        s_sub_u32 s{sT1}, {448*896}, s{sT0}
        s_cmp_lt_u32 s2, 224
        s_cselect_b32 s{sT1}, s{sT1}, 0
        """)
        srd(k, sWO, 8, 9, f"s{sT0}", f"s{sT1}")
        for r in range(10):
            k(f"v_mov_b32 v{BZ+r}, 0")
        k(f"""
        v_mov_b32 v{vT0}, 0x3f80
        v_cmp_gt_u32 vcc, 32, v{vL}
        v_cndmask_b32 v{BZ+2}, 0, v{vT0}, vcc
        v_cndmask_b32 v{BZ+6}, v{vT0}, v{BZ+6}, vcc
        v_mov_b32 v{BA+1}, 0
        v_mov_b32 v{BA+3}, 0
        """)

        W2ROW = [0, 1] + list(range(7, 19))

        TH = OPT.get("th", 5)

        def thr():
            return [E(k, f"s_waitcnt vmcnt({TH - 1})")] if TH else []

        def dma_rows(srdn, items, gstride, tag):
            out = []
            for st, row in items:
                out += [[E(k, f"s_add_u32 m0, s{sL2}, {8192*row}"), E(k, f"s_mov_b32 s{sSo}, {st*gstride}"), *thr(),
                         E(k, f"buffer_load_dwordx4 v{vD}, {s(srdn,4)}, s{sSo} offen lds", wr=[tag])],
                        [E(k, f"s_mov_b32 s{sSo}, {st*gstride+8*896-1024}"), *thr(),
                         E(k, f"buffer_load_dwordx4 v{vD}, {s(srdn,4)}, s{sSo} offen offset:1024 lds", wr=[tag])]]
            return out

        def dma_w2(sts, tag):
            return dma_rows(sW2, [(st, W2ROW[st]) for st in sts], 16 * 896, tag)

        st8 = dict(base=0)
        for c in range(7):
            if c == 0:
                k.need("ch0")
            else:
                k.need(f"rd{c-1}", f"ch{c}")
            k("s_barrier")
            if c in (0, 6):
                stamp(2 + c // 3)
            rdx = rebase(st8, c, xa) + [
                E(k, f"ds_read_b128 {v(X+16*c+4*st,4)}, v{xa[st]} offset:{SLOTS[c%3]-st8['base']}", wr=[f"rd{c}"]) for st in range(4)]
            if c <= 4:
                dm = dma_chunk(c + 2, (0, 1))
                run(dm[:2] + [rdx] + dm[2:])
            else:
                run([rdx])
                k(f"s_cmp_eq_u32 s{sLong}, 1")
                with k.if_("s_cbranch_scc0") as lg:
                    run(dma_w1(sW, L_W1A, range(4), "wa1") if c == 5 else dma_w1(sW, L_W1A, [4, 5, 6], "wa2"))
                    k.need("ch6" if c == 5 else "wa1")
                    if c == 5:
                        lg.else_()
                        k.need("ch6")
            if c == 1:
                make_tag()
            if c == 2:
                for t, w in enumerate((BZ + 2, BZ + 6, BZ, BZ + 4)):
                    k(f"{MFMA} {v(acc[t],16)}, {v(BA,4)}, {v(w,4)}, 0")

        def act_store(t):
            out = []
            for i in range(2):
                if OPT.get("ths", 1):
                    out += thr()
                out += [E(k, f"buffer_store_dwordx4 {v(acc[t]+4*i,4)}, v{vL16}, {s(sWS,4)}, s{sSt} offen offset:{1024*i}{SC}", wr=["act"])]
            return out + [E(k, f"s_add_u32 s{sSt}, s{sSt}, 2048")]

        D = 5

        def rd2(m):
            t, n = divmod(m, 28)
            j, st = n >> 2, n & 3
            return [E(k, f"ds_read_b64_tr_b16 {v(W6[m%NS]+2*e,2)}, v{wa[t%2]} offset:{8192*j+(16*st+4*e)*128}", wr=["wrd", f"w{m}"])
                    for e in range(2)]

        def tile(t, lim, fill, hooks={}):
            groups = []
            for n in range(28):
                m = 28 * t + n
                g = [E(k, f"{MFMA} {v(acc[t],16)}, {v(W6[m%NS],4)}, {v(X+4*n,4)}, {v(acc[t],16)}")]
                if n & 1 and m + 2 < lim:
                    g += [lambda m=m: k.need(f"w{m+2}")]
                if n in hooks:
                    g += [hooks[n]]
                if m + D < lim:
                    g += rd2(m + D)
                groups.append(g)
            run(groups[:2])
            spread(k, groups[2:26], fill)
            run(groups[26:])

        def mark(*tags, val=1):
            k.need(*tags)
            cnt_add(0, vT0, vT1, val)

        k(f"s_cmp_eq_u32 s{sLong}, 1")
        with k.if_("s_cbranch_scc0") as lg:
            mark("wa1", "rd6")
            cnt_wait(0, LV(1), vT0, vT1)
            stamp(3)
            for m in range(D):
                run([rd2(m)])
            tile(0, 56, [],
                 {OPT.get("m2", 8): lambda: mark("wa2"), 16 - D: lambda: cnt_wait(0, LV(2), vT0, vT1)})
            dstamp(1, 7)
            tile(1, 56, mish_ops(k, acc[0], tmp))
            dstamp(1, 8)
            lg.else_()
            mark("rd6", val=2)
            stamp(3)
            k(f"s_cmp_eq_u32 s{sG}, 3")
            with k.if_("s_cbranch_scc0"):
                k.need("gw")
                rd = lambda n: k(f"ds_read_b128 {v(W6[n%6],4)}, v{vGW} offset:{32*n}")
                for n in range(4):
                    rd(n)
                a = acc[0]
                for n in range(28):
                    k(f"{MFMA} {v(a,16)}, {v(W6[n%6],4)}, {v(X+4*n,4)}, {'0' if n == 0 else v(a,16)}")
                    if n + 4 < 28:
                        rd(n + 4)
                k(f"""
                v_mul_f32 v{a}, {f32(-LOG2E)}, v{a}
                v_exp_f32 v{a}, v{a}
                v_add_f32 v{a}, 1.0, v{a}
                v_rcp_f32 v{a}, v{a}
                v_and_b32 v{a+1}, 31, v{vL}
                v_lshlrev_b32 v{a+1}, 2, v{a+1}
                """)
        for r in wa[:2]:
            k(f"v_subrev_u32 v{r}, {L_W1A - L_W1B}, v{r}")
        cnt_wait(1, 4, vT0, vT1, 0xff, prio=2)
        stamp(5)
        for m in range(56, 56 + D):
            run([rd2(m)])
        tile(2, 112, mish_ops(k, acc[1], tmp), {16 - D: lambda: cnt_wait(1, 0x400, vT0, vT1, 0xff00)})
        dstamp(1, 9)
        tile(3, 112, mish_ops(k, acc[2], tmp))
        dstamp(1, 10)
        mark("wrd")
        run([mish_ops(k, acc[3], tmp)])
        dstamp(1, 11)
        cnt_wait(0, LV(3), vT0, vT1)
        cnt_wait(1, 0x40000, vT0, vT1)
        k("s_setprio 0")
        dstamp(1, 12)
        dstamp(2, 7)
        k(f"s_cmp_eq_u32 s{sLong}, 1")
        with k.if_("s_cbranch_scc0") as lg:
            run([act_store(0), act_store(1)])
            lg.else_()
            k(f"s_cmp_eq_u32 s{sG}, 3")
            with k.if_("s_cbranch_scc0"):
                k(f"""
                s_lshl_b32 s3, s{sTT}, 7
                s_add_u32 s{sT0}, s3, {WS_G}
                """)
                k(f"buffer_store_dword v{acc[0]}, v{acc[0]+1}, {s(sWS,4)}, s{sT0} offen{SC}", wr=["act"])
        run([act_store(2), act_store(3)])
        dstamp(2, 8)
        k(f"s_add_u32 s10, s10, {WS_FA}")
        k("s_setprio 2")
        k("s_cmp_ge_u32 s2, 224")
        with k.if_("s_cbranch_scc0"):
            k.need("act")
            k("s_setprio 2")
            flag_last(3, "s10", vT0, vT1)
            k("s_lshl_b32 s3, s2, 2")
            k(f"s_add_u32 s3, s3, s{sJ}")
            k("s_cmp_eq_u32 s3, 1023")
            with k.if_("s_cbranch_scc0"):
                k(f"v_lshlrev_b32 v{vT0}, 9, v{vL}")
                k(f"v_add_u32 v{vT0}, {WS_FQ}, v{vT0}")
                poll(vT0, 192, -1, (0, 128, 256, 384))
                flag("0")
            k("s_barrier")
            endpgm(2)
        vTa = 250
        RING = 192
        sAo = [8, 9, 11, 12]
        sGl = 15
        k(f"""
        s_lshl_b32 s{sT0}, s{sKH}, 2
        s_add_u32 s{sT0}, s{sT0}, s{sJ}
        s_mul_i32 s{sT0}, s{sT0}, 7
        s_mul_i32 s3, s{sR2}, 224
        s_add_u32 s3, s3, s{sT0}
        s_add_u32 s3, s3, s{sCT}
        s_lshl_b32 s3, s3, 11
        s_add_u32 s3, s3, {WS_ACT}
        v_lshrrev_b32 v{vT0}, 4, v{vL}
        v_mul_u32_u24 v{vT0}, {56*2048 - 2048}, v{vT0}
        v_lshl_add_u32 v{vT0}, v{vL}, 7, v{vT0}
        v_add_u32 v{vTa}, s3, v{vT0}
        s_lshl_b32 s3, s{sKH}, 7
        s_add_u32 s3, s3, s{sR2}
        s_lshl_b32 s3, s3, 7
        s_add_u32 s3, s3, {WS_FA}
        v_lshl_add_u32 v{vT2}, v{vL}, 11, s3
        s_lshl_b32 s3, s{sR2}, 7
        s_add_u32 s3, s3, {WS_FA + 48*128}
        v_writelane_b32 v{vT2}, s3, 8
        s_lshl_b32 s{sT1}, s{sR2}, 1
        s_add_u32 s{sT1}, s{sT1}, s{sKH}
        s_lshl_b32 s{sT1}, s{sT1}, 1
        s_and_b32 s3, s{sJ}, 1
        s_add_u32 s{sT1}, s{sT1}, s3
        s_lshl_b32 s{sGl}, s{sT1}, 7
        s_add_u32 s{sGl}, s{sGl}, {WS_G}
        """)
        for q in range(4):
            k(f"""
            s_xor_b32 s3, s{sT1}, {3-q}
            s_mul_i32 s3, s3, 56
            s_add_u32 s3, s3, s{sT0}
            s_lshl_b32 s3, s3, 11
            s_add_u32 s{sAo[q]}, s3, {WS_ACT}
            """)
        vO = [11, 9, 0, 1]
        for i in range(4):
            k(f"""
            s_xor_b32 s3, s{sJ}, {i}
            s_mul_i32 s3, s3, 12288
            s_add_u32 s3, s3, {L_FRED + 4096*max(i-1, 0)}
            v_add_u32 v{vO[i]}, s3, v{vL16}
            """)
        wr = [[wr0, wr1], [vTa + 1, vTa + 2], [vTa + 3, vTa + 4]]
        for i in (1, 2):
            for t in range(2):
                k(f"v_add_u32 v{wr[i][t]}, {65536*i}, v{wr[0][t]}")
        W2 = X
        k("s_setprio 0")
        nfa = OPT.get("nfa", 3)
        for p in range(nfa):
            run(dma_w2([p], f"w2{p}"))
        k.need("act")
        k("s_setprio 2")
        flag_last(3, "s10", vT0, vT1)
        k("s_setprio 0")
        stamp(6)

        def rdw2(st):
            row = W2ROW[st]
            for t in range(2):
                for e in range(2):
                    k(f"ds_read_b64_tr_b16 {v(W2+8*st+4*t+2*e,2)}, v{wr[row // 8][t]} offset:{8192*(row % 8)+8*e*128}",
                      wr=["r0" if st < 2 else "r1"], rd=[f"w2{st}"])
        lag = OPT.get("lag", 3)
        for p in range(nfa, 21):
            if p < 14:
                run(dma_w2([p], f"w2{p}"))
            else:
                if p == 14:
                    dstamp(0, 7)
                    dstamp(2, 9)
                if p == 19:
                    k.need("r0")
                run(dma_rows(sWO, [((p - 12) % 7,) * 2], 64 * 896, "wo"))
            if p == nfa:
                for st in range(p - lag):
                    rdw2(st)
            if 0 <= p - lag < 14:
                rdw2(p - lag)
        if OPT.get("ct", 0):
            k(f"s_cmp_eq_u32 s{sWv}, 7")
            with k.if_("s_cbranch_scc0"):
                k.label("CT0")
                k(f"""
                s_getpc_b64 {s(sM, 2)}
                s_sub_u32 s{sM}, s{sM}, CT0+4-KST
                s_subb_u32 s{sM+1}, s{sM+1}, 0
                s_lshr_b32 s3, s2, 3
                s_mul_i32 s3, s3, {per + 2}
                v_lshrrev_b32 v{vFd}, 4, v{vL16}
                v_min_u32 v{vFd}, {per + 1}, v{vFd}
                v_add_u32 v{vFd}, s3, v{vFd}
                v_lshlrev_b32 v{vFd}, 7, v{vFd}
                v_min_u32 v{vFd}, {max(code_size - 64, 0) & ~3}, v{vFd}
                global_load_dword v{vFd}, v{vFd}, {s(sM, 2)}
                """)
        k("s_setprio 2")
        dstamp(2, 12)
        poll(vT2, vFd, "0x1ff")
        dstamp(0, 8)

        def slot(f):
            return (acc[0] + 4 * f if f < 4 else acc[2] + 4 * (f - 4)) if f < 8 else RING + 4 * ((f - 8) % 16)

        def ldA(f):
            q, st = divmod(f, 14)
            if st % 4 == 0:
                k(f"s_add_u32 s{sA}, s{sAo[q]}, {st*1024}")
            if f < 24:
                run([thr()])
            k(f"buffer_load_dwordx4 {v(slot(f),4)}, v{vL16}, {s(sWS,4)}, s{sA} offen offset:{(st%4)*1024}{SC}", wr=[f"a{f}"])

        def send(i):
            return [E(k, f"ds_write_b128 v{vO[i]}, {v(acc[i]+4*c,4)} offset:{1024*c}", wr=["fw"]) for c in range(4)]

        k("s_setprio 0")
        if OPT.get("ta", 1):
            k(f"buffer_load_dword v{vFd}, v{vTa}, {s(sWS,4)}, 0 offen{SC}")
        for f in range(24):
            ldA(f)
        k.need("wo", "r1")
        dstamp(0, 9)
        k("s_barrier")
        k(f"s_setprio {OPT.get('fprio', 2)}")
        dstamp(0, 10)
        dstamp(3, 5)
        k(f"v_mov_b32 v{vT0}, {L_CNT}")
        k(f"v_mov_b32 v{vT2}, 1")

        def mark2(*tags, word=0):
            k.need(*tags)
            k("s_mov_b64 exec, 1")
            k(f"ds_add_u32 v{vT0}, v{vT2} offset:{4*word}")
            k("s_mov_b64 exec, -1")

        def peek():
            k(f"ds_read_b32 v{vT1}, v{vT0}")

        def check(lv):
            k(f"v_readfirstlane_b32 s3, v{vT1}")
            k(f"s_cmp_lt_u32 s3, {lv}")
            with k.if_("s_cbranch_scc0"):
                cnt_wait(0, lv, vT0, vT1)

        def recv(i, c):
            k(f"ds_read_b128 {v(acc[i]+4*c,4)}, v{vO[0]} offset:{4096*(i-1)+1024*c}", wr=["fr"])

        ev = {}
        at = lambda m, fn: ev.setdefault(m, []).append(fn)
        quad = lambda d, a, c: (lambda: run([padd(acc[d] + 4 * c, acc[d] + 4 * c, acc[a] + 4 * c, 4)]))
        fe = OPT.get("fe", 6)

        def xfer(m, sw, lv):
            for i in (1, 3):
                for fn in send(i):
                    at(m, fn)
                    m += sw
            m += 2 - sw
            at(m, lambda: mark2("fw"))
            at(m + 1, peek)
            m += 3
            at(m, lambda: check(lv))
            for i in (1, 3):
                for c in range(4):
                    at(m, lambda i=i, c=c: recv(i, c))
                    m += c & 1
            for c in range(4):
                at(m + 1 + c, quad(1, 3, c))
            return m + 5
        assert xfer(28, OPT.get("sw", 2), LV(4)) <= 56
        for c in range(4):
            at(57 + c // 2, quad(0, 1, c))
        w1 = OPT.get("w1", 1)
        for i, fn in enumerate(send(2) + send(0)):
            at(56 + w1 * i, fn)
        at(58 + w1 * 7, lambda: mark2("fw"))
        om = OPT.get("om", 80)
        if om:
            at(om, lambda: mark2(word=5))
        c1 = OPT.get("c1", 86)
        at(c1 - 2, peek)
        at(c1, lambda: check(0x800))
        m = xfer(c1, OPT.get("sw1", 1), 0x400 + LV(6))
        scale = lambda i, c: (lambda: [k(f"v_mul_f32 v{acc[i]+r}, v{acc[i]+r}, v{vFd}") for r in range(4 * c, 4 * c + 4)])
        for c in range(4):
            at(m - 4 + c, scale(1, c))
        assert m <= 113 - fe
        for c, fn in enumerate(send(2)):
            at(113 - fe + c, scale(2, c))
            at(113 - fe + c, fn)

        def ldG():
            k(f"v_bfe_u32 v{vFd}, v{vL16}, 2, 7")
            k(f"buffer_load_dword v{vFd}, v{vFd}, {s(sWS,4)}, s{sGl} offen{SC}")
        at(2, ldG)
        at(70, lambda: k(f"v_sub_f32 v{vFd}, 1.0, v{vFd}"))
        il = lambda o, f0, sts: [(ai, st, ai >> 1, f0 + st, ai == o[-1]) for st in sts for ai in o]
        hold = lambda l: [x[:4] + (False,) for x in l]
        seq = il((1, 3), 0, range(14)) + il((2, 0), 14, range(14))
        seq += hold(il((3,), 28, range(3))) + il((1,), 28, range(3)) + il((1, 3), 28, range(3, 14))
        seq += il((2, 0), 42, range(14 - fe)) + il((2,), 42, range(14 - fe, 14)) + il((0,), 42, range(14 - fe, 14))
        assert len(seq) == 112
        for m, (ai, st, t, f, free) in enumerate(seq):
            a = acc[ai]
            k(f"{MFMA} {v(a,16)}, {v(W2+8*st+4*t,4)}, {v(slot(f),4)}, {'0' if st == 0 else v(a,16)}")
            if m + 1 < 112:
                k.need(f"a{seq[m+1][3]}")
            if free and 24 <= f + 16 < 56:
                ldA(f + 16)
            for fn in ev.get(m, []):
                fn()
            if m % 16 == 15:
                dstamp(3, 6 + m // 16)
            d0, dn = OPT.get("d0", 55), OPT.get("dn", 4)
            if m >= d0 and (m - d0) % dn == 0 and (m - d0) // dn < 8:
                dstamp(4, 5 + (m - d0) // dn)
        dstamp(0, 11)
        for m in sorted(ev):
            if m >= 112:
                for fn in ev[m]:
                    fn()
        for c in range(4):
            for r in range(4 * c, 4 * c + 4):
                k(f"v_fma_f32 v{acc[0]+r}, v{acc[0]+r}, v{vFd}, v{acc[1]+r}")
            send(0)[c]()
        k.need("fw")
        dstamp(0, 12)
        k("s_barrier")
        endpgm(1)
    return k


def main():
    for a in sys.argv[2:]:
        kk, vv = a.split("=")
        try:
            vv = int(vv)
        except ValueError:
            vv = " " + vv.replace("+", " ")
        OPT[kk] = vv
    out = sys.argv[1]
    open(out, "w").write(build([(NAME + "_kernel", gen, 256, 512, 163840)]))


if __name__ == "__main__":
    main()
```

```python
import math, struct, sys, os
sys.path.insert(0, os.path.dirname(os.path.abspath(__file__)))
from asmlib import *
from gen import f32, MFMA, SMF, LOG2E, NAME, srd, spread, E, mish_ops, build

OPT = dict()
WS_FQ, WS_FA, WS_FO, WS_FP, WS_G = 0x8000, 0x10000, 0x20000, 0x40000, 0x60000
WS_QKV, WS_ACT, WS_OF, WS_PX, WS_DBG, WS_SIZE = 0x100000, 0x700000, 0xE00000, 0x1000000, 0x1400000, 0x1500000
SLOT = 32768
SLOTS = [0, 32768, 65536]
L_W1B = 32768
L_W1A, L_FRED, L_ORED, L_CNT, L_GW = 98304, 57344, 106496, 155648, 159744
SST = 74
SC = " sc1"
SPIN = 1 << 16


def gen(code_size):
    k = Prog("f5")
    sX, sQ, sW, sWS, sWA, sW2, sWO = 24, 28, 32, 36, 40, 44, 48
    sWv, sRB, sG, sTT, sFS, sLong, sO0, sT0, sT1, sL2, sL1, sC, sSo, sTag, sCnt, sA, sM, _, sB, sD, sEe, sF = range(52, 74)
    vL, vL16, vT0, vT1, vT2 = 1, 2, 3, 4, 5
    vX0, vX1, vQ0, vQ1, vW = 240, 241, 242, 243, 244
    xa = [245, 246, 247, 248]
    wa = [249, 250, 251]
    vPad, vE, vPF = 252, 253, 254
    X = 16
    vTag = 12

    def dstamp(lvl, i):
        if OPT.get("dbg", 0) == lvl:
            stamp(i)

    def stamp(i):
        if OPT.get("stamp") == 2:
            k(f"s_memtime {s(SST + 2 * i, 2)}")
        elif OPT.get("stamp"):
            k(f"s_memrealtime {s(SST + 2 * i, 2)}")

    def endpgm(role=0):
        if OPT.get("pad"):
            k("s_waitcnt vmcnt(0)")
            stamp(13)
            ps = OPT.get("ps%d" % role, 0)
            k(f"s_add_u32 s{SST}, s{SST + 2 * ps}, {OPT['pad'] * 100}")
            if "padwg" in OPT:
                k(f"s_cmp_eq_u32 s2, {OPT['padwg']}")
                k(f"s_cselect_b32 s{SST}, s{SST}, s{SST + 2 * ps}")
            with k.loop([1, 2]) as lp:
                k(f"s_memrealtime {s(SST + 2, 2)}")
                k(f"s_sub_u32 s3, s{SST + 2}, s{SST}")
                k("s_cmp_lt_i32 s3, 0")
                lp.back("s_cbranch_scc1")
            k("s_endpgm")
            return
        if OPT.get("stamp"):
            k("s_waitcnt vmcnt(0)")
            stamp(13)
            k(f"""
            s_lshl_b32 s3, s2, 3
            s_add_u32 s3, s3, s{sWv}
            s_lshl_b32 s3, s3, 6
            s_add_u32 s3, s3, {WS_DBG}
            v_mov_b32 v1, 0
            """)
            for i in range(14):
                k(f"v_mov_b32 v2, s{SST + 2 * i}")
                k(f"buffer_store_dword v2, v1, {s(sWS, 4)}, s3 offen offset:{4 * i}")
        k("s_endpgm")

    def poll(vA, vD, mask, offs=(0,), prio=None, req=None):
        k(f"s_mov_b32 s{sCnt}, {SPIN}")
        if prio is not None:
            k("s_setprio 0")
        k(f"s_mov_b64 exec, {mask}")
        with k.loop([1, 2]) as lp:
            for i, o in enumerate(offs):
                if OPT.get("pa"):
                    k(f"v_mov_b32 v{vD+i}, 0")
                    k(f"buffer_atomic_or v{vD+i}, v{vA}, {s(sWS,4)}, 0 offen offset:{o} sc0 sc1")
                else:
                    k(f"buffer_load_dword v{vD+i}, v{vA}, {s(sWS,4)}, 0 offen offset:{o}{OPT.get('pf', SC)}")
            k(f"s_sub_u32 s{sCnt}, s{sCnt}, 1")
            k(f"v_cmp_ne_u32 vcc, s{sTag}, v{vD}")
            for i in range(1, len(offs)):
                k(f"v_cmp_ne_u32 {s(sM,2)}, s{sTag}, v{vD+i}")
                k(f"s_or_b64 vcc, vcc, {s(sM,2)}")
            k(f"""
            {"s_cmp_lg_u64 vcc, 0" if req is None else f"s_and_b32 s3, vcc_lo, {req}"}
            s_cselect_b32 s3, s{sCnt}, 0
            s_cmp_lg_u32 s3, 0
            """)
            lp.back("s_cbranch_scc1")
        if prio is not None:
            k(f"s_setprio {prio}")
        k("s_mov_b64 exec, -1")

    def flag(so):
        k("s_mov_b64 exec, 0xff")
        k(f"buffer_store_dwordx4 {v(vTag,4)}, v{vL16}, {s(sWS,4)}, {so} offen{OPT.get('ff', SC)}")
        k("s_mov_b64 exec, -1")

    def flag_last(which, so, va, vb):
        k(f"v_mov_b32 v{va}, {L_CNT}")
        k(f"v_mov_b32 v{vb}, 1")
        k("s_mov_b64 exec, 1")
        k(f"ds_add_rtn_u32 v{vb}, v{va}, v{vb} offset:{4*which}")
        k("s_mov_b64 exec, -1")
        k(f"v_readfirstlane_b32 s3, v{vb}")
        k("s_cmp_eq_u32 s3, 3")
        with k.if_("s_cbranch_scc0"):
            flag(so)

    def cnt_add(which, va, vb, val=1):
        k(f"v_mov_b32 v{va}, {L_CNT}")
        k(f"v_mov_b32 v{vb}, {val}")
        k("s_mov_b64 exec, 1")
        k(f"ds_add_u32 v{va}, v{vb} offset:{4*which}")
        k("s_mov_b64 exec, -1")

    def cnt_wait(which, target, va, vb, mask=None, prio=None):
        k(f"v_mov_b32 v{va}, {L_CNT}")
        if prio is not None:
            k("s_setprio 0")
        k(f"s_mov_b32 s{sCnt}, {SPIN * 16}")
        with k.loop([1, 2]) as lp:
            k(f"""
            ds_read_b32 v{vb}, v{va} offset:{4*which}
            s_sub_u32 s{sCnt}, s{sCnt}, 1
            v_readfirstlane_b32 s3, v{vb}
            {f"s_and_b32 s3, s3, {mask}" if mask else ""}
            s_cmp_lt_u32 s3, {target}
            s_cselect_b32 s3, s{sCnt}, 0
            s_cmp_lg_u32 s3, 0
            """)
            lp.back("s_cbranch_scc1")
        if prio is not None:
            k(f"s_setprio {prio}")

    def padd(d, a, b, n=16, pk=False):
        if pk:
            return [E(k, f"v_pk_add_f32 {v(d+r,2)}, {v(a+r,2)}, {v(b+r,2)}") for r in range(0, n, 2)]
        return [E(k, f"v_add_f32 v{d+r}, v{a+r}, v{b+r}") for r in range(n)]

    def fmap(r2, kh):
        if OPT.get("loc", 1):
            return f"""s_and_b32 s{r2}, s2, 7
            s_lshl_b32 s{r2}, s{r2}, 1
            s_bfe_u32 s3, s2, 0x10003
            s_add_u32 s{r2}, s{r2}, s3
            s_bfe_u32 s{kh}, s2, 0x10004"""
        return f"""s_bfe_u32 s{r2}, s2, 0x20001
            s_lshl_b32 s{r2}, s{r2}, 2
            s_bfe_u32 s3, s2, 0x20003
            s_add_u32 s{r2}, s{r2}, s3
            s_and_b32 s{kh}, s2, 1"""

    def tr_parts(r, p):
        k(f"""
        v_bfe_u32 v{p}, v{vL}, 4, 1
        v_and_b32 v{r}, 3, v{vL}
        v_lshl_add_u32 v{p}, v{p}, 2, v{r}
        v_bfe_u32 v{r}, v{vL}, 2, 2
        """)

    k.label("KST")
    k("s_load_dwordx16 s[4:19], s[0:1], 0")
    k("s_load_dwordx2 s[20:21], s[0:1], 80")
    k("s_load_dwordx2 s[22:23], s[0:1], 64")
    k("s_cmp_ge_u32 s2, 256")
    with k.if_("s_cbranch_scc0"):
        k("s_endpgm")
    stamp(0)
    k(f"""
    v_lshrrev_b32 v{vT0}, 6, v0
    v_and_b32 v{vL}, 63, v0
    s_getpc_b64 {s(sM, 2)}
    v_readfirstlane_b32 s{sWv}, v{vT0}
    """)
    nl = code_size // 128 + 1
    per = (nl + 31) // 32
    assert per <= 64
    k(f"s_cmp_eq_u32 s{sWv}, 7")
    with k.if_("s_cbranch_scc0"):
        k(f"""
        s_lshr_b32 s3, s2, 3
        s_mul_i32 s3, s3, {per}
        v_min_u32 v{vPF}, {per - 1}, v{vL}
        v_add_u32 v{vPF}, s3, v{vPF}
        v_lshlrev_b32 v{vPF}, 7, v{vPF}
        v_min_u32 v{vPF}, {max(code_size - 64, 0) & ~3}, v{vPF}
        global_load_dword v{vPF}, v{vPF}, {s(sM, 2)}
        """)
    k(f"""
    s_and_b32 s3, s2, 4
    s_lshl_b32 s3, s3, 1
    s_bfe_u32 s{sRB}, s2, 0x30003
    s_add_u32 s{sRB}, s{sRB}, s3
    s_and_b32 s3, s2, 3
    s_lshl_b32 s3, s3, 2
    s_lshr_b32 s{sG}, s2, 6
    s_add_u32 s{sG}, s{sG}, s3
    s_add_u32 s{sC}, s{sRB}, s{sG}
    s_mul_i32 s3, s{sC}, 37
    s_lshr_b32 s3, s3, 8
    s_mul_i32 s3, s3, 7
    s_sub_u32 s{sC}, s{sC}, s3
    s_and_b32 s{sA}, s{sWv}, 3
    s_lshl_b32 s{sTT}, s{sRB}, 2
    s_add_u32 s{sTT}, s{sTT}, s{sA}
    s_lshl_b32 s{sL2}, s{sWv}, 11
    s_mul_i32 s{sT0}, s{sG}, 168
    s_bitcmp1_b32 0x1248, s{sG}
    s_cselect_b32 s{sLong}, 0, 1
    s_cselect_b32 s3, 15, 127
    s_and_b32 s{sO0}, s{sT0}, s3
    s_sub_u32 s{sT0}, s{sT0}, s{sO0}
    v_lshrrev_b32 v{vT0}, 3, v{vL}
    s_lshl_b32 s3, s{sWv}, 4
    v_add_u32 v{vT1}, s3, v{vT0}
    v_mul_u32_u24 v{vX0}, 896, v{vT1}
    v_lshrrev_b32 v{vT1}, 4, v{vL}
    v_and_b32 v{vT2}, 7, v{vL}
    v_xor_b32 v{vX1}, v{vT2}, v{vT1}
    v_lshl_add_u32 v{vQ0}, v{vX1}, 4, v{vX0}
    v_xor_b32 v{vX1}, 4, v{vX1}
    v_lshl_add_u32 v{vX1}, v{vX1}, 4, v{vX0}
    v_add_u32 v{vX1}, {8*896-1024}, v{vX1}
    v_mov_b32 v{vX0}, v{vQ0}
    s_lshl_b32 s3, s{sWv}, 3
    v_add_u32 v{vT0}, s3, v{vT1}
    v_mul_u32_u24 v{vQ0}, 2688, v{vT0}
    v_lshlrev_b32 v{vT0}, 2, v{vT1}
    v_and_b32 v{vT2}, 15, v{vL}
    v_xor_b32 v{vT0}, v{vT0}, v{vT2}
    v_lshl_add_u32 v{vQ0}, v{vT0}, 4, v{vQ0}
    v_add_u32 v{vQ1}, {4*2688-1024}, v{vQ0}
    v_mov_b32 v{vE}, 0
    s_mul_i32 s{sB}, s{sRB}, {128*896}
    s_sub_u32 s{sD}, {448*2688}, s{sT0}
    """)
    srd(k, sX, 4, 5, f"s{sB}", 128 * 896)
    srd(k, sQ, 6, 7, f"s{sT0}", f"s{sD}")

    def nxt():
        return [E(k, f"s_add_u32 s{sC}, s{sC}, 1"), E(k, f"s_cmp_eq_u32 s{sC}, 7"), E(k, f"s_cselect_b32 s{sC}, 0, s{sC}")]

    def dma_chunk(c, halves=(0,)):
        so = SLOTS[c % 3]
        t = dict(wr=[f"ch{c}"])
        out = []
        for hf in halves:
            out += [
                [E(k, f"s_add_u32 m0, s{sL2}, {so+8192*hf}"),
                 E(k, f"s_lshl_b32 s{sSo}, s{sC}, 7" if hf == 0 else f"s_add_u32 s{sSo}, s{sSo}, {64*896}"),
                 E(k, f"buffer_load_dwordx4 v{vX0}, {s(sX,4)}, s{sSo} offen lds", **t)],
                [E(k, f"buffer_load_dwordx4 v{vX1}, {s(sX,4)}, s{sSo} offen offset:1024 lds", **t)]]
        for hf in halves:
            out += [
                [E(k, f"s_add_u32 m0, s{sL2}, {so+16384+8192*hf}"),
                 E(k, f"s_mul_i32 s{sSo}, s{sC}, {64*2688}" if hf == 0 else f"s_add_u32 s{sSo}, s{sSo}, {32*2688}"),
                 E(k, f"buffer_load_dwordx4 v{vQ0}, {s(sQ,4)}, s{sSo} offen lds", **t)],
                [E(k, f"buffer_load_dwordx4 v{vQ1}, {s(sQ,4)}, s{sSo} offen offset:1024 lds", **t)]]
        out[-1] += nxt()
        return out

    def run(groups):
        for g in groups:
            for f in g:
                f()

    stamp(1)
    run(dma_chunk(0))
    k(f"global_load_dword v{vE}, v{vE}, s[20:21]{SC}")
    if OPT.get("t1", 1):
        k(f"s_cmp_eq_u32 s{sWv}, 5")
        with k.if_("s_cbranch_scc0"):
            k(f"""
            s_bfe_u32 s{sT0}, s2, 0x10002
            s_lshl_b32 s{sT0}, s{sT0}, 5
            s_lshr_b32 s3, s2, 3
            s_add_u32 s{sT0}, s{sT0}, s3
            s_mul_i32 s{sT0}, s{sT0}, {7*3584}
            s_and_b32 s3, s2, 3
            s_mul_i32 s3, s3, 896
            s_add_u32 s{sT0}, s{sT0}, s3
            v_min_u32 v{vT0}, 48, v{vL}
            v_mul_u32_u24 v{vT1}, 37, v{vT0}
            v_lshrrev_b32 v{vT1}, 8, v{vT1}
            v_mul_u32_u24 v{vT1}, {3584-896}, v{vT1}
            v_lshl_add_u32 v{vT0}, v{vT0}, 7, v{vT1}
            v_add_u32 v{vT0}, s{sT0}, v{vT0}
            global_load_dword v{vPF}, v{vT0}, s[12:13]
            """)
    k("s_barrier")
    run(dma_chunk(1))
    srd(k, sWS, 20, 21, 0, WS_SIZE)
    k(f"""
    v_lshlrev_b32 v{vL16}, 4, v{vL}
    v_mov_b32 v{vT0}, {L_CNT}
    v_mov_b32 v{vT1}, 0
    v_mov_b32 v{vT2}, 0
    s_lshl_b32 s{sF}, s{sG}, 4
    s_add_u32 s{sF}, s{sF}, s{sRB}
    s_lshl_b32 s10, s{sF}, 7
    """)
    k(f"ds_write_b64 v{vT0}, {v(vT1,2)}", wr=["ch0"])
    k(f"ds_write_b64 v{vT0}, {v(vT1,2)} offset:8", wr=["ch0"])
    k(f"ds_write_b64 v{vT0}, {v(vT1,2)} offset:16", wr=["ch0"])
    k(f"""
    v_and_b32 v{vT0}, 31, v{vL}
    s_lshl_b32 s3, s{sA}, 5
    v_add_u32 v{vT1}, s3, v{vT0}
    v_lshlrev_b32 v{vT1}, 7, v{vT1}
    v_bfe_u32 v{vT0}, v{vL}, 1, 3
    v_lshrrev_b32 v{vT2}, 5, v{vL}
    v_xor_b32 v{vT0}, v{vT0}, v{vT2}
    v_lshl_add_u32 v{xa[0]}, v{vT0}, 4, v{vT1}
    v_xor_b32 v{xa[1]}, 32, v{xa[0]}
    v_xor_b32 v{xa[2]}, 64, v{xa[0]}
    v_xor_b32 v{xa[3]}, 96, v{xa[0]}
    """)
    k(f"""
    s_bfm_b32 s3, s{sG}, 0
    s_and_b32 s3, s3, 0x1248
    s_bcnt1_i32_b32 s3, s3
    s_lshl_b32 s{sFS}, s{sG}, 1
    s_sub_u32 s{sFS}, s{sFS}, s3
    s_lshl_b32 s{sFS}, s{sFS}, 1
    s_lshl_b32 s{sL2}, s{sA}, 11
    v_bfe_u32 v{vT1}, v{vL}, 4, 1
    v_lshlrev_b32 v{vT1}, 2, v{vT1}
    v_and_b32 v{vT0}, 7, v{vL}
    v_xor_b32 v{vT1}, v{vT1}, v{vT0}
    v_lshrrev_b32 v{vT0}, 3, v{vL}
    s_lshl_b32 s3, s{sA}, 4
    v_add_u32 v{vT0}, s3, v{vT0}
    v_mul_u32_u24 v{vW}, 3584, v{vT0}
    v_lshl_add_u32 v{vW}, v{vT1}, 4, v{vW}
    """)
    tr_parts(vT0, vT1)
    k(f"v_lshl_add_u32 v{vT2}, v{vT2}, 3, v{vT0}")

    def dma_w1(srdn, base, js, tag):
        out = []
        for j in js:
            out += [[E(k, f"s_add_u32 m0, s{sL2}, {base+8192*j}"), E(k, f"s_mul_i32 s{sSo}, s{sC}, {64*3584}"),
                     E(k, f"buffer_load_dwordx4 v{vW}, {s(srdn,4)}, s{sSo} offen lds", wr=[tag])],
                    [E(k, f"s_add_u32 s{sSo}, s{sSo}, {8*3584-1024}"),
                     E(k, f"buffer_load_dwordx4 v{vW}, {s(srdn,4)}, s{sSo} offen offset:1024 lds", wr=[tag])] + nxt()]
        return out

    def make_tag():
        k(f"v_readfirstlane_b32 s{sTag}, v{vE}")
        k(f"s_mul_i32 s{sTag}, s{sTag}, 0x9E3779B1")
        k(f"s_add_u32 s{sTag}, s{sTag}, 0x7F4A7C15")
        for i in range(4):
            k(f"v_mov_b32 v{vTag+i}, s{sTag}")

    def rebase(st8, c, regs):
        out = []
        if SLOTS[c % 3] - st8["base"] not in (0, SLOT):
            nb = SLOT if SLOTS[c % 3] == 2 * SLOT else 0
            d = "v_add_u32" if nb > st8["base"] else "v_subrev_u32"
            out = [E(k, f"{d} v{r}, {SLOT}, v{r}") for r in regs]
            st8["base"] = nb
        return out

    LV = lambda n: 0x400 + 4 * n

    k(f"s_cmp_lt_u32 s{sWv}, 4")
    with k.if_("s_cbranch_scc0") as role:
        acc = [112, 128, 144]
        Xr = [16 + 4 * i for i in range(4)]
        Wf = [[32 + 16 * t + 4 * i for i in range(4)] for t in range(3)]
        sSc, sSt, sR, sOff, sQo = [4, 6, 14], 11, [12, 13, 18], 19, [sRB, sTT, sFS, sO0]
        sH, sQB, sIt, sOFs, sFO, sOFl, sGl, sHH = range(44, 52)
        sTo, sCT, sPx, sPxW, sTagH, sSel, sRot = sB, sD, sF, 4, 5, [6, 7, 15], 14
        vTc, vTd = 0, 255
        sK, sV, sOUT = sX, sQ, sW
        vLp, vIdx, vIn, vFd, vCn, vCv = 6, 7, 8, 9, 10, 11
        vOut, vPq = [240, 241, 242], 243
        wA, wB, wC, wD, vPo, vG, vSt, vPi, vBi = range(245, 254)
        Q = [16 + 8 * j for j in range(4)]
        KB = [48 + 8 * j for j in range(4)]
        VB = [80 + 8 * j for j in range(4)]
        S = [112 + 16 * j for j in range(4)]
        O = [176 + 16 * j for j in range(4)]
        k("s_setprio 3")
        k(f"""
        s_lshl_b32 s{sT1}, s{sFS}, 6
        s_lshl_b32 s3, s{sLong}, 7
        s_add_u32 s{sT1}, s{sT1}, s3
        s_sub_u32 s{sEe}, {448*3584}, s{sT1}
        s_add_u32 s{sC}, s{sC}, 5
        s_cmp_ge_u32 s{sC}, 7
        s_cselect_b32 s3, 7, 0
        s_sub_u32 s{sC}, s{sC}, s3
        """)
        srd(k, sWA, 12, 13, f"s{sT1}", f"s{sEe}")
        t2 = OPT.get("t2", 1)
        if t2 == 1:
            k(f"""
            s_lshr_b32 s3, s2, 1
            s_lshl_b32 s3, s3, 2
            s_add_u32 s{sT0}, s3, s{sWv}
            s_mul_i32 s{sT0}, s{sT0}, 49
            s_lshr_b32 s{sT0}, s{sT0}, 2
            s_and_b32 s3, s2, 1
            s_mul_i32 s3, s3, 6272
            s_add_u32 s{sT0}, s{sT0}, s3
            s_lshl_b32 s3, s2, 2
            s_add_u32 s{sT1}, s3, s{sWv}
            s_mul_i32 s{sT1}, s{sT1}, 49
            s_lshr_b32 s{sT1}, s{sT1}, 4
            """)
            n2, no = 13, 4
        else:
            k(f"""
            s_lshr_b32 s3, s2, 3
            s_lshl_b32 s3, s3, 2
            s_add_u32 s3, s3, s{sWv}
            s_mul_i32 s{sT1}, s3, 49
            s_and_b32 s3, s2, 1
            s_mul_i32 s3, s3, 6272
            s_add_u32 s{sT0}, s{sT1}, s3
            s_lshr_b32 s{sT1}, s{sT1}, 1
            """)
            n2, no = 49, 25
        k(f"""
        v_min_u32 v{vTc}, {n2-1}, v{vL}
        v_add_u32 v{vTc}, s{sT0}, v{vTc}
        v_lshlrev_b32 v{vTc}, 7, v{vTc}
        v_min_u32 v{vTd}, {no-1}, v{vL}
        v_add_u32 v{vTd}, s{sT1}, v{vTd}
        v_lshlrev_b32 v{vTd}, 7, v{vTd}
        """)
        k(f"""
        v_min_u32 v{wa[0]}, 6, v{vT1}
        v_lshlrev_b32 v{wa[0]}, 3, v{wa[0]}
        v_add_u32 v{wa[0]}, s{sO0}, v{wa[0]}
        v_add_u32 v{wa[1]}, 56, v{wa[0]}
        v_add_u32 v{wa[2]}, 112, v{wa[0]}
        v_lshlrev_b32 v{vT0}, 6, v{vT0}
        v_lshlrev_b32 v{vT2}, 8, v{vT2}
        v_add_u32 v{vT2}, 16384, v{vT2}
        v_xor_b32 v{wa[0]}, v{wa[0]}, v{vT0}
        v_xor_b32 v{wa[1]}, v{wa[1]}, v{vT0}
        v_xor_b32 v{wa[2]}, v{wa[2]}, v{vT0}
        v_add_u32 v{wa[0]}, v{wa[0]}, v{vT2}
        v_add_u32 v{wa[1]}, v{wa[1]}, v{vT2}
        v_add_u32 v{wa[2]}, v{wa[2]}, v{vT2}
        v_and_b32 v{vT0}, 31, v{vL}
        v_mov_b32 v{vT1}, 0x3f803f80
        v_cmp_eq_u32 vcc, 28, v{vT0}
        v_cndmask_b32 v{vPad}, 0, v{vT1}, vcc
        s_mul_i32 s{sT0}, s{sG}, 3
        """)
        for t in range(3):
            k(f"s_cmp_lt_u32 s{sT0}, {16 - t}")
            k(f"s_cselect_b32 s{sSc[t]}, {f32(28 ** -0.5 * LOG2E)}, 1.0")
            k(f"s_mov_b32 s{sSc[t]+1}, s{sSc[t]}")
        k(f"""
        s_lshl_b32 s{sT0}, s{sT0}, 6
        s_add_u32 s{sT0}, s{sT0}, s{sTT}
        s_lshl_b32 s{sSt}, s{sT0}, 11
        s_add_u32 s{sSt}, s{sSt}, {WS_QKV}
        s_add_u32 s10, s10, {WS_FQ}
        s_and_b32 s{sH}, s2, 7
        s_lshl_b32 s{sH}, s{sH}, 1
        s_bfe_u32 s3, s2, 0x10003
        s_add_u32 s{sH}, s{sH}, s3
        s_lshr_b32 s{sQB}, s2, 4
        v_and_b32 v{vT0}, 0x33, v{vL}
        v_bfe_u32 v{vT1}, v{vL}, 2, 1
        v_bfe_u32 v{vT2}, v{vL}, 3, 1
        v_lshl_or_b32 v{vT0}, v{vT1}, 3, v{vT0}
        v_lshl_or_b32 v{vT0}, v{vT2}, 2, v{vT0}
        v_lshlrev_b32 v{vLp}, 4, v{vT0}
        s_lshl_b32 s{sT0}, s{sH}, 17
        s_add_u32 s{sT0}, s{sT0}, {WS_QKV}
        s_lshl_b32 s{sT1}, s{sWv}, 15
        s_add_u32 s{sT1}, s{sT1}, s{sT0}
        s_add_u32 s3, s{sT1}, {16*64*2048}
        """)
        srd(k, sK, 20, 21, "s3", 32768)
        k(f"s_add_u32 s3, s{sT1}, {32*64*2048}")
        srd(k, sV, 20, 21, "s3", 32768)
        k(f"""
        v_lshrrev_b32 v{vT0}, 4, v{vL}
        v_add_u32 v{vT0}, 1, v{vT0}
        v_cmp_gt_u32 vcc, 32, v{vL}
        v_cndmask_b32 v{vT0}, 0, v{vT0}, vcc
        v_lshl_add_u32 v{vT0}, v{vT0}, 4, s{sH}
        v_mul_u32_u24 v{vT0}, 43, v{vT0}
        v_lshrrev_b32 v{vT0}, 7, v{vT0}
        v_and_b32 v{vT1}, 15, v{vL}
        v_mov_b32 v{vT2}, s{sQB}
        v_cndmask_b32 v{vT1}, v{vT2}, v{vT1}, vcc
        v_lshl_add_u32 v{vT0}, v{vT0}, 4, v{vT1}
        v_lshlrev_b32 v{vT0}, 7, v{vT0}
        v_add_u32 v{vPq}, {WS_FQ}, v{vT0}
        s_lshl_b32 s3, s{sQB}, 13
        s_add_u32 s{sT0}, s{sT0}, s3
        """)
        for j in range(4):
            for r in range(16):
                k(f"v_mov_b32 v{O[j]+r}, 0")
        for r in range(8, 16):
            k(f"v_mov_b32 v{S[3]+r}, 0")
        for r in range(4, 8):
            k(f"v_mov_b32 v{VB[3]+r}, 0")
        k(f"v_mov_b32 v{vIdx}, 0xdddd")
        k(f"v_mov_b32 v{vCn}, {L_CNT}")
        k(f"s_mov_b32 s{sIt}, 3")
        k(f"s_lshl_b32 s{sR[0]}, s{sQB}, 11")
        k(f"s_and_b32 s{sR[0]}, s{sR[0]}, {OPT.get('rot', 0) << 11}")
        prev = sR[0]
        for r in sR[1:] + [sOff]:
            k(f"s_add_u32 s{r}, s{prev}, 2048")
            k(f"s_and_b32 s{r}, s{r}, 0x7fff")
            prev = r
        for j in range(4):
            k(f"""
            s_add_u32 s3, s{sWv}, {1+j}
            s_and_b32 s3, s3, 3
            s_mul_i32 s{sT1}, s3, 12288
            s_add_u32 s{sT1}, s{sT1}, {L_ORED + 4096 * (j % 3)}
            v_add_u32 v{(vOut + [vIn])[j]}, s{sT1}, v{vL16}
            s_lshl_b32 s3, s3, 11
            s_add_u32 s{sQo[j]}, s3, s{sT0}
            """)
        k(f"""
        s_lshl_b32 s{sT0}, s{sQB}, 2
        s_add_u32 s{sT0}, s{sT0}, s{sWv}
        s_lshl_b32 s3, s{sT0}, 4
        s_add_u32 s3, s3, s{sH}
        s_lshl_b32 s{sOFs}, s3, 11
        s_add_u32 s{sOFs}, s{sOFs}, {WS_OF}
        s_lshr_b32 s{sHH}, s{sWv}, 1
        {fmap(sTo, 3)}
        s_lshl_b32 s{sTo}, s{sTo}, 1
        s_add_u32 s{sTo}, s{sTo}, s3
        s_lshl_b32 s{sTo}, s{sTo}, 1
        s_and_b32 s3, s{sWv}, 1
        s_add_u32 s{sTo}, s{sTo}, s3
        s_lshr_b32 s{sCT}, s2, 5
        s_lshl_b32 s3, s{sTo}, 7
        s_add_u32 s{sGl}, s3, {WS_G}
        s_lshl_b32 s{sOFl}, s{sTo}, 1
        s_add_u32 s{sOFl}, s{sOFl}, s{sHH}
        s_lshl_b32 s{sOFl}, s{sOFl}, 14
        s_add_u32 s{sOFl}, s{sOFl}, {WS_OF}
        s_mul_i32 s3, s{sTo}, {32*896}
        """)
        srd(k, sOUT, 22, 23, "s3", 32 * 896)
        if OPT.get("oq"):
            k(f"""
            s_mov_b32 s{sOFs}, s{sQo[3]}
            s_lshl_b32 s3, s{sHH}, 9
            s_add_u32 s3, s3, s{sTo}
            s_lshl_b32 s3, s3, 11
            s_add_u32 s{sOFl}, s3, {WS_QKV}
            """)

        nb0, nb1 = OPT.get("nb0", 0), OPT.get("nb1", 4)
        assert nb0 <= nb1 <= 4

        def p1_role0(swap):
            st8 = dict(base=0)

            def rdX(n):
                c, st = n >> 2, n & 3
                out = rebase(st8, c, xa + wa) if st == 0 else []
                return out + [E(k, f"ds_read_b128 {v(Xr[n%4],4)}, v{xa[st]} offset:{SLOTS[c%3]-st8['base']}", wr=[f"rd{c}"])]

            def rdW(n, t):
                c, st = n >> 2, n & 3
                return [E(k, f"ds_read_b64_tr_b16 {v(Wf[t][n%4]+2*e,2)}, v{wa[t]} offset:{SLOTS[c%3]-st8['base']+(16*st+4*e)*256}",
                          wr=[f"rd{c}"]) for e in range(2)]

            def reads(n):
                return rdX(n) + rdW(n, 0) + rdW(n, 1) + rdW(n, 2)

            def mm(n, t):
                a, b = v(Wf[t][n % 4], 4), v(Xr[n % 4], 4)
                if swap[t]:
                    a, b = b, a
                return [E(k, f"{MFMA} {v(acc[t],16)}, {a}, {b}, {'0' if n == 0 else v(acc[t],16)}")]

            def epi(t):
                a = acc[t]
                out = []
                if swap[t]:
                    if t == 0 or not swap[t - 1]:
                        out += [E(k, f"s_mov_b32 s{sM}, 0xf0000000"), E(k, f"s_mov_b32 s{sM+1}, 0xf0000000")]
                    for i in range(2):
                        R = range(4 * i, 4 * i + 4)
                        out += [E(k, f"v_cvt_pk_bf16_f32 v{a+r}, v{a+2*r}, v{a+2*r+1}") for r in R]
                        out += [E(k, f"v_cndmask_b32 v{a+r}, v{a+r}, v{vPad}, {s(sM,2)}") for r in R]
                        out += [E(k, f"buffer_store_dwordx4 {v(a+4*i,4)}, v{vL16}, {s(sWS,4)}, s{sSt} offen offset:{1024*i}{OPT.get('sq', SC)}", wr=["qkv"])]
                else:
                    if t == 0:
                        out += [E(k, f"s_mov_b32 s{sM}, 0"), E(k, f"s_mov_b32 s{sM+1}, -1")]
                    for i in range(2):
                        R = range(4 * i, 4 * i + 4)
                        if OPT.get("epk", 0) >> t & 1:
                            out += [E(k, f"v_pk_mul_f32 {v(a+2*r,2)}, {v(a+2*r,2)}, {s(sSc[t],2)}") for r in R]
                        else:
                            out += [E(k, f"v_mul_f32 v{a+r}, s{sSc[t]}, v{a+r}") for r in range(8 * i, 8 * i + 8)]
                        out += [E(k, f"v_cvt_pk_bf16_f32 v{a+r}, v{a+2*r}, v{a+2*r+1}") for r in R]
                        out += [E(k, f"v_cndmask_b32 v{a+r}, v{a+r}, 0, {s(sM,2)}") for r in R if r >= 6]
                        out += [E(k, f"buffer_store_dwordx4 {v(a+4*i,4)}, v{vL16}, {s(sWS,4)}, s{sSt} offen offset:{1024*i}{OPT.get('sq', SC)}", wr=["qkv"])]
                if t < 2:
                    out += [E(k, f"s_add_u32 s{sSt}, s{sSt}, {64*2048}")]
                return out

            k.need("ch0")
            k("s_barrier")
            stamp(2)
            run([reads(0), reads(1)])
            for n in range(24):
                ms = [mm(n, t) for t in range(3)]
                c = (n + 2) // 4
                if n >= 22:
                    run(ms)
                elif (n + 2) % 4 == 0:
                    run(ms)
                    k.need(f"rd{c-1}", f"ch{c}")
                    k("s_barrier")
                    if c == 3:
                        stamp(3)
                    run([reads(n + 2)])
                    if c == 1:
                        make_tag()
                else:
                    spread(k, ms, reads(n + 2))
            k.need("rd5")
            k("s_barrier")
            stamp(4)
            for n in range(24, 28):
                run([rdX(n), rdW(n, 0)])
            for t in (1, 2):
                for n in range(24, 28):
                    run([rdW(n, t)])
            run(dma_w1(sWA, L_W1B, range(nb0), "wb1"))
            run([mm(n, 0) for n in range(24, 28)] + [mm(24, 1), mm(25, 1)])
            spread(k, [mm(26, 1), mm(27, 1), mm(24, 2), mm(25, 2)], epi(0))
            k(f"v_mov_b32 v{vCv}, 0x100")
            spread(k, [mm(26, 2), mm(27, 2)], epi(1)[:4])
            k("s_mov_b64 exec, 1")
            k(f"ds_add_u32 v{vCn}, v{vCv}", rd=["rd6"])
            k("s_mov_b64 exec, -1")
            run([epi(1)[4:], epi(2)])
            assert st8["base"] == 0

        k(f"s_cmp_lt_u32 s{sG}, 10")
        with k.if_("s_cbranch_scc0") as v0:
            p1_role0([0, 0, 0])
            v0.else_()
            k(f"s_cmp_eq_u32 s{sG}, 10")
            with k.if_("s_cbranch_scc0") as v1:
                p1_role0([0, 0, 1])
                v1.else_()
                p1_role0([1, 1, 1])
        stamp(5)
        run(dma_w1(sWA, L_W1B, range(nb0, nb1), "wb1"))
        k.need("qkv")
        flag_last(2, "s10", vT0, vT1)
        stamp(6)
        run(dma_w1(sWA, L_W1B, range(nb1, 4), "wb1"))
        run(dma_w1(sWA, L_W1B, range(4, 7), "wb2"))

        def touch(pos):
            if t2 and OPT.get("tp", 1) == pos:
                k(f"global_load_dword v{vTc}, v{vTc}, s[16:17]")
                k(f"global_load_dword v{vTd}, v{vTd}, s[8:9]")
        touch(1)
        k.need("wb1")
        cnt_add(1, vT0, vT1)
        k("s_setprio 0")
        tr_parts(vT0, vT1)
        k(f"""
        s_mul_i32 s3, s{sHH}, {224*128 + 64}
        v_lshl_add_u32 v{wD}, v{vT1}, 3, s3
        v_lshrrev_b32 v{vT2}, 5, v{vL}
        v_lshl_add_u32 v{wA}, v{vT2}, 2, v{vT0}
        v_lshl_add_u32 v{wB}, v{vT2}, 1, v{vT0}
        v_add_u32 v{wB}, 16, v{wB}
        v_lshl_add_u32 v{wC}, v{vT2}, 2, 3
        v_cmp_gt_u32 vcc, 2, v{vT0}
        v_cndmask_b32 v{wB}, v{wC}, v{wB}, vcc
        """)
        for w in (wA, wB):
            k(f"""
            v_and_b32 v{vT1}, 2, v{w}
            v_lshlrev_b32 v{vT1}, 5, v{vT1}
            v_lshl_add_u32 v{w}, v{w}, 7, v{wD}
            v_xor_b32 v{w}, v{w}, v{vT1}
            """)
        k(f"""
        v_xor_b32 v{wC}, 64, v{wA}
        v_xor_b32 v{wD}, 64, v{wB}
        s_lshl_b32 s{sT0}, s{sCT}, 1
        s_add_u32 s{sT0}, s{sT0}, s{sHH}
        s_xor_b32 s3, s{sTo}, 2
        s_mul_i32 s{sPxW}, s3, 14
        s_add_u32 s{sPxW}, s{sPxW}, s{sT0}
        s_lshl_b32 s{sPxW}, s{sPxW}, 12
        s_add_u32 s{sPxW}, s{sPxW}, {WS_PX}
        s_lshl_b32 s{sTagH}, s{sTag}, 16
        s_mov_b32 s{sSel[0]}, 0x07060500
        s_mov_b32 s{sSel[1]}, 0x07060501
        s_mov_b32 s{sSel[2]}, 0x04000c0c
        s_mul_i32 s{sPx}, s{sTo}, 14
        s_add_u32 s{sPx}, s{sPx}, s{sT0}
        s_lshl_b32 s{sPx}, s{sPx}, 12
        s_add_u32 s{sPx}, s{sPx}, {WS_PX}
        v_and_b32 v{vT0}, 31, v{vL}
        v_lshlrev_b32 v{vG}, 2, v{vT0}
        v_mul_u32_u24 v{vSt}, 896, v{vT0}
        v_lshl_add_u32 v{vSt}, v{vT2}, 4, v{vSt}
        s_lshl_b32 s3, s{sT0}, 6
        v_add_u32 v{vSt}, s3, v{vSt}
        s_xor_b32 s3, s{sWv}, 2
        s_mul_i32 s3, s3, 12288
        s_add_u32 s3, s3, {L_ORED}
        v_add_u32 v{vPi}, s3, v{vL16}
        v_add_u32 v{vBi}, {L_FRED - L_ORED + (1 << 32)}, v{vIn}
        """)
        k("s_setprio 3")
        k.need("wb2")
        cnt_add(1, vT0, vT1, 0x100)
        k(f"s_cmp_eq_u32 s{sWv}, 0")
        with k.if_("s_cbranch_scc0") as pl:
            poll(vPq, vFd, -1)
            cnt_add(4, vCn, vCv, 0x100)
            pl.else_()
            cnt_wait(4, 0x100, vCn, vCv, prio=3)
        stamp(7)

        def ldK(buf, so, hs=(0, 1)):
            for i in hs:
                k(f"buffer_load_dwordx4 {v(KB[buf]+4*i,4)}, v{vLp}, {s(sK,4)}, {so} offen offset:{1024*i}{SC}")

        def ldV(buf, so, hs=(0, 1)):
            for i in hs:
                k(f"buffer_load_dwordx4 {v(VB[buf]+4*i,4)}, v{vL16}, {s(sV,4)}, {so} offen offset:{1024*i}{SC}")

        def ldQ(j):
            for i in range(2):
                k(f"buffer_load_dwordx4 {v(Q[j]+4*i,4)}, v{vL16}, {s(sWS,4)}, s{sQo[j]} offen offset:{1024*i}{SC}")

        ldK(0, f"s{sR[0]}")
        ldQ(0)
        ldQ(1)
        ldQ(2)
        ldV(0, f"s{sR[0]}")
        ldQ(3)
        ldK(1, f"s{sR[1]}")
        ldV(1, f"s{sR[1]}")
        ldK(2, f"s{sR[2]}")
        ldV(2, f"s{sR[2]}")
        ldK(3, f"s{sOff}")
        touch(0)
        if OPT.get("tpx"):
            k(f"v_min_u32 v{vPq}, 31, v{vL}")
            k(f"v_lshlrev_b32 v{vPq}, 7, v{vPq}")
            k(f"buffer_load_dword v{vPq}, v{vPq}, {s(sWS,4)}, s{sPxW} offen")
        cnt_add(1, vT0, vT1, 0x10000)
        k(f"s_setprio {OPT.get('aprio', 1)}")

        def QK(u, half):
            j, t = u & 3, (u >> 2) & 3
            c = "0" if half == 0 else v(S[j], 16)
            k(f"{MFMA} {v(S[j],16)}, {v(KB[t]+4*half,4)}, {v(Q[j]+4*half,4)}, {c}")

        def PV(u, half):
            j, t = u & 3, (u >> 2) & 3
            k(f"{SMF} {v(O[j],16)}, {v(VB[t]+4*half,4)}, {v(S[j]+8*half,8)}, v{vIdx}")

        def EX(u, a, b):
            for r in range(a, b):
                k(f"v_exp_f32 v{S[u&3]+r}, v{S[u&3]+r}")

        def putO(j, i):
            k(f"ds_write_b128 v{vOut[j]}, {v(O[j]+4*i,4)} offset:{1024*i}", wr=["red"])

        gate = OPT.get("gate", 14)

        def unit(u, last):
            i, q = u >> 2, u & 3
            if last and u == gate:
                k("s_barrier")
                k("s_setprio 3")
            if not (last and u >= 14):
                QK(u + 2, 0)
            if q < 2 and (u < 2 or not last):
                ldV((i - 1) & 3, f"s{sOff}", (q,))
            if q >= 2 and not last:
                ldK(i, f"s{sOff}", (q - 2,))
            EX(u, 0, 4)
            if not (last and u >= 14):
                QK(u + 2, 1)
            else:
                PV(u - 1, 1)
            if q & 1 and (not last or u < 12):
                k(f"s_waitcnt vmcnt({10 if not last else 11 - u})")
            if last and u >= 14:
                for c in range(4):
                    EX(u, 4 + c, 5 + c)
                    putO(u - 14, c)
            else:
                EX(u, 4, 8)
                PV(u - 1, 1)
            if q == 1 and not last:
                k(f"s_add_u32 s{sOff}, s{sOff}, 2048")
                k(f"s_and_b32 s{sOff}, s{sOff}, 0x7fff")
            if last and u == 15:
                PV(u, 0)
                for c in range(4):
                    EX(u, 8 + 2 * c, 10 + 2 * c)
                    putO(2, c)
                PV(u, 1)
                return
            EX(u, 8, 12)
            PV(u, 0)
            if u == 15:
                k(f"s_sub_u32 s{sIt}, s{sIt}, 1")
                k(f"s_cmp_lg_u32 s{sIt}, 0")
            EX(u, 12, 16)

        assert gate <= 14
        for u in range(2):
            QK(u, 0)
            QK(u, 1)
        stamp(8)
        with k.loop(3, align=6) as lp:
            for u in range(16):
                unit(u, False)
                if OPT.get("it") and u == 3:
                    k(f"s_mov_b32 s{SST+8}, s{SST+10}")
                    k(f"s_mov_b32 s{SST+10}, s{SST+12}")
                    stamp(6)
            if OPT.get("it"):
                k(f"s_mov_b32 s{SST+2}, s{SST+4}")
                k(f"s_mov_b32 s{SST+4}, s{SST+6}")
                stamp(3)
            lp.back("s_cbranch_scc1")
        for u in range(16):
            unit(u, True)
        stamp(9)
        k.need("red")
        cnt_add(4, vCn, vCv)
        cnt_wait(4, 0x104, vCn, vCv)
        for j in range(3):
            for i in range(4):
                k(f"ds_read_b128 {v(S[j]+4*i,4)}, v{vIn} offset:{4096*j+1024*i}")
        A = O[3]
        opk = OPT.get("opk", 0)
        for j in range(3):
            run([padd(A, A, S[j], pk=opk)])

        def get_l():
            k(f"""
            v_mov_b32 v{vT0}, v{A+12}
            v_mov_b32 v{vT1}, v{A+12}
            v_permlane32_swap_b32 v{vT0}, v{vT1}
            """)
        get_l()
        k(f"v_mul_f32 v{vCn}, v{A}, v{A+1}")
        k(f"v_mul_f32 v{vCv}, v{A+2}, v{A+3}")
        for r in range(4, 16, 2):
            k(f"v_fma_f32 v{vCn + (r >> 1 & 1)}, v{A+r}, v{A+r+1}, v{vCn + (r >> 1 & 1)}")
        k(f"""
        v_fma_f32 v{vT2}, v{vCn}, 0, v{vT1}
        v_fma_f32 v{vT2}, v{vCv}, 0, v{vT2}
        v_cmp_nlt_f32 vcc, {f32(2.0**-30)}, v{vT2}
        s_mov_b64 {s(sM,2)}, vcc
        v_cmp_ngt_f32 vcc, {f32(2.0**40)}, v{vT2}
        s_or_b64 {s(sM,2)}, {s(sM,2)}, vcc
        """)
        if OPT.get("force_fb"):
            k(f"s_mov_b64 {s(sM,2)}, -1")
        k(f"s_cmp_lg_u64 {s(sM,2)}, 0")
        with k.if_("s_cbranch_scc0"):
            k(f"s_lshl_b32 s{sT1}, s{sH}, 17")
            k(f"s_add_u32 s3, s{sT1}, {WS_QKV+16*64*2048}")
            srd(k, sK, 20, 21, "s3", 131072)
            k(f"s_add_u32 s3, s{sT1}, {WS_QKV+32*64*2048}")
            srd(k, sV, 20, 21, "s3", 131072)
            k(f"v_mov_b32 v{vT0}, 0xff800000")
            k(f"s_mov_b32 s{sOff}, 0")
            with k.loop(3) as l1:
                ldK(0, f"s{sOff}")
                QK(3, 0)
                QK(3, 1)
                for r in range(0, 16, 2):
                    k(f"v_max3_f32 v{vT0}, v{S[3]+r}, v{S[3]+r+1}, v{vT0}")
                k(f"s_add_u32 s{sOff}, s{sOff}, 2048")
                k(f"s_cmp_lt_u32 s{sOff}, 131072")
                l1.back("s_cbranch_scc1")
            k(f"""
            v_mov_b32 v{vT1}, v{vT0}
            v_permlane32_swap_b32 v{vT0}, v{vT1}
            v_max_f32 v{vT0}, v{vT0}, v{vT1}
            """)
            for r in range(16):
                k(f"v_mul_f32 v{S[0]+r}, -1.0, v{vT0}")
                k(f"v_mov_b32 v{A+r}, 0")
            k(f"s_mov_b32 s{sOff}, 0")
            with k.loop(3) as l2:
                ldK(0, f"s{sOff}")
                ldV(0, f"s{sOff}")
                k(f"{MFMA} {v(S[3],16)}, {v(KB[0],4)}, {v(Q[3],4)}, {v(S[0],16)}")
                QK(3, 1)
                EX(3, 0, 16)
                PV(3, 0)
                PV(3, 1)
                k(f"s_add_u32 s{sOff}, s{sOff}, 2048")
                k(f"s_cmp_lt_u32 s{sOff}, 131072")
                k("s_nop 4")
                l2.back("s_cbranch_scc1")
            get_l()
        k(f"v_rcp_f32 v{vT1}, v{vT1}")
        for i in range(2):
            for r in range(8 * i, 8 * i + 8):
                k(f"v_mul_f32 v{A+r}, v{A+r}, v{vT1}")
            if i == 0:
                k(f"v_cvt_pk_bf16_f32 v{vT0}, v{A+6}, v{A+7}")
                k(f"v_cvt_pk_bf16_f32 v{vT2}, v{A+7}, v{A+6}")
                for r in range(3):
                    k(f"v_cvt_pk_bf16_f32 v{A+r}, v{A+2*r}, v{A+2*r+1}")
                k(f"v_alignbit_b32 v{A+3}, v{vTag}, v{vT2}, 16")
            else:
                for r in (6, 7, 4, 5):
                    k(f"v_cvt_pk_bf16_f32 v{A+r}, v{A+2*r}, v{A+2*r+1}")
                k(f"v_permlane32_swap_b32 v{A+6}, v{A+7}")
                k(f"v_alignbit_b32 v{A+7}, v{vTag}, v{vT0}, 16")
            k(f"buffer_store_dwordx4 {v(A+4*i,4)}, v{vL16}, {s(sWS,4)}, s{sOFs} offen offset:{1024*i}{OPT.get('so', SC)}", wr=["o"])
        stamp(10)
        k("s_cmp_ge_u32 s2, 224")
        with k.if_("s_cbranch_scc0"):
            endpgm(2)
        WO = 16
        OFr = 144
        fac = [208, 224]

        wth = OPT.get("wth", 2)

        def rdWO(ns, th=None):
            for n in ns:
                hh, st = n >> 1, n & 1
                for t in range(2):
                    if th is not None:
                        k(f"s_waitcnt lgkmcnt({th})")
                    for e in range(2):
                        x = st == 1 and e == 1
                        a = [[wA, wB], [wC, wD]][t][x]
                        k(f"ds_read_b64_tr_b16 {v(WO+8*n+4*t+2*e,2)}, v{a} offset:{(28*hh+(8 if x else 16*st+8*e))*128}")

        def ldO(hh):
            k(f"s_add_u32 s3, s{sOFl}, {(131072 if OPT.get('oq') else 2048)*hh}")
            for i in range(2):
                k(f"buffer_load_dwordx4 {v(OFr+8*hh+4*i,4)}, v{vL16}, {s(sWS,4)}, s3 offen offset:{1024*i}{SC}")

        PX = 240

        def ldP(sc=SC):
            for c in range(4):
                k(f"buffer_load_dwordx4 {v(PX+4*c,4)}, v{vL16}, {s(sWS,4)}, s{sPx} offen offset:{1024*c}{sc}")

        def chkO(g, ng):
            D = [OFr + 8 * ng * g + 4 * i + 3 for i in range(2 * ng)]
            out = []
            for i in range(0, 2 * ng, 2):
                out += [E(k, f"v_xor_b32 v{D[i]}, s{sTagH}, v{D[i]}"), E(k, f"v_xor_b32 v{D[i+1]}, s{sTagH}, v{D[i+1]}"),
                        E(k, f"v_or3_b32 v{vT0}, v{D[i]}, v{D[i+1]}, {'0' if i == 0 else f'v{vT0}'}")]
            return out + [E(k, f"v_cmp_lt_u32 vcc, 0xffff, v{vT0}")]

        def chkP():
            out = []
            for c in range(4):
                out += [E(k, f"v_perm_b32 v{vCn}, v{PX+4*c+1}, v{PX+4*c}, s{sSel[2]}"),
                        E(k, f"v_xor_b32 v{vCn}, s{sTagH}, v{vCn}"),
                        E(k, f"v_or_b32 v{vT0}, {'0' if c == 0 else f'v{vT0}'}, v{vCn}")]
            return out + [E(k, f"v_cmp_ne_u32 vcc, 0, v{vT0}")]

        def retry(load, chk):
            k("s_cmp_lg_u64 vcc, 0")
            with k.if_("s_cbranch_scc0"):
                with k.loop([1, 2]) as lp:
                    load()
                    run([chk])
                    k(f"""
                    s_sub_u32 s{sCnt}, s{sCnt}, 1
                    s_cmp_lg_u64 vcc, 0
                    s_cselect_b32 s3, s{sCnt}, 0
                    s_cmp_gt_i32 s3, 0
                    """)
                    lp.back("s_cbranch_scc1")

        def mmO(g, ng):
            return [[E(k, f"{MFMA} {v(fac[t],16)}, {v(WO+8*n+4*t,4)}, {v(OFr+4*n,4)}, {'0' if n == 0 else v(fac[t],16)}")]
                    for n in range(2 * ng * g, 2 * ng * (g + 1)) for t in (1, 0)]

        nw0 = OPT.get("nw0", 12)
        PT = OFr
        uG, uSt, uPi, uBi = vLp, vIdx, vFd, vTc
        k(f"buffer_load_dword v{uG}, v{vG}, {s(sWS,4)}, s{sGl} offen{SC}")
        for d, o in ((uSt, vSt), (uPi, vPi), (uBi, vBi)):
            k(f"v_mov_b32 v{d}, v{o}")
        rdWO(range(nw0), wth)
        dstamp(4, 4)
        cnt_wait(0, LV(5), vCn, vCv)
        dstamp(4, 8)
        for c in range(4):
            for i in range(2):
                k(f"ds_read_b128 {v(PT+16*i+4*c,4)}, v{uBi} offset:{4096*i+1024*c}", wr=["pr"])
        k(f"v_mov_b32 v{vCv}, 0x100")
        for c in range(4):
            run([padd(PT + 4 * c, PT + 4 * c, PT + 16 + 4 * c, 4)])
            for i in range(2):
                k(f"v_perm_b32 v{PT+4*c+i}, v{PT+4*c+i}, v{vTag}, s{sSel[i]}")
        k("s_mov_b64 exec, 1")
        k(f"ds_add_u32 v{vCn}, v{vCv}")
        k("s_mov_b64 exec, -1")
        for c in range(4):
            k(f"buffer_store_dwordx4 {v(PT+4*c,4)}, v{vL16}, {s(sWS,4)}, s{sPxW} offen offset:{1024*c}{SC[:0 if OPT.get('pxl') else 9]}", wr=["px"])
        dstamp(4, 7)
        rdWO(range(nw0, 16))
        if OPT.get("om", 80):
            cnt_wait(5, 4, vCn, vCv)
        dstamp(4, 6)
        dstamp(5, 0)
        ng = OPT.get("ng", 2)
        na = OPT.get("na", 4)
        G = 8 // ng
        for hh in range(na):
            ldO(hh)
        dstamp(4, 5)
        k(f"s_mov_b32 s{sCnt}, {SPIN}")
        todo = [(lambda hh=hh: ldO(hh)) for hh in range(na, 8)] + [lambda: ldP("" if OPT.get("pxl") == 2 else SC)]
        run([chkO(0, ng)])
        for g in range(G):
            retry(lambda: [ldO(hh) for hh in range(ng * g, ng * g + ng)], chkO(g, ng))
            dstamp(5, 1 + 2 * g)
            mm = mmO(g, ng)
            h = len(mm) // 2
            spread(k, mm[:h], todo[:ng])
            dstamp(5, 2 + 2 * g)
            todo = todo[ng:]
            if g < G - 1:
                spread(k, mm[h:], chkO(g + 1, ng))
        assert not todo
        spread(k, mm[h:], chkP())
        stamp(11)
        for i in range(4):
            k(f"ds_write_b128 v{vIn}, {v(fac[1]+4*i,4)} offset:{1024*i}", wr=["xch"])
        retry(ldP, chkP())
        pre = [E(k, f"v_sub_f32 v{vCn}, 1.0, v{uG}"), E(k, f"v_sub_f32 v{vCv}, 1.0, v{uG}"),
               E(k, f"v_mov_b32 v{vT1}, v{uG}"), E(k, f"v_mov_b32 v{vT2}, v{uG}")]
        pre += [E(k, f"v_and_b32 v{PX+r}, 0xffffff00, v{PX+r}") for r in range(16) if r & 3 < 2]
        pre += [E(k, f"v_pk_mul_f32 {v(PX+r,2)}, {v(PX+r,2)}, {v(vCn,2)}") for r in range(0, 16, 2)]
        run([pre])
        if OPT.get("dbg") == 4:
            k(f"s_sub_u32 s3, {SPIN}, s{sCnt}")
            k(f"s_mul_i32 s3, s3, 100")
            k(f"s_add_u32 s{SST+2*3}, s{SST}, s3")
        a = fac[0]
        for r in range(0, 16, 2):
            k(f"v_pk_fma_f32 {v(a+r,2)}, {v(a+r,2)}, {v(vT1,2)}, {v(PX+r,2)}")
        k.need("xch")
        k("s_barrier")
        stamp(12)
        P, B, B2 = 48, 32, 64
        for i in range(4):
            k(f"ds_read_b128 {v(P+4*i,4)}, v{uPi} offset:{1024*i}")
            k(f"ds_read_b128 {v(B+4*i,4)}, v{uBi} offset:{1024*i}")
            k(f"ds_read_b128 {v(B2+4*i,4)}, v{uBi} offset:{4096+1024*i}")
        for q in range(2):
            for r in range(8 * q, 8 * q + 8, 2):
                k(f"v_pk_fma_f32 {v(a+r,2)}, {v(P+r,2)}, {v(vT1,2)}, {v(a+r,2)}")
            for r in range(8 * q, 8 * q + 8, 2):
                k(f"v_pk_add_f32 {v(B+r,2)}, {v(B+r,2)}, {v(B2+r,2)}")
            for r in range(8 * q, 8 * q + 8, 2):
                k(f"v_pk_add_f32 {v(a+r,2)}, {v(a+r,2)}, {v(B+r,2)}")
            for r in range(4):
                k(f"v_cvt_pk_bf16_f32 v{P+8*q+r}, v{a+8*q+2*r}, v{a+8*q+2*r+1}")
            k(f"v_permlane32_swap_b32 v{P+8*q}, v{P+8*q+2}")
            k(f"v_permlane32_swap_b32 v{P+8*q+1}, v{P+8*q+3}")
            k(f"buffer_store_dwordx4 {v(P+8*q,4)}, v{uSt}, {s(sOUT,4)}, 0 offen offset:{32*q}{OPT.get('ost', '')}")
        endpgm()

        role.else_()
        acc = [128, 144, 160, 176]
        NS = 7
        W6 = [192 + 4 * i for i in range(NS)]
        tmp = 220
        BA, BZ = 224, 228
        vD, wr0, wr1, vGW, vFd = 6, 7, 8, 9, 10
        sJ, sSt, sKH, sR2, sCT = sA, 4, 5, 6, 7
        k("s_setprio 2")
        k(f"""
        s_lshl_b32 s{sT1}, s{sFS}, 6
        v_lshlrev_b32 v{BA+1}, 1, v{vL}
        v_add_u32 v{BA+1}, s{sT1}, v{BA+1}
        global_load_ushort v{BA}, v{BA+1}, s[14:15]
        s_lshl_b32 s3, s{sLong}, 7
        v_add_u32 v{BA+3}, s3, v{BA+1}
        global_load_ushort v{BA+2}, v{BA+3}, s[14:15]
        s_sub_u32 s{sEe}, {448*3584}, s{sT1}
        """)
        srd(k, sW, 12, 13, f"s{sT1}", f"s{sEe}")
        k(f"""
        v_subrev_u32 v{vX0}, {64*896}, v{vX0}
        v_subrev_u32 v{vX1}, {64*896}, v{vX1}
        v_subrev_u32 v{vQ0}, {32*2688}, v{vQ0}
        v_subrev_u32 v{vQ1}, {32*2688}, v{vQ1}
        v_lshrrev_b32 v{wa[1]}, 1, v{vT0}
        v_lshlrev_b32 v{wa[1]}, 6, v{wa[1]}
        v_lshl_add_u32 v{wa[1]}, v{vT1}, 3, v{wa[1]}
        v_lshl_add_u32 v{wa[0]}, v{vT2}, 7, v{wa[1]}
        v_add_u32 v{wa[0]}, {L_W1A}, v{wa[0]}
        v_lshrrev_b32 v{vT2}, 5, v{vL}
        v_lshl_add_u32 v{vT2}, v{vT2}, 2, v{vT0}
        v_lshl_add_u32 v{wr0}, v{vT2}, 7, v{wa[1]}
        v_xor_b32 v{wa[1]}, 64, v{wa[0]}
        v_add_u32 v{wr0}, s{sL2}, v{wr0}
        s_lshr_b32 s3, s{sJ}, 1
        s_lshl_b32 s3, s3, 6
        v_xor_b32 v{wr0}, s3, v{wr0}
        v_xor_b32 v{wr1}, 64, v{wr0}
        v_lshrrev_b32 v{vT0}, 3, v{vL}
        v_mul_u32_u24 v{vD}, 896, v{vT0}
        v_and_b32 v{vT0}, 127, v{vW}
        v_add_u32 v{vD}, v{vD}, v{vT0}
        s_cmp_eq_u32 s{sG}, 3
        """)
        with k.if_("s_cbranch_scc0"):
            srd(k, sW2, 18, 19, 0, 896)
            k(f"""
            s_add_u32 s3, s{sC}, 5
            s_lshl_b32 s3, s3, 7
            v_add_u32 v{vT0}, s3, v{vL16}
            v_subrev_u32 v{vT1}, 896, v{vT0}
            v_min_u32 v{vT0}, v{vT0}, v{vT1}
            v_subrev_u32 v{vT1}, 896, v{vT0}
            v_min_u32 v{vT0}, v{vT0}, v{vT1}
            s_lshr_b32 s3, s{sL2}, 1
            s_add_u32 m0, s3, {L_GW}
            v_lshrrev_b32 v{vGW}, 5, v{vL}
            v_lshlrev_b32 v{vGW}, 4, v{vGW}
            v_add_u32 v{vGW}, m0, v{vGW}
            """)
            k(f"buffer_load_dwordx4 v{vT0}, {s(sW2,4)}, 0 offen lds", wr=["gw"])
        k(f"""
        s_mul_i32 s{sSt}, s{sTT}, 56
        s_add_u32 s{sSt}, s{sSt}, s{sFS}
        s_lshl_b32 s{sSt}, s{sSt}, 11
        s_add_u32 s{sSt}, s{sSt}, {WS_ACT}
        {fmap(sR2, sKH)}
        s_lshr_b32 s{sCT}, s2, 5
        s_lshl_b32 s{sT0}, s{sKH}, 2
        s_add_u32 s{sT0}, s{sT0}, s{sJ}
        s_mul_i32 s{sT0}, s{sT0}, {224*896}
        s_lshl_b32 s3, s{sCT}, 7
        s_add_u32 s{sT0}, s{sT0}, s3
        s_sub_u32 s{sT1}, {224*896}, s3
        s_cmp_lt_u32 s2, 224
        s_cselect_b32 s{sT1}, s{sT1}, 0
        """)
        srd(k, sW2, 16, 17, f"s{sT0}", f"s{sT1}")
        k(f"""
        s_mul_i32 s{sT0}, s{sJ}, {16*896}
        s_add_u32 s{sT0}, s{sT0}, s3
        s_sub_u32 s{sT1}, {448*896}, s{sT0}
        s_cmp_lt_u32 s2, 224
        s_cselect_b32 s{sT1}, s{sT1}, 0
        """)
        srd(k, sWO, 8, 9, f"s{sT0}", f"s{sT1}")
        for r in range(10):
            k(f"v_mov_b32 v{BZ+r}, 0")
        k(f"""
        v_mov_b32 v{vT0}, 0x3f80
        v_cmp_gt_u32 vcc, 32, v{vL}
        v_cndmask_b32 v{BZ+2}, 0, v{vT0}, vcc
        v_cndmask_b32 v{BZ+6}, v{vT0}, v{BZ+6}, vcc
        v_mov_b32 v{BA+1}, 0
        v_mov_b32 v{BA+3}, 0
        """)

        W2ROW = [0, 1] + list(range(7, 19))

        TH = OPT.get("th", 5)

        def thr():
            return [E(k, f"s_waitcnt vmcnt({TH - 1})")] if TH else []

        def dma_rows(srdn, items, gstride, tag):
            out = []
            for st, row in items:
                out += [[E(k, f"s_add_u32 m0, s{sL2}, {8192*row}"), E(k, f"s_mov_b32 s{sSo}, {st*gstride}"), *thr(),
                         E(k, f"buffer_load_dwordx4 v{vD}, {s(srdn,4)}, s{sSo} offen lds", wr=[tag])],
                        [E(k, f"s_mov_b32 s{sSo}, {st*gstride+8*896-1024}"), *thr(),
                         E(k, f"buffer_load_dwordx4 v{vD}, {s(srdn,4)}, s{sSo} offen offset:1024 lds", wr=[tag])]]
            return out

        def dma_w2(sts, tag):
            return dma_rows(sW2, [(st, W2ROW[st]) for st in sts], 16 * 896, tag)

        st8 = dict(base=0)
        for c in range(7):
            if c == 0:
                k.need("ch0")
            else:
                k.need(f"rd{c-1}", f"ch{c}")
            k("s_barrier")
            if c in (0, 6):
                stamp(2 + c // 3)
            rdx = rebase(st8, c, xa) + [
                E(k, f"ds_read_b128 {v(X+16*c+4*st,4)}, v{xa[st]} offset:{SLOTS[c%3]-st8['base']}", wr=[f"rd{c}"]) for st in range(4)]
            if c <= 4:
                dm = dma_chunk(c + 2, (0, 1))
                run(dm[:2] + [rdx] + dm[2:])
            else:
                run([rdx])
                k(f"s_cmp_eq_u32 s{sLong}, 1")
                with k.if_("s_cbranch_scc0") as lg:
                    run(dma_w1(sW, L_W1A, range(4), "wa1") if c == 5 else dma_w1(sW, L_W1A, [4, 5, 6], "wa2"))
                    k.need("ch6" if c == 5 else "wa1")
                    if c == 5:
                        lg.else_()
                        k.need("ch6")
            if c == 1:
                make_tag()
            if c == 2:
                for t, w in enumerate((BZ + 2, BZ + 6, BZ, BZ + 4)):
                    k(f"{MFMA} {v(acc[t],16)}, {v(BA,4)}, {v(w,4)}, 0")

        def act_store(t):
            out = []
            for i in range(2):
                if OPT.get("ths", 1):
                    out += thr()
                out += [E(k, f"buffer_store_dwordx4 {v(acc[t]+4*i,4)}, v{vL16}, {s(sWS,4)}, s{sSt} offen offset:{1024*i}{SC}", wr=["act"])]
            return out + [E(k, f"s_add_u32 s{sSt}, s{sSt}, 2048")]

        D = 5

        def rd2(m):
            t, n = divmod(m, 28)
            j, st = n >> 2, n & 3
            return [E(k, f"ds_read_b64_tr_b16 {v(W6[m%NS]+2*e,2)}, v{wa[t%2]} offset:{8192*j+(16*st+4*e)*128}", wr=["wrd", f"w{m}"])
                    for e in range(2)]

        def tile(t, lim, fill, hooks={}):
            groups = []
            for n in range(28):
                m = 28 * t + n
                g = [E(k, f"{MFMA} {v(acc[t],16)}, {v(W6[m%NS],4)}, {v(X+4*n,4)}, {v(acc[t],16)}")]
                if n & 1 and m + 2 < lim:
                    g += [lambda m=m: k.need(f"w{m+2}")]
                if n in hooks:
                    g += [hooks[n]]
                if m + D < lim:
                    g += rd2(m + D)
                groups.append(g)
            run(groups[:2])
            spread(k, groups[2:26], fill)
            run(groups[26:])

        def mark(*tags, val=1):
            k.need(*tags)
            cnt_add(0, vT0, vT1, val)

        k(f"s_cmp_eq_u32 s{sLong}, 1")
        with k.if_("s_cbranch_scc0") as lg:
            mark("wa1", "rd6")
            cnt_wait(0, LV(1), vT0, vT1)
            stamp(3)
            for m in range(D):
                run([rd2(m)])
            tile(0, 56, [],
                 {OPT.get("m2", 8): lambda: mark("wa2"), 16 - D: lambda: cnt_wait(0, LV(2), vT0, vT1)})
            dstamp(1, 7)
            tile(1, 56, mish_ops(k, acc[0], tmp))
            dstamp(1, 8)
            lg.else_()
            mark("rd6", val=2)
            stamp(3)
            k(f"s_cmp_eq_u32 s{sG}, 3")
            with k.if_("s_cbranch_scc0"):
                k.need("gw")
                rd = lambda n: k(f"ds_read_b128 {v(W6[n%6],4)}, v{vGW} offset:{32*n}")
                for n in range(4):
                    rd(n)
                a = acc[0]
                for n in range(28):
                    k(f"{MFMA} {v(a,16)}, {v(W6[n%6],4)}, {v(X+4*n,4)}, {'0' if n == 0 else v(a,16)}")
                    if n + 4 < 28:
                        rd(n + 4)
                k(f"""
                v_mul_f32 v{a}, {f32(-LOG2E)}, v{a}
                v_exp_f32 v{a}, v{a}
                v_add_f32 v{a}, 1.0, v{a}
                v_rcp_f32 v{a}, v{a}
                v_and_b32 v{a+1}, 31, v{vL}
                v_lshlrev_b32 v{a+1}, 2, v{a+1}
                """)
        for r in wa[:2]:
            k(f"v_subrev_u32 v{r}, {L_W1A - L_W1B}, v{r}")
        cnt_wait(1, 4, vT0, vT1, 0xff, prio=2)
        stamp(5)
        for m in range(56, 56 + D):
            run([rd2(m)])
        tile(2, 112, mish_ops(k, acc[1], tmp), {16 - D: lambda: cnt_wait(1, 0x400, vT0, vT1, 0xff00)})
        dstamp(1, 9)
        tile(3, 112, mish_ops(k, acc[2], tmp))
        dstamp(1, 10)
        mark("wrd")
        run([mish_ops(k, acc[3], tmp)])
        dstamp(1, 11)
        cnt_wait(0, LV(3), vT0, vT1)
        cnt_wait(1, 0x40000, vT0, vT1)
        k("s_setprio 0")
        dstamp(1, 12)
        dstamp(2, 7)
        k(f"s_cmp_eq_u32 s{sLong}, 1")
        with k.if_("s_cbranch_scc0") as lg:
            run([act_store(0), act_store(1)])
            lg.else_()
            k(f"s_cmp_eq_u32 s{sG}, 3")
            with k.if_("s_cbranch_scc0"):
                k(f"""
                s_lshl_b32 s3, s{sTT}, 7
                s_add_u32 s{sT0}, s3, {WS_G}
                """)
                k(f"buffer_store_dword v{acc[0]}, v{acc[0]+1}, {s(sWS,4)}, s{sT0} offen{SC}", wr=["act"])
        run([act_store(2), act_store(3)])
        dstamp(2, 8)
        k(f"s_add_u32 s10, s10, {WS_FA}")
        k("s_setprio 2")
        k("s_cmp_ge_u32 s2, 224")
        with k.if_("s_cbranch_scc0"):
            k.need("act")
            k("s_setprio 2")
            flag_last(3, "s10", vT0, vT1)
            k("s_lshl_b32 s3, s2, 2")
            k(f"s_add_u32 s3, s3, s{sJ}")
            k("s_cmp_eq_u32 s3, 1023")
            with k.if_("s_cbranch_scc0"):
                k(f"v_lshlrev_b32 v{vT0}, 9, v{vL}")
                k(f"v_add_u32 v{vT0}, {WS_FQ}, v{vT0}")
                poll(vT0, 192, -1, (0, 128, 256, 384))
                flag("0")
            k("s_barrier")
            endpgm(2)
        vTa = 250
        RING = 192
        sAo = [8, 9, 11, 12]
        sGl = 15
        k(f"""
        s_lshl_b32 s{sT0}, s{sKH}, 2
        s_add_u32 s{sT0}, s{sT0}, s{sJ}
        s_mul_i32 s{sT0}, s{sT0}, 7
        s_mul_i32 s3, s{sR2}, 224
        s_add_u32 s3, s3, s{sT0}
        s_add_u32 s3, s3, s{sCT}
        s_lshl_b32 s3, s3, 11
        s_add_u32 s3, s3, {WS_ACT}
        v_lshrrev_b32 v{vT0}, 4, v{vL}
        v_mul_u32_u24 v{vT0}, {56*2048 - 2048}, v{vT0}
        v_lshl_add_u32 v{vT0}, v{vL}, 7, v{vT0}
        v_add_u32 v{vTa}, s3, v{vT0}
        s_lshl_b32 s3, s{sKH}, 7
        s_add_u32 s3, s3, s{sR2}
        s_lshl_b32 s3, s3, 7
        s_add_u32 s3, s3, {WS_FA}
        v_lshl_add_u32 v{vT2}, v{vL}, 11, s3
        s_lshl_b32 s3, s{sR2}, 7
        s_add_u32 s3, s3, {WS_FA + 48*128}
        v_writelane_b32 v{vT2}, s3, 8
        s_lshl_b32 s{sT1}, s{sR2}, 1
        s_add_u32 s{sT1}, s{sT1}, s{sKH}
        s_lshl_b32 s{sT1}, s{sT1}, 1
        s_and_b32 s3, s{sJ}, 1
        s_add_u32 s{sT1}, s{sT1}, s3
        s_lshl_b32 s{sGl}, s{sT1}, 7
        s_add_u32 s{sGl}, s{sGl}, {WS_G}
        """)
        for q in range(4):
            k(f"""
            s_xor_b32 s3, s{sT1}, {3-q}
            s_mul_i32 s3, s3, 56
            s_add_u32 s3, s3, s{sT0}
            s_lshl_b32 s3, s3, 11
            s_add_u32 s{sAo[q]}, s3, {WS_ACT}
            """)
        vO = [11, 9, 0, 1]
        for i in range(4):
            k(f"""
            s_xor_b32 s3, s{sJ}, {i}
            s_mul_i32 s3, s3, 12288
            s_add_u32 s3, s3, {L_FRED + 4096*max(i-1, 0)}
            v_add_u32 v{vO[i]}, s3, v{vL16}
            """)
        wr = [[wr0, wr1], [vTa + 1, vTa + 2], [vTa + 3, vTa + 4]]
        for i in (1, 2):
            for t in range(2):
                k(f"v_add_u32 v{wr[i][t]}, {65536*i}, v{wr[0][t]}")
        W2 = X
        k("s_setprio 0")
        nfa = OPT.get("nfa", 3)
        for p in range(nfa):
            run(dma_w2([p], f"w2{p}"))
        k.need("act")
        k("s_setprio 2")
        flag_last(3, "s10", vT0, vT1)
        k("s_setprio 0")
        stamp(6)

        def rdw2(st):
            row = W2ROW[st]
            for t in range(2):
                for e in range(2):
                    k(f"ds_read_b64_tr_b16 {v(W2+8*st+4*t+2*e,2)}, v{wr[row // 8][t]} offset:{8192*(row % 8)+8*e*128}",
                      wr=["r0" if st < 2 else "r1"], rd=[f"w2{st}"])
        lag = OPT.get("lag", 3)
        for p in range(nfa, 21):
            if p < 14:
                run(dma_w2([p], f"w2{p}"))
            else:
                if p == 14:
                    dstamp(0, 7)
                    dstamp(2, 9)
                if p == 19:
                    k.need("r0")
                run(dma_rows(sWO, [((p - 12) % 7,) * 2], 64 * 896, "wo"))
            if p == nfa:
                for st in range(p - lag):
                    rdw2(st)
            if 0 <= p - lag < 14:
                rdw2(p - lag)
        if OPT.get("ct", 0):
            k(f"s_cmp_eq_u32 s{sWv}, 7")
            with k.if_("s_cbranch_scc0"):
                k.label("CT0")
                k(f"""
                s_getpc_b64 {s(sM, 2)}
                s_sub_u32 s{sM}, s{sM}, CT0+4-KST
                s_subb_u32 s{sM+1}, s{sM+1}, 0
                s_lshr_b32 s3, s2, 3
                s_mul_i32 s3, s3, {per + 2}
                v_lshrrev_b32 v{vFd}, 4, v{vL16}
                v_min_u32 v{vFd}, {per + 1}, v{vFd}
                v_add_u32 v{vFd}, s3, v{vFd}
                v_lshlrev_b32 v{vFd}, 7, v{vFd}
                v_min_u32 v{vFd}, {max(code_size - 64, 0) & ~3}, v{vFd}
                global_load_dword v{vFd}, v{vFd}, {s(sM, 2)}
                """)
        k("s_setprio 2")
        dstamp(2, 12)
        poll(vT2, vFd, "0x1ff")
        dstamp(0, 8)

        def slot(f):
            return (acc[0] + 4 * f if f < 4 else acc[2] + 4 * (f - 4)) if f < 8 else RING + 4 * ((f - 8) % 16)

        def ldA(f):
            q, st = divmod(f, 14)
            if st % 4 == 0:
                k(f"s_add_u32 s{sA}, s{sAo[q]}, {st*1024}")
            if f < 24:
                run([thr()])
            k(f"buffer_load_dwordx4 {v(slot(f),4)}, v{vL16}, {s(sWS,4)}, s{sA} offen offset:{(st%4)*1024}{SC}", wr=[f"a{f}"])

        def send(i):
            return [E(k, f"ds_write_b128 v{vO[i]}, {v(acc[i]+4*c,4)} offset:{1024*c}", wr=["fw"]) for c in range(4)]

        k("s_setprio 0")
        if OPT.get("ta", 1):
            k(f"buffer_load_dword v{vFd}, v{vTa}, {s(sWS,4)}, 0 offen{SC}")
        for f in range(24):
            ldA(f)
        k.need("wo", "r1")
        dstamp(0, 9)
        k("s_barrier")
        k(f"s_setprio {OPT.get('fprio', 2)}")
        dstamp(0, 10)
        dstamp(3, 5)
        k(f"v_mov_b32 v{vT0}, {L_CNT}")
        k(f"v_mov_b32 v{vT2}, 1")

        def mark2(*tags, word=0):
            k.need(*tags)
            k("s_mov_b64 exec, 1")
            k(f"ds_add_u32 v{vT0}, v{vT2} offset:{4*word}")
            k("s_mov_b64 exec, -1")

        def peek():
            k(f"ds_read_b32 v{vT1}, v{vT0}")

        def check(lv):
            k(f"v_readfirstlane_b32 s3, v{vT1}")
            k(f"s_cmp_lt_u32 s3, {lv}")
            with k.if_("s_cbranch_scc0"):
                cnt_wait(0, lv, vT0, vT1)

        def recv(i, c):
            k(f"ds_read_b128 {v(acc[i]+4*c,4)}, v{vO[0]} offset:{4096*(i-1)+1024*c}", wr=["fr"])

        ev = {}
        at = lambda m, fn: ev.setdefault(m, []).append(fn)
        quad = lambda d, a, c: (lambda: run([padd(acc[d] + 4 * c, acc[d] + 4 * c, acc[a] + 4 * c, 4)]))
        fe = OPT.get("fe", 6)

        def xfer(m, sw, lv):
            for i in (1, 3):
                for fn in send(i):
                    at(m, fn)
                    m += sw
            m += 2 - sw
            at(m, lambda: mark2("fw"))
            at(m + 1, peek)
            m += 3
            at(m, lambda: check(lv))
            for i in (1, 3):
                for c in range(4):
                    at(m, lambda i=i, c=c: recv(i, c))
                    m += c & 1
            for c in range(4):
                at(m + 1 + c, quad(1, 3, c))
            return m + 5
        assert xfer(28, OPT.get("sw", 2), LV(4)) <= 56
        for c in range(4):
            at(57 + c // 2, quad(0, 1, c))
        w1 = OPT.get("w1", 1)
        for i, fn in enumerate(send(2) + send(0)):
            at(56 + w1 * i, fn)
        at(58 + w1 * 7, lambda: mark2("fw"))
        om = OPT.get("om", 80)
        if om:
            at(om, lambda: mark2(word=5))
        c1 = OPT.get("c1", 86)
        at(c1 - 2, peek)
        at(c1, lambda: check(0x800))
        m = xfer(c1, OPT.get("sw1", 1), 0x400 + LV(6))
        scale = lambda i, c: (lambda: [k(f"v_mul_f32 v{acc[i]+r}, v{acc[i]+r}, v{vFd}") for r in range(4 * c, 4 * c + 4)])
        for c in range(4):
            at(m - 4 + c, scale(1, c))
        assert m <= 113 - fe
        for c, fn in enumerate(send(2)):
            at(113 - fe + c, scale(2, c))
            at(113 - fe + c, fn)

        def ldG():
            k(f"v_bfe_u32 v{vFd}, v{vL16}, 2, 7")
            k(f"buffer_load_dword v{vFd}, v{vFd}, {s(sWS,4)}, s{sGl} offen{SC}")
        at(2, ldG)
        at(70, lambda: k(f"v_sub_f32 v{vFd}, 1.0, v{vFd}"))
        il = lambda o, f0, sts: [(ai, st, ai >> 1, f0 + st, ai == o[-1]) for st in sts for ai in o]
        hold = lambda l: [x[:4] + (False,) for x in l]
        seq = il((1, 3), 0, range(14)) + il((2, 0), 14, range(14))
        seq += hold(il((3,), 28, range(3))) + il((1,), 28, range(3)) + il((1, 3), 28, range(3, 14))
        seq += il((2, 0), 42, range(14 - fe)) + il((2,), 42, range(14 - fe, 14)) + il((0,), 42, range(14 - fe, 14))
        assert len(seq) == 112
        for m, (ai, st, t, f, free) in enumerate(seq):
            a = acc[ai]
            k(f"{MFMA} {v(a,16)}, {v(W2+8*st+4*t,4)}, {v(slot(f),4)}, {'0' if st == 0 else v(a,16)}")
            if m + 1 < 112:
                k.need(f"a{seq[m+1][3]}")
            if free and 24 <= f + 16 < 56:
                ldA(f + 16)
            for fn in ev.get(m, []):
                fn()
            if m % 16 == 15:
                dstamp(3, 6 + m // 16)
            d0, dn = OPT.get("d0", 55), OPT.get("dn", 4)
            if m >= d0 and (m - d0) % dn == 0 and (m - d0) // dn < 8:
                dstamp(4, 5 + (m - d0) // dn)
        dstamp(0, 11)
        for m in sorted(ev):
            if m >= 112:
                for fn in ev[m]:
                    fn()
        for c in range(4):
            for r in range(4 * c, 4 * c + 4):
                k(f"v_fma_f32 v{acc[0]+r}, v{acc[0]+r}, v{vFd}, v{acc[1]+r}")
            send(0)[c]()
        k.need("fw")
        dstamp(0, 12)
        k("s_barrier")
        endpgm(1)
    return k


def main():
    for a in sys.argv[2:]:
        kk, vv = a.split("=")
        try:
            vv = int(vv)
        except ValueError:
            vv = " " + vv.replace("+", " ")
        OPT[kk] = vv
    out = sys.argv[1]
    open(out, "w").write(build([(NAME + "_kernel", gen, 256, 512, 163840)]))


if __name__ == "__main__":
    main()
```

```python
import math, struct, sys, os
sys.path.insert(0, os.path.dirname(os.path.abspath(__file__)))
from asmlib import *
from gen import f32, MFMA, SMF, LOG2E, NAME, srd, spread, E, mish_ops, build

OPT = dict()
WS_FQ, WS_FA, WS_FO, WS_FP, WS_G = 0x8000, 0x10000, 0x20000, 0x40000, 0x60000
WS_QKV, WS_ACT, WS_OF, WS_PX, WS_DBG, WS_SIZE = 0x100000, 0x700000, 0xE00000, 0x1000000, 0x1400000, 0x1500000
SLOT = 32768
SLOTS = [0, 32768, 65536]
L_W1B = 32768
L_W1A, L_FRED, L_ORED, L_CNT, L_GW = 98304, 57344, 106496, 155648, 159744
SST = 74
SC = " sc1"
SPIN = 1 << 16


def gen(code_size):
    k = Prog("f5")
    sX, sQ, sW, sWS, sWA, sW2, sWO = 24, 28, 32, 36, 40, 44, 48
    sWv, sRB, sG, sTT, sFS, sLong, sO0, sT0, sT1, sL2, sL1, sC, sSo, sTag, sCnt, sA, sM, _, sB, sD, sEe, sF = range(52, 74)
    vL, vL16, vT0, vT1, vT2 = 1, 2, 3, 4, 5
    vX0, vX1, vQ0, vQ1, vW = 240, 241, 242, 243, 244
    xa = [245, 246, 247, 248]
    wa = [249, 250, 251]
    vPad, vE, vPF = 252, 253, 254
    X = 16
    vTag = 12

    st_off = [0]

    def bstamp():
        if OPT.get("blk"):
            st_off[0] = 1
            k("s_max_i32 s3, s9, 0")
            k("s_min_i32 m0, s3, 26")
            k("s_add_u32 s9, s9, 2")
            k(f"s_movreld_b32 s{SST}, s16")
            k(f"{'s_memtime' if OPT['stamp'] == 2 else 's_memrealtime'} s[16:17]")

    def dstamp(lvl, i):
        if OPT.get("dbg", 0) == lvl:
            stamp(i)

    def stamp(i):
        if OPT.get("blk") and st_off[0]:
            return
        if OPT.get("stamp") == 2:
            k(f"s_memtime {s(SST + 2 * i, 2)}")
        elif OPT.get("stamp"):
            k(f"s_memrealtime {s(SST + 2 * i, 2)}")

    def endpgm(role=0):
        if OPT.get("pad"):
            k("s_waitcnt vmcnt(0)")
            stamp(13)
            ps = OPT.get("ps%d" % role, 0)
            k(f"s_add_u32 s{SST}, s{SST + 2 * ps}, {OPT['pad'] * 100}")
            if "padwg" in OPT:
                k(f"s_cmp_eq_u32 s2, {OPT['padwg']}")
                k(f"s_cselect_b32 s{SST}, s{SST}, s{SST + 2 * ps}")
            with k.loop([1, 2]) as lp:
                k(f"s_memrealtime {s(SST + 2, 2)}")
                k(f"s_sub_u32 s3, s{SST + 2}, s{SST}")
                k("s_cmp_lt_i32 s3, 0")
                lp.back("s_cbranch_scc1")
            k("s_endpgm")
            return
        if OPT.get("stamp"):
            k("s_waitcnt vmcnt(0)")
            stamp(13)
            k(f"""
            s_lshl_b32 s3, s2, 3
            s_add_u32 s3, s3, s{sWv}
            s_lshl_b32 s3, s3, 6
            s_add_u32 s3, s3, {WS_DBG}
            v_mov_b32 v1, 0
            """)
            for i in range(14):
                k(f"v_mov_b32 v2, s{SST + 2 * i}")
                k(f"buffer_store_dword v2, v1, {s(sWS, 4)}, s3 offen offset:{4 * i}")
        k("s_endpgm")

    def poll(vA, vD, mask, offs=(0,), prio=None, req=None):
        k(f"s_mov_b32 s{sCnt}, {SPIN}")
        if prio is not None:
            k("s_setprio 0")
        k(f"s_mov_b64 exec, {mask}")
        with k.loop([1, 2]) as lp:
            for i, o in enumerate(offs):
                if OPT.get("pa"):
                    k(f"v_mov_b32 v{vD+i}, 0")
                    k(f"buffer_atomic_or v{vD+i}, v{vA}, {s(sWS,4)}, 0 offen offset:{o} sc0 sc1")
                else:
                    k(f"buffer_load_dword v{vD+i}, v{vA}, {s(sWS,4)}, 0 offen offset:{o}{OPT.get('pf', SC)}")
            k(f"s_sub_u32 s{sCnt}, s{sCnt}, 1")
            k(f"v_cmp_ne_u32 vcc, s{sTag}, v{vD}")
            for i in range(1, len(offs)):
                k(f"v_cmp_ne_u32 {s(sM,2)}, s{sTag}, v{vD+i}")
                k(f"s_or_b64 vcc, vcc, {s(sM,2)}")
            k(f"""
            {"s_cmp_lg_u64 vcc, 0" if req is None else f"s_and_b32 s3, vcc_lo, {req}"}
            s_cselect_b32 s3, s{sCnt}, 0
            s_cmp_lg_u32 s3, 0
            """)
            lp.back("s_cbranch_scc1")
        if prio is not None:
            k(f"s_setprio {prio}")
        k("s_mov_b64 exec, -1")

    def flag(so):
        k("s_mov_b64 exec, 0xff")
        k(f"buffer_store_dwordx4 {v(vTag,4)}, v{vL16}, {s(sWS,4)}, {so} offen{OPT.get('ff', SC)}")
        k("s_mov_b64 exec, -1")

    def flag_last(which, so, va, vb):
        k(f"v_mov_b32 v{va}, {L_CNT}")
        k(f"v_mov_b32 v{vb}, 1")
        k("s_mov_b64 exec, 1")
        k(f"ds_add_rtn_u32 v{vb}, v{va}, v{vb} offset:{4*which}")
        k("s_mov_b64 exec, -1")
        k(f"v_readfirstlane_b32 s3, v{vb}")
        k("s_cmp_eq_u32 s3, 3")
        with k.if_("s_cbranch_scc0"):
            flag(so)

    def cnt_add(which, va, vb, val=1):
        k(f"v_mov_b32 v{va}, {L_CNT}")
        k(f"v_mov_b32 v{vb}, {val}")
        k("s_mov_b64 exec, 1")
        k(f"ds_add_u32 v{va}, v{vb} offset:{4*which}")
        k("s_mov_b64 exec, -1")

    def cnt_wait(which, target, va, vb, mask=None, prio=None):
        k(f"v_mov_b32 v{va}, {L_CNT}")
        if prio is not None:
            k("s_setprio 0")
        k(f"s_mov_b32 s{sCnt}, {SPIN * 16}")
        with k.loop([1, 2]) as lp:
            k(f"""
            ds_read_b32 v{vb}, v{va} offset:{4*which}
            s_sub_u32 s{sCnt}, s{sCnt}, 1
            v_readfirstlane_b32 s3, v{vb}
            {f"s_and_b32 s3, s3, {mask}" if mask else ""}
            s_cmp_lt_u32 s3, {target}
            s_cselect_b32 s3, s{sCnt}, 0
            s_cmp_lg_u32 s3, 0
            """)
            lp.back("s_cbranch_scc1")
        if prio is not None:
            k(f"s_setprio {prio}")

    def padd(d, a, b, n=16, pk=False):
        if pk:
            return [E(k, f"v_pk_add_f32 {v(d+r,2)}, {v(a+r,2)}, {v(b+r,2)}") for r in range(0, n, 2)]
        return [E(k, f"v_add_f32 v{d+r}, v{a+r}, v{b+r}") for r in range(n)]

    def fmap(r2, kh):
        if OPT.get("loc", 1):
            return f"""s_and_b32 s{r2}, s2, 7
            s_lshl_b32 s{r2}, s{r2}, 1
            s_bfe_u32 s3, s2, 0x10003
            s_add_u32 s{r2}, s{r2}, s3
            s_bfe_u32 s{kh}, s2, 0x10004"""
        return f"""s_bfe_u32 s{r2}, s2, 0x20001
            s_lshl_b32 s{r2}, s{r2}, 2
            s_bfe_u32 s3, s2, 0x20003
            s_add_u32 s{r2}, s{r2}, s3
            s_and_b32 s{kh}, s2, 1"""

    def tr_parts(r, p):
        k(f"""
        v_bfe_u32 v{p}, v{vL}, 4, 1
        v_and_b32 v{r}, 3, v{vL}
        v_lshl_add_u32 v{p}, v{p}, 2, v{r}
        v_bfe_u32 v{r}, v{vL}, 2, 2
        """)

    k.label("KST")
    k("s_load_dwordx16 s[4:19], s[0:1], 0")
    k("s_load_dwordx2 s[20:21], s[0:1], 80")
    k("s_load_dwordx2 s[22:23], s[0:1], 64")
    k("s_cmp_ge_u32 s2, 256")
    with k.if_("s_cbranch_scc0"):
        k("s_endpgm")
    stamp(0)
    k(f"""
    v_lshrrev_b32 v{vT0}, 6, v0
    v_and_b32 v{vL}, 63, v0
    s_getpc_b64 {s(sM, 2)}
    v_readfirstlane_b32 s{sWv}, v{vT0}
    """)
    nl = code_size // 128 + 1
    per = (nl + 31) // 32
    assert per <= 64
    k(f"s_cmp_eq_u32 s{sWv}, 7")
    with k.if_("s_cbranch_scc0"):
        k(f"""
        s_lshr_b32 s3, s2, 3
        s_mul_i32 s3, s3, {per}
        v_min_u32 v{vPF}, {per - 1}, v{vL}
        v_add_u32 v{vPF}, s3, v{vPF}
        v_lshlrev_b32 v{vPF}, 7, v{vPF}
        v_min_u32 v{vPF}, {max(code_size - 64, 0) & ~3}, v{vPF}
        global_load_dword v{vPF}, v{vPF}, {s(sM, 2)}
        """)
    k(f"""
    s_and_b32 s3, s2, 4
    s_lshl_b32 s3, s3, 1
    s_bfe_u32 s{sRB}, s2, 0x30003
    s_add_u32 s{sRB}, s{sRB}, s3
    s_and_b32 s3, s2, 3
    s_lshl_b32 s3, s3, 2
    s_lshr_b32 s{sG}, s2, 6
    s_add_u32 s{sG}, s{sG}, s3
    s_add_u32 s{sC}, s{sRB}, s{sG}
    s_mul_i32 s3, s{sC}, 37
    s_lshr_b32 s3, s3, 8
    s_mul_i32 s3, s3, 7
    s_sub_u32 s{sC}, s{sC}, s3
    s_and_b32 s{sA}, s{sWv}, 3
    s_lshl_b32 s{sTT}, s{sRB}, 2
    s_add_u32 s{sTT}, s{sTT}, s{sA}
    s_lshl_b32 s{sL2}, s{sWv}, 11
    s_mul_i32 s{sT0}, s{sG}, 168
    s_bitcmp1_b32 0x1248, s{sG}
    s_cselect_b32 s{sLong}, 0, 1
    s_cselect_b32 s3, 15, 127
    s_and_b32 s{sO0}, s{sT0}, s3
    s_sub_u32 s{sT0}, s{sT0}, s{sO0}
    v_lshrrev_b32 v{vT0}, 3, v{vL}
    s_lshl_b32 s3, s{sWv}, 4
    v_add_u32 v{vT1}, s3, v{vT0}
    v_mul_u32_u24 v{vX0}, 896, v{vT1}
    v_lshrrev_b32 v{vT1}, 4, v{vL}
    v_and_b32 v{vT2}, 7, v{vL}
    v_xor_b32 v{vX1}, v{vT2}, v{vT1}
    v_lshl_add_u32 v{vQ0}, v{vX1}, 4, v{vX0}
    v_xor_b32 v{vX1}, 4, v{vX1}
    v_lshl_add_u32 v{vX1}, v{vX1}, 4, v{vX0}
    v_add_u32 v{vX1}, {8*896-1024}, v{vX1}
    v_mov_b32 v{vX0}, v{vQ0}
    s_lshl_b32 s3, s{sWv}, 3
    v_add_u32 v{vT0}, s3, v{vT1}
    v_mul_u32_u24 v{vQ0}, 2688, v{vT0}
    v_lshlrev_b32 v{vT0}, 2, v{vT1}
    v_and_b32 v{vT2}, 15, v{vL}
    v_xor_b32 v{vT0}, v{vT0}, v{vT2}
    v_lshl_add_u32 v{vQ0}, v{vT0}, 4, v{vQ0}
    v_add_u32 v{vQ1}, {4*2688-1024}, v{vQ0}
    v_mov_b32 v{vE}, 0
    s_mul_i32 s{sB}, s{sRB}, {128*896}
    s_sub_u32 s{sD}, {448*2688}, s{sT0}
    """)
    srd(k, sX, 4, 5, f"s{sB}", 128 * 896)
    srd(k, sQ, 6, 7, f"s{sT0}", f"s{sD}")

    def nxt():
        return [E(k, f"s_add_u32 s{sC}, s{sC}, 1"), E(k, f"s_cmp_eq_u32 s{sC}, 7"), E(k, f"s_cselect_b32 s{sC}, 0, s{sC}")]

    def dma_chunk(c, halves=(0,)):
        so = SLOTS[c % 3]
        t = dict(wr=[f"ch{c}"])
        out = []
        for hf in halves:
            out += [
                [E(k, f"s_add_u32 m0, s{sL2}, {so+8192*hf}"),
                 E(k, f"s_lshl_b32 s{sSo}, s{sC}, 7" if hf == 0 else f"s_add_u32 s{sSo}, s{sSo}, {64*896}"),
                 E(k, f"buffer_load_dwordx4 v{vX0}, {s(sX,4)}, s{sSo} offen lds", **t)],
                [E(k, f"buffer_load_dwordx4 v{vX1}, {s(sX,4)}, s{sSo} offen offset:1024 lds", **t)]]
        for hf in halves:
            out += [
                [E(k, f"s_add_u32 m0, s{sL2}, {so+16384+8192*hf}"),
                 E(k, f"s_mul_i32 s{sSo}, s{sC}, {64*2688}" if hf == 0 else f"s_add_u32 s{sSo}, s{sSo}, {32*2688}"),
                 E(k, f"buffer_load_dwordx4 v{vQ0}, {s(sQ,4)}, s{sSo} offen lds", **t)],
                [E(k, f"buffer_load_dwordx4 v{vQ1}, {s(sQ,4)}, s{sSo} offen offset:1024 lds", **t)]]
        out[-1] += nxt()
        return out

    def run(groups):
        for g in groups:
            for f in g:
                f()

    stamp(1)
    run(dma_chunk(0))
    k(f"global_load_dword v{vE}, v{vE}, s[20:21]{SC}")
    if OPT.get("t1", 1):
        k(f"s_cmp_eq_u32 s{sWv}, 5")
        with k.if_("s_cbranch_scc0"):
            k(f"""
            s_bfe_u32 s{sT0}, s2, 0x10002
            s_lshl_b32 s{sT0}, s{sT0}, 5
            s_lshr_b32 s3, s2, 3
            s_add_u32 s{sT0}, s{sT0}, s3
            s_mul_i32 s{sT0}, s{sT0}, {7*3584}
            s_and_b32 s3, s2, 3
            s_mul_i32 s3, s3, 896
            s_add_u32 s{sT0}, s{sT0}, s3
            v_min_u32 v{vT0}, 48, v{vL}
            v_mul_u32_u24 v{vT1}, 37, v{vT0}
            v_lshrrev_b32 v{vT1}, 8, v{vT1}
            v_mul_u32_u24 v{vT1}, {3584-896}, v{vT1}
            v_lshl_add_u32 v{vT0}, v{vT0}, 7, v{vT1}
            v_add_u32 v{vT0}, s{sT0}, v{vT0}
            global_load_dword v{vPF}, v{vT0}, s[12:13]
            """)
    k("s_barrier")
    run(dma_chunk(1))
    srd(k, sWS, 20, 21, 0, WS_SIZE)
    k(f"""
    v_lshlrev_b32 v{vL16}, 4, v{vL}
    v_mov_b32 v{vT0}, {L_CNT}
    v_mov_b32 v{vT1}, 0
    v_mov_b32 v{vT2}, 0
    s_lshl_b32 s{sF}, s{sG}, 4
    s_add_u32 s{sF}, s{sF}, s{sRB}
    s_lshl_b32 s10, s{sF}, 7
    """)
    k(f"ds_write_b64 v{vT0}, {v(vT1,2)}", wr=["ch0"])
    k(f"ds_write_b64 v{vT0}, {v(vT1,2)} offset:8", wr=["ch0"])
    k(f"ds_write_b64 v{vT0}, {v(vT1,2)} offset:16", wr=["ch0"])
    k(f"""
    v_and_b32 v{vT0}, 31, v{vL}
    s_lshl_b32 s3, s{sA}, 5
    v_add_u32 v{vT1}, s3, v{vT0}
    v_lshlrev_b32 v{vT1}, 7, v{vT1}
    v_bfe_u32 v{vT0}, v{vL}, 1, 3
    v_lshrrev_b32 v{vT2}, 5, v{vL}
    v_xor_b32 v{vT0}, v{vT0}, v{vT2}
    v_lshl_add_u32 v{xa[0]}, v{vT0}, 4, v{vT1}
    v_xor_b32 v{xa[1]}, 32, v{xa[0]}
    v_xor_b32 v{xa[2]}, 64, v{xa[0]}
    v_xor_b32 v{xa[3]}, 96, v{xa[0]}
    """)
    k(f"""
    s_bfm_b32 s3, s{sG}, 0
    s_and_b32 s3, s3, 0x1248
    s_bcnt1_i32_b32 s3, s3
    s_lshl_b32 s{sFS}, s{sG}, 1
    s_sub_u32 s{sFS}, s{sFS}, s3
    s_lshl_b32 s{sFS}, s{sFS}, 1
    s_lshl_b32 s{sL2}, s{sA}, 11
    v_bfe_u32 v{vT1}, v{vL}, 4, 1
    v_lshlrev_b32 v{vT1}, 2, v{vT1}
    v_and_b32 v{vT0}, 7, v{vL}
    v_xor_b32 v{vT1}, v{vT1}, v{vT0}
    v_lshrrev_b32 v{vT0}, 3, v{vL}
    s_lshl_b32 s3, s{sA}, 4
    v_add_u32 v{vT0}, s3, v{vT0}
    v_mul_u32_u24 v{vW}, 3584, v{vT0}
    v_lshl_add_u32 v{vW}, v{vT1}, 4, v{vW}
    """)
    tr_parts(vT0, vT1)
    k(f"v_lshl_add_u32 v{vT2}, v{vT2}, 3, v{vT0}")

    def dma_w1(srdn, base, js, tag):
        out = []
        for j in js:
            out += [[E(k, f"s_add_u32 m0, s{sL2}, {base+8192*j}"), E(k, f"s_mul_i32 s{sSo}, s{sC}, {64*3584}"),
                     E(k, f"buffer_load_dwordx4 v{vW}, {s(srdn,4)}, s{sSo} offen lds", wr=[tag])],
                    [E(k, f"s_add_u32 s{sSo}, s{sSo}, {8*3584-1024}"),
                     E(k, f"buffer_load_dwordx4 v{vW}, {s(srdn,4)}, s{sSo} offen offset:1024 lds", wr=[tag])] + nxt()]
        return out

    def make_tag():
        k(f"v_readfirstlane_b32 s{sTag}, v{vE}")
        k(f"s_mul_i32 s{sTag}, s{sTag}, 0x9E3779B1")
        k(f"s_add_u32 s{sTag}, s{sTag}, 0x7F4A7C15")
        for i in range(4):
            k(f"v_mov_b32 v{vTag+i}, s{sTag}")

    def rebase(st8, c, regs):
        out = []
        if SLOTS[c % 3] - st8["base"] not in (0, SLOT):
            nb = SLOT if SLOTS[c % 3] == 2 * SLOT else 0
            d = "v_add_u32" if nb > st8["base"] else "v_subrev_u32"
            out = [E(k, f"{d} v{r}, {SLOT}, v{r}") for r in regs]
            st8["base"] = nb
        return out

    LV = lambda n: 0x400 + 4 * n

    k(f"s_cmp_lt_u32 s{sWv}, 4")
    with k.if_("s_cbranch_scc0") as role:
        acc = [112, 128, 144]
        Xr = [16 + 4 * i for i in range(4)]
        Wf = [[32 + 16 * t + 4 * i for i in range(4)] for t in range(3)]
        sSc, sSt, sR, sOff, sQo = [4, 6, 14], 11, [12, 13, 18], 19, [sRB, sTT, sFS, sO0]
        sH, sQB, sIt, sOFs, sFO, sOFl, sGl, sHH = range(44, 52)
        sTo, sCT, sPx, sPxW, sTagH, sSel, sRot = sB, sD, sF, 4, 5, [6, 7, 15], 14
        vTc, vTd = 0, 255
        sK, sV, sOUT = sX, sQ, sW
        vLp, vIdx, vIn, vFd, vCn, vCv = 6, 7, 8, 9, 10, 11
        vOut, vPq = [240, 241, 242], 243
        wA, wB, wC, wD, vPo, vG, vSt, vPi, vBi = range(245, 254)
        Q = [16 + 8 * j for j in range(4)]
        KB = [48 + 8 * j for j in range(4)]
        VB = [80 + 8 * j for j in range(4)]
        S = [112 + 16 * j for j in range(4)]
        O = [176 + 16 * j for j in range(4)]
        k("s_setprio 3")
        k(f"""
        s_lshl_b32 s{sT1}, s{sFS}, 6
        s_lshl_b32 s3, s{sLong}, 7
        s_add_u32 s{sT1}, s{sT1}, s3
        s_sub_u32 s{sEe}, {448*3584}, s{sT1}
        s_add_u32 s{sC}, s{sC}, 5
        s_cmp_ge_u32 s{sC}, 7
        s_cselect_b32 s3, 7, 0
        s_sub_u32 s{sC}, s{sC}, s3
        """)
        srd(k, sWA, 12, 13, f"s{sT1}", f"s{sEe}")
        t2 = OPT.get("t2", 1)
        if t2 == 1:
            k(f"""
            s_lshr_b32 s3, s2, 1
            s_lshl_b32 s3, s3, 2
            s_add_u32 s{sT0}, s3, s{sWv}
            s_mul_i32 s{sT0}, s{sT0}, 49
            s_lshr_b32 s{sT0}, s{sT0}, 2
            s_and_b32 s3, s2, 1
            s_mul_i32 s3, s3, 6272
            s_add_u32 s{sT0}, s{sT0}, s3
            s_lshl_b32 s3, s2, 2
            s_add_u32 s{sT1}, s3, s{sWv}
            s_mul_i32 s{sT1}, s{sT1}, 49
            s_lshr_b32 s{sT1}, s{sT1}, 4
            """)
            n2, no = 13, 4
        else:
            k(f"""
            s_lshr_b32 s3, s2, 3
            s_lshl_b32 s3, s3, 2
            s_add_u32 s3, s3, s{sWv}
            s_mul_i32 s{sT1}, s3, 49
            s_and_b32 s3, s2, 1
            s_mul_i32 s3, s3, 6272
            s_add_u32 s{sT0}, s{sT1}, s3
            s_lshr_b32 s{sT1}, s{sT1}, 1
            """)
            n2, no = 49, 25
        k(f"""
        v_min_u32 v{vTc}, {n2-1}, v{vL}
        v_add_u32 v{vTc}, s{sT0}, v{vTc}
        v_lshlrev_b32 v{vTc}, 7, v{vTc}
        v_min_u32 v{vTd}, {no-1}, v{vL}
        v_add_u32 v{vTd}, s{sT1}, v{vTd}
        v_lshlrev_b32 v{vTd}, 7, v{vTd}
        """)
        k(f"""
        v_min_u32 v{wa[0]}, 6, v{vT1}
        v_lshlrev_b32 v{wa[0]}, 3, v{wa[0]}
        v_add_u32 v{wa[0]}, s{sO0}, v{wa[0]}
        v_add_u32 v{wa[1]}, 56, v{wa[0]}
        v_add_u32 v{wa[2]}, 112, v{wa[0]}
        v_lshlrev_b32 v{vT0}, 6, v{vT0}
        v_lshlrev_b32 v{vT2}, 8, v{vT2}
        v_add_u32 v{vT2}, 16384, v{vT2}
        v_xor_b32 v{wa[0]}, v{wa[0]}, v{vT0}
        v_xor_b32 v{wa[1]}, v{wa[1]}, v{vT0}
        v_xor_b32 v{wa[2]}, v{wa[2]}, v{vT0}
        v_add_u32 v{wa[0]}, v{wa[0]}, v{vT2}
        v_add_u32 v{wa[1]}, v{wa[1]}, v{vT2}
        v_add_u32 v{wa[2]}, v{wa[2]}, v{vT2}
        v_and_b32 v{vT0}, 31, v{vL}
        v_mov_b32 v{vT1}, 0x3f803f80
        v_cmp_eq_u32 vcc, 28, v{vT0}
        v_cndmask_b32 v{vPad}, 0, v{vT1}, vcc
        s_mul_i32 s{sT0}, s{sG}, 3
        """)
        for t in range(3):
            k(f"s_cmp_lt_u32 s{sT0}, {16 - t}")
            k(f"s_cselect_b32 s{sSc[t]}, {f32(28 ** -0.5 * LOG2E)}, 1.0")
            k(f"s_mov_b32 s{sSc[t]+1}, s{sSc[t]}")
        k(f"""
        s_lshl_b32 s{sT0}, s{sT0}, 6
        s_add_u32 s{sT0}, s{sT0}, s{sTT}
        s_lshl_b32 s{sSt}, s{sT0}, 11
        s_add_u32 s{sSt}, s{sSt}, {WS_QKV}
        s_add_u32 s10, s10, {WS_FQ}
        s_and_b32 s{sH}, s2, 7
        s_lshl_b32 s{sH}, s{sH}, 1
        s_bfe_u32 s3, s2, 0x10003
        s_add_u32 s{sH}, s{sH}, s3
        s_lshr_b32 s{sQB}, s2, 4
        v_and_b32 v{vT0}, 0x33, v{vL}
        v_bfe_u32 v{vT1}, v{vL}, 2, 1
        v_bfe_u32 v{vT2}, v{vL}, 3, 1
        v_lshl_or_b32 v{vT0}, v{vT1}, 3, v{vT0}
        v_lshl_or_b32 v{vT0}, v{vT2}, 2, v{vT0}
        v_lshlrev_b32 v{vLp}, 4, v{vT0}
        s_lshl_b32 s{sT0}, s{sH}, 17
        s_add_u32 s{sT0}, s{sT0}, {WS_QKV}
        s_lshl_b32 s{sT1}, s{sWv}, 15
        s_add_u32 s{sT1}, s{sT1}, s{sT0}
        s_add_u32 s3, s{sT1}, {16*64*2048}
        """)
        srd(k, sK, 20, 21, "s3", 32768)
        k(f"s_add_u32 s3, s{sT1}, {32*64*2048}")
        srd(k, sV, 20, 21, "s3", 32768)
        k(f"""
        v_lshrrev_b32 v{vT0}, 4, v{vL}
        v_add_u32 v{vT0}, 1, v{vT0}
        v_cmp_gt_u32 vcc, 32, v{vL}
        v_cndmask_b32 v{vT0}, 0, v{vT0}, vcc
        v_lshl_add_u32 v{vT0}, v{vT0}, 4, s{sH}
        v_mul_u32_u24 v{vT0}, 43, v{vT0}
        v_lshrrev_b32 v{vT0}, 7, v{vT0}
        v_and_b32 v{vT1}, 15, v{vL}
        v_mov_b32 v{vT2}, s{sQB}
        v_cndmask_b32 v{vT1}, v{vT2}, v{vT1}, vcc
        v_lshl_add_u32 v{vT0}, v{vT0}, 4, v{vT1}
        v_lshlrev_b32 v{vT0}, 7, v{vT0}
        v_add_u32 v{vPq}, {WS_FQ}, v{vT0}
        s_lshl_b32 s3, s{sQB}, 13
        s_add_u32 s{sT0}, s{sT0}, s3
        """)
        for j in range(4):
            for r in range(16):
                k(f"v_mov_b32 v{O[j]+r}, 0")
        for r in range(8, 16):
            k(f"v_mov_b32 v{S[3]+r}, 0")
        for r in range(4, 8):
            k(f"v_mov_b32 v{VB[3]+r}, 0")
        k(f"v_mov_b32 v{vIdx}, 0xdddd")
        k(f"v_mov_b32 v{vCn}, {L_CNT}")
        k(f"s_mov_b32 s{sR[0]}, 4096")
        k(f"s_mov_b32 s{sOff}, 6144")
        for j in range(4):
            k(f"""
            s_add_u32 s3, s{sWv}, {1+j}
            s_and_b32 s3, s3, 3
            s_mul_i32 s{sT1}, s3, 12288
            s_add_u32 s{sT1}, s{sT1}, {L_ORED + 4096 * (j % 3)}
            v_add_u32 v{(vOut + [vIn])[j]}, s{sT1}, v{vL16}
            s_lshl_b32 s3, s3, 11
            s_add_u32 s{sQo[j]}, s3, s{sT0}
            """)
        k(f"""
        s_lshl_b32 s{sT0}, s{sQB}, 2
        s_add_u32 s{sT0}, s{sT0}, s{sWv}
        s_lshl_b32 s3, s{sT0}, 4
        s_add_u32 s3, s3, s{sH}
        s_lshl_b32 s{sOFs}, s3, 11
        s_add_u32 s{sOFs}, s{sOFs}, {WS_OF}
        s_lshr_b32 s{sHH}, s{sWv}, 1
        {fmap(sTo, 3)}
        s_lshl_b32 s{sTo}, s{sTo}, 1
        s_add_u32 s{sTo}, s{sTo}, s3
        s_lshl_b32 s{sTo}, s{sTo}, 1
        s_and_b32 s3, s{sWv}, 1
        s_add_u32 s{sTo}, s{sTo}, s3
        s_lshr_b32 s{sCT}, s2, 5
        s_lshl_b32 s3, s{sTo}, 7
        s_add_u32 s{sGl}, s3, {WS_G}
        s_lshl_b32 s{sOFl}, s{sTo}, 1
        s_add_u32 s{sOFl}, s{sOFl}, s{sHH}
        s_lshl_b32 s{sOFl}, s{sOFl}, 14
        s_add_u32 s{sOFl}, s{sOFl}, {WS_OF}
        s_mul_i32 s3, s{sTo}, {32*896}
        """)
        srd(k, sOUT, 22, 23, "s3", 32 * 896)
        if OPT.get("oq", 1):
            k(f"""
            s_mov_b32 s{sOFs}, s{sQo[3]}
            s_lshl_b32 s3, s{sHH}, 9
            s_add_u32 s3, s3, s{sTo}
            s_lshl_b32 s3, s3, 11
            s_add_u32 s{sOFl}, s3, {WS_QKV}
            """)

        nb0, nb1 = OPT.get("nb0", 0), OPT.get("nb1", 4)
        assert nb0 <= nb1 <= 4

        def p1_role0(swap):
            st8 = dict(base=0)

            def rdX(n):
                c, st = n >> 2, n & 3
                out = rebase(st8, c, xa + wa) if st == 0 else []
                return out + [E(k, f"ds_read_b128 {v(Xr[n%4],4)}, v{xa[st]} offset:{SLOTS[c%3]-st8['base']}", wr=[f"rd{c}"])]

            def rdW(n, t):
                c, st = n >> 2, n & 3
                return [E(k, f"ds_read_b64_tr_b16 {v(Wf[t][n%4]+2*e,2)}, v{wa[t]} offset:{SLOTS[c%3]-st8['base']+(16*st+4*e)*256}",
                          wr=[f"rd{c}"]) for e in range(2)]

            def reads(n):
                return rdX(n) + rdW(n, 0) + rdW(n, 1) + rdW(n, 2)

            def mm(n, t):
                a, b = v(Wf[t][n % 4], 4), v(Xr[n % 4], 4)
                if swap[t]:
                    a, b = b, a
                return [E(k, f"{MFMA} {v(acc[t],16)}, {a}, {b}, {'0' if n == 0 else v(acc[t],16)}")]

            def epi(t):
                a = acc[t]
                out = []
                if swap[t]:
                    if t == 0 or not swap[t - 1]:
                        out += [E(k, f"s_mov_b32 s{sM}, 0xf0000000"), E(k, f"s_mov_b32 s{sM+1}, 0xf0000000")]
                    for i in range(2):
                        R = range(4 * i, 4 * i + 4)
                        out += [E(k, f"v_cvt_pk_bf16_f32 v{a+r}, v{a+2*r}, v{a+2*r+1}") for r in R]
                        out += [E(k, f"v_cndmask_b32 v{a+r}, v{a+r}, v{vPad}, {s(sM,2)}") for r in R]
                        out += [E(k, f"buffer_store_dwordx4 {v(a+4*i,4)}, v{vL16}, {s(sWS,4)}, s{sSt} offen offset:{1024*i}{OPT.get('sq', SC)}", wr=["qkv"])]
                else:
                    if t == 0:
                        out += [E(k, f"s_mov_b32 s{sM}, 0"), E(k, f"s_mov_b32 s{sM+1}, -1")]
                    for i in range(2):
                        R = range(4 * i, 4 * i + 4)
                        if OPT.get("epk", 0) >> t & 1:
                            out += [E(k, f"v_pk_mul_f32 {v(a+2*r,2)}, {v(a+2*r,2)}, {s(sSc[t],2)}") for r in R]
                        else:
                            out += [E(k, f"v_mul_f32 v{a+r}, s{sSc[t]}, v{a+r}") for r in range(8 * i, 8 * i + 8)]
                        out += [E(k, f"v_cvt_pk_bf16_f32 v{a+r}, v{a+2*r}, v{a+2*r+1}") for r in R]
                        out += [E(k, f"v_cndmask_b32 v{a+r}, v{a+r}, 0, {s(sM,2)}") for r in R if r >= 6]
                        out += [E(k, f"buffer_store_dwordx4 {v(a+4*i,4)}, v{vL16}, {s(sWS,4)}, s{sSt} offen offset:{1024*i}{OPT.get('sq', SC)}", wr=["qkv"])]
                if t < 2:
                    out += [E(k, f"s_add_u32 s{sSt}, s{sSt}, {64*2048}")]
                return out

            k.need("ch0")
            k("s_barrier")
            stamp(2)
            run([reads(0), reads(1)])
            for n in range(24):
                ms = [mm(n, t) for t in range(3)]
                c = (n + 2) // 4
                if n >= 22:
                    run(ms)
                elif (n + 2) % 4 == 0:
                    run(ms)
                    k.need(f"rd{c-1}", f"ch{c}")
                    k("s_barrier")
                    if c == 3:
                        stamp(3)
                    run([reads(n + 2)])
                    if c == 1:
                        make_tag()
                else:
                    spread(k, ms, reads(n + 2))
            k.need("rd5")
            k("s_barrier")
            stamp(4)
            for n in range(24, 28):
                run([rdX(n), rdW(n, 0)])
            for t in (1, 2):
                for n in range(24, 28):
                    run([rdW(n, t)])
            run(dma_w1(sWA, L_W1B, range(nb0), "wb1"))
            run([mm(n, 0) for n in range(24, 28)] + [mm(24, 1), mm(25, 1)])
            spread(k, [mm(26, 1), mm(27, 1), mm(24, 2), mm(25, 2)], epi(0))
            k(f"v_mov_b32 v{vCv}, 0x100")
            spread(k, [mm(26, 2), mm(27, 2)], epi(1)[:4])
            k("s_mov_b64 exec, 1")
            k(f"ds_add_u32 v{vCn}, v{vCv}", rd=["rd6"])
            k("s_mov_b64 exec, -1")
            run([epi(1)[4:], epi(2)])
            assert st8["base"] == 0

        k(f"s_cmp_lt_u32 s{sG}, 10")
        with k.if_("s_cbranch_scc0") as v0:
            p1_role0([0, 0, 0])
            v0.else_()
            k(f"s_cmp_eq_u32 s{sG}, 10")
            with k.if_("s_cbranch_scc0") as v1:
                p1_role0([0, 0, 1])
                v1.else_()
                p1_role0([1, 1, 1])
        stamp(5)
        run(dma_w1(sWA, L_W1B, range(nb0, nb1), "wb1"))
        k.need("qkv")
        flag_last(2, "s10", vT0, vT1)
        stamp(6)
        run(dma_w1(sWA, L_W1B, range(nb1, 4), "wb1"))
        run(dma_w1(sWA, L_W1B, range(4, 7), "wb2"))

        def touch(pos):
            if t2 and OPT.get("tp", 1) == pos:
                k(f"global_load_dword v{vTc}, v{vTc}, s[16:17]")
                k(f"global_load_dword v{vTd}, v{vTd}, s[8:9]")
        touch(1)
        k.need("wb1")
        cnt_add(1, vT0, vT1)
        k("s_setprio 0")
        tr_parts(vT0, vT1)
        k(f"""
        s_mul_i32 s3, s{sHH}, {224*128 + 64}
        v_lshl_add_u32 v{wD}, v{vT1}, 3, s3
        v_lshrrev_b32 v{vT2}, 5, v{vL}
        v_lshl_add_u32 v{wA}, v{vT2}, 2, v{vT0}
        v_lshl_add_u32 v{wB}, v{vT2}, 1, v{vT0}
        v_add_u32 v{wB}, 16, v{wB}
        v_lshl_add_u32 v{wC}, v{vT2}, 2, 3
        v_cmp_gt_u32 vcc, 2, v{vT0}
        v_cndmask_b32 v{wB}, v{wC}, v{wB}, vcc
        """)
        for w in (wA, wB):
            k(f"""
            v_and_b32 v{vT1}, 2, v{w}
            v_lshlrev_b32 v{vT1}, 5, v{vT1}
            v_lshl_add_u32 v{w}, v{w}, 7, v{wD}
            v_xor_b32 v{w}, v{w}, v{vT1}
            """)
        k(f"""
        v_xor_b32 v{wC}, 64, v{wA}
        v_xor_b32 v{wD}, 64, v{wB}
        s_lshl_b32 s{sT0}, s{sCT}, 1
        s_add_u32 s{sT0}, s{sT0}, s{sHH}
        s_lshl_b32 s{sTagH}, s{sTag}, 16
        s_mov_b32 s{sSel[2]}, 0x04000c0c
        s_mul_i32 s{sPx}, s{sTo}, 14
        s_add_u32 s{sPx}, s{sPx}, s{sT0}
        s_lshl_b32 s{sPx}, s{sPx}, 12
        s_add_u32 s{sPx}, s{sPx}, {WS_PX}
        v_and_b32 v{vT0}, 31, v{vL}
        v_lshlrev_b32 v{vG}, 2, v{vT0}
        v_mul_u32_u24 v{vSt}, 896, v{vT0}
        v_lshl_add_u32 v{vSt}, v{vT2}, 4, v{vSt}
        s_lshl_b32 s3, s{sT0}, 6
        v_add_u32 v{vSt}, s3, v{vSt}
        s_xor_b32 s3, s{sWv}, 2
        s_mul_i32 s3, s3, 12288
        s_add_u32 s3, s3, {L_ORED}
        v_add_u32 v{vPi}, s3, v{vL16}
        v_add_u32 v{vBi}, {L_FRED - L_ORED + (1 << 32)}, v{vIn}
        """)
        k("s_setprio 3")
        k.need("wb2")
        cnt_add(1, vT0, vT1, 0x100)
        dstamp(6, 3)
        k(f"s_cmp_eq_u32 s{sWv}, 0")
        with k.if_("s_cbranch_scc0") as pl:
            if not OPT.get("nopoll"):
                poll(vPq, vFd, -1)
                if OPT.get("dbg") == 6:
                    k(f"s_sub_u32 s3, {SPIN}, s{sCnt}")
                    k(f"s_mul_i32 s3, s3, 100")
                    k(f"s_add_u32 s{SST+2*2}, s{SST}, s3")
            cnt_add(4, vCn, vCv, 0x100)
            pl.else_()
            if not OPT.get("nopoll"):
                cnt_wait(4, 0x100, vCn, vCv, prio=3)
        stamp(7)

        KVS = {0: SC, 1: "", 2: " nt", 3: " sc0", 4: " sc1 nt"}[OPT.get("kv", 0)]

        def ldK(buf, so, hs=(0, 1), o=0):
            for i in hs:
                k(f"buffer_load_dwordx4 {v(KB[buf]+4*i,4)}, v{vLp}, {s(sK,4)}, {so} offen offset:{o+1024*i}{KVS}", wr=[f"k{buf}"])

        def ldV(buf, so, hs=(0, 1), o=0):
            for i in hs:
                k(f"buffer_load_dwordx4 {v(VB[buf]+4*i,4)}, v{vL16}, {s(sV,4)}, {so} offen offset:{o+1024*i}{KVS}", wr=[f"v{buf}"])

        def ldQ(j):
            for i in range(2):
                k(f"buffer_load_dwordx4 {v(Q[j]+4*i,4)}, v{vL16}, {s(sWS,4)}, s{sQo[j]} offen offset:{1024*i}{SC}")

        ldK(0, "0")
        ldQ(0)
        ldQ(1)
        ldQ(2)
        ldV(0, "0")
        ldQ(3)
        ldK(1, "0", o=2048)
        ldV(1, "0", o=2048)
        ldK(2, f"s{sR[0]}")
        ldV(2, f"s{sR[0]}")
        ldK(3, f"s{sOff}")
        k(f"v_add_u32 v{vLp}, 2048, v{vLp}")
        touch(0)
        cnt_add(1, vT0, vT1, 0x10000)
        k(f"s_setprio {OPT.get('aprio', 1)}")

        def QK(u, half):
            j, t = u & 3, (u >> 2) & 3
            c = "0" if half == 0 else v(S[j], 16)
            k(f"{MFMA} {v(S[j],16)}, {v(KB[t]+4*half,4)}, {v(Q[j]+4*half,4)}, {c}")

        def PV(u, half):
            j, t = u & 3, (u >> 2) & 3
            k(f"{SMF} {v(O[j],16)}, {v(VB[t]+4*half,4)}, {v(S[j]+8*half,8)}, v{vIdx}")

        pend = []

        def EX(u, a, b):
            for r in range(a, b):
                k(f"v_exp_f32 v{S[u&3]+r}, v{S[u&3]+r}")
                if pend and r & 1:
                    pend.pop(0)()

        def putO(j, i):
            k(f"ds_write_b128 v{vOut[j]}, {v(O[j]+4*i,4)} offset:{1024*i}", wr=["red"])

        gate = OPT.get("gate", 14)
        WOB = [KB[0], VB[0], KB[1], VB[1], KB[2], Q[0], Q[1], Q[2], VB[2], KB[3], S[0], S[0] + 8, S[1], S[1] + 8, VB[3], Q[3]]
        wu0 = OPT.get("wu0", 14)
        fg = OPT.get("fg", 14)
        avail = [2, 5, 6, 9, 10, 11, 12, 13, 13]
        nwe = OPT.get("nwe", 0)
        wsch = {}
        for n in range(nwe):
            u = max(avail[n], wu0)
            while u < 13 and len(wsch.get(u, [])) >= OPT.get("wpu", 1):
                u += 1
            wsch.setdefault(u, []).append(n)

        def rdWO(ns):
            out = []
            for n in ns:
                hh, st = n >> 1, n & 1
                for t in range(2):
                    for e in range(2):
                        x = st == 1 and e == 1
                        a = [[wA, wB], [wC, wD]][t][x]
                        out += [E(k, f"ds_read_b64_tr_b16 {v(WOB[n]+4*t+2*e,2)}, v{a} offset:{(28*hh+(8 if x else 16*st+8*e))*128}")]
            return out

        def unit(u, last, inloop=False):
            i, q = u >> 2, u & 3
            if last and u == gate:
                k("s_setprio 3")
            pend.extend(rdWO(wsch.get(u, [])) if last else [])
            if last and u == fg:
                k("s_barrier")
            if last and u == wu0 - 2 and wu0 < fg:
                k(f"ds_read_b32 v{vCv}, v{vCn} offset:20")
            if last and u == wu0 and wu0 < fg:
                k(f"v_readfirstlane_b32 s3, v{vCv}")
                k("s_and_b32 s3, s3, 0xff")
                k("s_cmp_lt_u32 s3, 4")
                with k.if_("s_cbranch_scc0"):
                    cnt_wait(5, 4, vCn, vCv, 0xff)
            if not (last and u >= 14):
                QK(u + 2, 0)
            if q < 2 and (u < 2 or not last):
                ldV((i - 1) & 3, f"s{sOff}", (q,), 2048 * (i & 1))
            if q >= 2 and not last:
                ldK(i, f"s{sOff}", (q - 2,), 2048 * (i & 1))
            EX(u, 0, 4)
            if not (last and u >= 14):
                QK(u + 2, 1)
            else:
                PV(u - 1, 1)
            if OPT.get("wq", 1):
                if q == 1 and (not last or u < 12):
                    k(f"s_waitcnt vmcnt({8 if not last else 9 - u})")
            elif q & 1 and (not last or u < 12):
                k(f"s_waitcnt vmcnt({10 if not last else 11 - u})")
            if last and u >= 14:
                for c in range(4):
                    EX(u, 4 + c, 5 + c)
                    putO(u - 14, c)
            else:
                EX(u, 4, 8)
                PV(u - 1, 1)
            if u & 7 == 7 and not last:
                k(f"s_add_u32 s{sOff}, s{sOff}, 4096")
            if last and u == 15:
                PV(u, 0)
                for c in range(4):
                    EX(u, 8 + 2 * c, 10 + 2 * c)
                    putO(2, c)
                PV(u, 1)
                return
            EX(u, 8, 12)
            PV(u, 0)
            if u == 1 and inloop:
                k(f"s_cmp_lt_u32 s{sOff}, {15*2048}")
            EX(u, 12, 16)

        assert gate <= 14
        for u in range(2):
            QK(u, 0)
            QK(u, 1)
        stamp(8)
        if OPT.get("blk"):
            k(f"s_mov_b32 s9, {-2 - 2 * OPT.get('b0', 0)}")
            k("s_mov_b32 s16, 0")
        bstamp()
        assert min(gate, fg, wu0 - 2) >= 2
        unit(0, False)
        unit(1, False)
        with k.loop(3, align=6) as lp:
            for u in list(range(2, 16)) + [0, 1]:
                if OPT.get("blk") and u % OPT["blk"] == OPT["blk"] - 1:
                    bstamp()
                unit(u, False, True)
            lp.back("s_cbranch_scc1")
        for u in range(2, 16):
            if OPT.get("blk") and u % OPT["blk"] == OPT["blk"] - 1:
                bstamp()
            unit(u, True)
        bstamp()
        bstamp()
        stamp(9)
        if "eprio" in OPT:
            k(f"s_setprio {OPT['eprio']}")
        k.need("red")
        cnt_add(4, vCn, vCv)
        cnt_wait(4, 0x104, vCn, vCv)
        assert not pend
        for j in range(3):
            for i in range(4):
                k(f"ds_read_b128 {v(O[j]+4*i,4)}, v{vIn} offset:{4096*j+1024*i}")
        A = O[3]
        opk = OPT.get("opk", 0)
        nwr = OPT.get("nwr", 0)
        adds = [[f] for j in range(3) for f in padd(A, A, O[j], pk=opk)]
        w0 = OPT.get("wr0", 4)
        run(adds[:w0])
        spread(k, adds[w0:], rdWO(range(nwe, nwr)))

        def get_l():
            k(f"""
            v_mov_b32 v{vT0}, v{A+12}
            v_mov_b32 v{vT1}, v{A+12}
            v_permlane32_swap_b32 v{vT0}, v{vT1}
            """)
        get_l()
        k(f"v_mul_f32 v{vCn}, v{A}, v{A+1}")
        k(f"v_mul_f32 v{vCv}, v{A+2}, v{A+3}")
        for r in range(4, 16, 2):
            k(f"v_fma_f32 v{vCn + (r >> 1 & 1)}, v{A+r}, v{A+r+1}, v{vCn + (r >> 1 & 1)}")
        k(f"""
        v_fma_f32 v{vT2}, v{vCn}, 0, v{vT1}
        v_fma_f32 v{vT2}, v{vCv}, 0, v{vT2}
        v_cmp_nlt_f32 vcc, {f32(2.0**-30)}, v{vT2}
        s_mov_b64 {s(sM,2)}, vcc
        v_cmp_ngt_f32 vcc, {f32(2.0**40)}, v{vT2}
        s_or_b64 {s(sM,2)}, {s(sM,2)}, vcc
        """)
        if OPT.get("force_fb"):
            k(f"s_mov_b64 {s(sM,2)}, -1")
        k(f"s_cmp_lg_u64 {s(sM,2)}, 0")
        with k.if_("s_cbranch_scc0"):
            k(f"s_lshl_b32 s{sT1}, s{sH}, 17")
            k(f"s_add_u32 s3, s{sT1}, {WS_QKV+16*64*2048}")
            srd(k, sK, 20, 21, "s3", 131072)
            k(f"s_add_u32 s3, s{sT1}, {WS_QKV+32*64*2048}")
            srd(k, sV, 20, 21, "s3", 131072)
            fK, fV, fM = S[2], S[2] + 8, O[0]

            def fld(d, va, sr):
                for i in range(2):
                    k(f"buffer_load_dwordx4 {v(d+4*i,4)}, v{va}, {s(sr,4)}, s{sOff} offen offset:{1024*i}{SC}")

            def fqk(c):
                k(f"{MFMA} {v(S[3],16)}, {v(fK,4)}, {v(Q[3],4)}, {c}")
                k(f"{MFMA} {v(S[3],16)}, {v(fK+4,4)}, {v(Q[3]+4,4)}, {v(S[3],16)}")
            k(f"v_subrev_u32 v{vLp}, 2048, v{vLp}")
            k(f"v_mov_b32 v{vT0}, 0xff800000")
            k(f"s_mov_b32 s{sOff}, 0")
            with k.loop(3) as l1:
                fld(fK, vLp, sK)
                fqk("0")
                for r in range(0, 16, 2):
                    k(f"v_max3_f32 v{vT0}, v{S[3]+r}, v{S[3]+r+1}, v{vT0}")
                k(f"s_add_u32 s{sOff}, s{sOff}, 2048")
                k(f"s_cmp_lt_u32 s{sOff}, 131072")
                l1.back("s_cbranch_scc1")
            k(f"""
            v_mov_b32 v{vT1}, v{vT0}
            v_permlane32_swap_b32 v{vT0}, v{vT1}
            v_max_f32 v{vT0}, v{vT0}, v{vT1}
            """)
            for r in range(16):
                k(f"v_mul_f32 v{fM+r}, -1.0, v{vT0}")
                k(f"v_mov_b32 v{A+r}, 0")
            k(f"s_mov_b32 s{sOff}, 0")
            with k.loop(3) as l2:
                fld(fK, vLp, sK)
                fld(fV, vL16, sV)
                fqk(v(fM, 16))
                EX(3, 0, 16)
                for h_ in range(2):
                    k(f"{SMF} {v(A,16)}, {v(fV+4*h_,4)}, {v(S[3]+8*h_,8)}, v{vIdx}")
                k(f"s_add_u32 s{sOff}, s{sOff}, 2048")
                k(f"s_cmp_lt_u32 s{sOff}, 131072")
                k("s_nop 4")
                l2.back("s_cbranch_scc1")
            get_l()
        k(f"v_rcp_f32 v{vT1}, v{vT1}")
        for i in range(2):
            for r in range(8 * i, 8 * i + 8):
                k(f"v_mul_f32 v{A+r}, v{A+r}, v{vT1}")
            if i == 0:
                k(f"v_cvt_pk_bf16_f32 v{vT0}, v{A+6}, v{A+7}")
                k(f"v_cvt_pk_bf16_f32 v{vT2}, v{A+7}, v{A+6}")
                for r in range(3):
                    k(f"v_cvt_pk_bf16_f32 v{A+r}, v{A+2*r}, v{A+2*r+1}")
                k(f"v_alignbit_b32 v{A+3}, v{vTag}, v{vT2}, 16")
            else:
                for r in (6, 7, 4, 5):
                    k(f"v_cvt_pk_bf16_f32 v{A+r}, v{A+2*r}, v{A+2*r+1}")
                k(f"v_permlane32_swap_b32 v{A+6}, v{A+7}")
                k(f"v_alignbit_b32 v{A+7}, v{vTag}, v{vT0}, 16")
            k(f"buffer_store_dwordx4 {v(A+4*i,4)}, v{vL16}, {s(sWS,4)}, s{sOFs} offen offset:{1024*i}{OPT.get('so', SC)}", wr=["o"])
        stamp(10)
        k("s_cmp_ge_u32 s2, 224")
        with k.if_("s_cbranch_scc0"):
            endpgm(2)
        OFr = 144
        fac = [208, 224]

        def ldO(hh):
            k(f"s_add_u32 s3, s{sOFl}, {(131072 if OPT.get('oq', 1) else 2048)*hh}")
            for i in range(2):
                k(f"buffer_load_dwordx4 {v(OFr+8*hh+4*i,4)}, v{vL16}, {s(sWS,4)}, s3 offen offset:{1024*i}{SC}")

        PX = 240

        def ldP(sc=SC):
            for c in range(4):
                k(f"buffer_load_dwordx4 {v(PX+4*c,4)}, v{vL16}, {s(sWS,4)}, s{sPx} offen offset:{1024*c}{sc}")

        def chkO(g, ng):
            D = [OFr + 8 * ng * g + 4 * i + 3 for i in range(2 * ng)]
            out = []
            for i in range(0, 2 * ng, 2):
                out += [E(k, f"v_xor_b32 v{D[i]}, s{sTagH}, v{D[i]}"), E(k, f"v_xor_b32 v{D[i+1]}, s{sTagH}, v{D[i+1]}"),
                        E(k, f"v_or3_b32 v{vT0}, v{D[i]}, v{D[i+1]}, {'0' if i == 0 else f'v{vT0}'}")]
            return out + [E(k, f"v_cmp_lt_u32 vcc, 0xffff, v{vT0}")]

        def chkP():
            out = []
            for c in range(4):
                out += [E(k, f"v_perm_b32 v{vCn}, v{PX+4*c+1}, v{PX+4*c}, s{sSel[2]}"),
                        E(k, f"v_xor_b32 v{vCn}, s{sTagH}, v{vCn}"),
                        E(k, f"v_or_b32 v{vT0}, {'0' if c == 0 else f'v{vT0}'}, v{vCn}")]
            return out + [E(k, f"v_cmp_ne_u32 vcc, 0, v{vT0}")]

        def retry(load, chk):
            k("s_cmp_lg_u64 vcc, 0")
            with k.if_("s_cbranch_scc0"):
                with k.loop([1, 2]) as lp:
                    load()
                    run([chk])
                    k(f"""
                    s_sub_u32 s{sCnt}, s{sCnt}, 1
                    s_cmp_lg_u64 vcc, 0
                    s_cselect_b32 s3, s{sCnt}, 0
                    s_cmp_gt_i32 s3, 0
                    """)
                    lp.back("s_cbranch_scc1")

        def mmO(g, ng):
            return [[E(k, f"{MFMA} {v(fac[t],16)}, {v(WOB[n]+4*t,4)}, {v(OFr+4*n,4)}, {'0' if n == 0 else v(fac[t],16)}")]
                    for n in range(2 * ng * g, 2 * ng * (g + 1)) for t in (1, 0)]

        uG, uSt, uPi, uBi = vLp, vIdx, vFd, vTc
        k(f"s_setprio {OPT.get('tprio', 0)}")
        nw0 = max(OPT.get("nw0", 16), nwr)
        wth = OPT.get("wth", 0)
        for i, f in enumerate(rdWO(range(nwr, nw0))):
            if wth and i % 2 == 0:
                k(f"s_waitcnt lgkmcnt({wth})")
            f()
        dstamp(4, 4)
        cnt_wait(5, 0x40000, vCn, vCv)
        k(f"s_setprio {OPT.get('uprio', 3)}")
        dstamp(4, 6)
        dstamp(5, 0)
        ng = OPT.get("ng", 2)
        na = OPT.get("na", 4)
        G = 8 // ng
        for hh in range(na):
            ldO(hh)
        k(f"buffer_load_dword v{uG}, v{vG}, {s(sWS,4)}, s{sGl} offen{SC}")
        for d, o in ((uSt, vSt), (uPi, vPi), (uBi, vBi)):
            k(f"v_mov_b32 v{d}, v{o}")
        run([rdWO(range(nw0, 16))])
        dstamp(4, 5)
        k(f"s_mov_b32 s{sCnt}, {SPIN}")
        todo = [(lambda hh=hh: ldO(hh)) for hh in range(na, 8)]
        pg = OPT.get("pg", G - 2)
        run([chkO(0, ng)])
        B, B2, P = OFr, OFr + 16, 48
        a = fac[0]
        for g in range(G):
            retry(lambda: [ldO(hh) for hh in range(ng * g, ng * g + ng)], chkO(g, ng))
            dstamp(5, 1 + 2 * g)
            mm = mmO(g, ng)
            h = len(mm) // 2
            if g < G - 1:
                spread(k, mm[:h], todo[:ng] + ([ldP] if g == pg else []))
                todo = todo[ng:]
                if g == G - 2:
                    k(f"ds_read_b32 v{vT2}, v{vCn}")
                spread(k, mm[h:], chkO(g + 1, ng))
        assert not todo
        if OPT.get("dbg") == 4:
            k(f"s_sub_u32 s3, {SPIN}, s{sCnt}")
            k(f"s_mul_i32 s3, s3, 100")
            k(f"s_add_u32 s{SST+2*3}, s{SST}, s3")
        m1, m0 = mm[0::2], mm[1::2]
        run(m1[:1])
        if pg == G - 1:
            ldP()
        run(m1[1:])
        wx = [E(k, f"ds_write_b128 v{vIn}, {v(fac[1]+4*i,4)} offset:{1024*i}", wr=["xch"]) for i in range(4)]
        run(m0[:2])
        spread(k, m0[2:], wx)
        k(f"v_readfirstlane_b32 s3, v{vT2}")
        k(f"s_cmp_lt_u32 s3, {LV(8)}")
        with k.if_("s_cbranch_scc0"):
            k(f"s_mov_b32 s{sT0}, s{sCnt}")
            k("s_setprio 0")
            cnt_wait(0, LV(8), vT1, vT2)
            k(f"s_mov_b32 s{sCnt}, s{sT0}")
        dstamp(5, 2)
        for c in range(4):
            for i in range(2):
                k(f"ds_read_b128 {v(B+16*i+4*c,4)}, v{uBi} offset:{8192*i+1024*c}")
        run([chkP()])
        retry(ldP, chkP())
        dstamp(5, 4)
        if OPT.get("dbg") == 4:
            k(f"s_sub_u32 s3, {SPIN}, s{sCnt}")
            k(f"s_mul_i32 s3, s3, 100")
            k(f"s_add_u32 s{SST+2*2}, s{SST}, s3")
        k(f"""
        v_sub_f32 v{vCn}, 1.0, v{uG}
        v_sub_f32 v{vCv}, 1.0, v{uG}
        v_mov_b32 v{vT1}, v{uG}
        v_mov_b32 v{vT2}, v{uG}
        """)
        for r in range(16):
            if r & 3 < 2:
                k(f"v_and_b32 v{PX+r}, 0xffffff00, v{PX+r}")
        stamp(11)
        k.need("xch")
        k("s_barrier")
        stamp(12)
        for i in range(4):
            k(f"ds_read_b128 {v(P+4*i,4)}, v{uPi} offset:{1024*i}")
        for r in range(0, 16, 2):
            k(f"v_pk_add_f32 {v(B+r,2)}, {v(B+r,2)}, {v(B2+r,2)}")
        for q in range(2):
            R = range(8 * q, 8 * q + 8, 2)
            for r in R:
                k(f"v_pk_add_f32 {v(PX+r,2)}, {v(PX+r,2)}, {v(B+r,2)}")
            for r in R:
                k(f"v_pk_mul_f32 {v(PX+r,2)}, {v(PX+r,2)}, {v(vCn,2)}")
            for r in R:
                k(f"v_pk_add_f32 {v(a+r,2)}, {v(a+r,2)}, {v(P+r,2)}")
            for r in R:
                k(f"v_pk_fma_f32 {v(a+r,2)}, {v(a+r,2)}, {v(vT1,2)}, {v(PX+r,2)}")
            for r in range(4):
                k(f"v_cvt_pk_bf16_f32 v{P+8*q+r}, v{a+8*q+2*r}, v{a+8*q+2*r+1}")
            k(f"v_permlane32_swap_b32 v{P+8*q}, v{P+8*q+2}")
            k(f"v_permlane32_swap_b32 v{P+8*q+1}, v{P+8*q+3}")
            k(f"buffer_store_dwordx4 {v(P+8*q,4)}, v{uSt}, {s(sOUT,4)}, 0 offen offset:{32*q}{OPT.get('ost', '')}")
        endpgm()

        role.else_()
        st_off[0] = 0
        acc = [128, 144, 160, 176]
        NS = 7
        W6 = [192 + 4 * i for i in range(NS)]
        tmp = 220
        BA, BZ = 224, 228
        vD, wr0, wr1, vGW, vFd = 6, 7, 8, 9, 10
        sJ, sSt, sKH, sR2, sCT = sA, 4, 5, 6, 7
        k("s_setprio 2")
        k(f"""
        s_lshl_b32 s{sT1}, s{sFS}, 6
        v_lshlrev_b32 v{BA+1}, 1, v{vL}
        v_add_u32 v{BA+1}, s{sT1}, v{BA+1}
        global_load_ushort v{BA}, v{BA+1}, s[14:15]
        s_lshl_b32 s3, s{sLong}, 7
        v_add_u32 v{BA+3}, s3, v{BA+1}
        global_load_ushort v{BA+2}, v{BA+3}, s[14:15]
        s_sub_u32 s{sEe}, {448*3584}, s{sT1}
        """)
        srd(k, sW, 12, 13, f"s{sT1}", f"s{sEe}")
        k(f"""
        v_subrev_u32 v{vX0}, {64*896}, v{vX0}
        v_subrev_u32 v{vX1}, {64*896}, v{vX1}
        v_subrev_u32 v{vQ0}, {32*2688}, v{vQ0}
        v_subrev_u32 v{vQ1}, {32*2688}, v{vQ1}
        v_lshrrev_b32 v{wa[1]}, 1, v{vT0}
        v_lshlrev_b32 v{wa[1]}, 6, v{wa[1]}
        v_lshl_add_u32 v{wa[1]}, v{vT1}, 3, v{wa[1]}
        v_lshl_add_u32 v{wa[0]}, v{vT2}, 7, v{wa[1]}
        v_add_u32 v{wa[0]}, {L_W1A}, v{wa[0]}
        v_lshrrev_b32 v{vT2}, 5, v{vL}
        v_lshl_add_u32 v{vT2}, v{vT2}, 2, v{vT0}
        v_lshl_add_u32 v{wr0}, v{vT2}, 7, v{wa[1]}
        v_xor_b32 v{wa[1]}, 64, v{wa[0]}
        v_add_u32 v{wr0}, s{sL2}, v{wr0}
        s_lshr_b32 s3, s{sJ}, 1
        s_lshl_b32 s3, s3, 6
        v_xor_b32 v{wr0}, s3, v{wr0}
        v_xor_b32 v{wr1}, 64, v{wr0}
        v_lshrrev_b32 v{vT0}, 3, v{vL}
        v_mul_u32_u24 v{vD}, 896, v{vT0}
        v_and_b32 v{vT0}, 127, v{vW}
        v_add_u32 v{vD}, v{vD}, v{vT0}
        s_cmp_eq_u32 s{sG}, 3
        """)
        with k.if_("s_cbranch_scc0"):
            srd(k, sW2, 18, 19, 0, 896)
            k(f"""
            s_add_u32 s3, s{sC}, 5
            s_lshl_b32 s3, s3, 7
            v_add_u32 v{vT0}, s3, v{vL16}
            v_subrev_u32 v{vT1}, 896, v{vT0}
            v_min_u32 v{vT0}, v{vT0}, v{vT1}
            v_subrev_u32 v{vT1}, 896, v{vT0}
            v_min_u32 v{vT0}, v{vT0}, v{vT1}
            s_lshr_b32 s3, s{sL2}, 1
            s_add_u32 m0, s3, {L_GW}
            v_lshrrev_b32 v{vGW}, 5, v{vL}
            v_lshlrev_b32 v{vGW}, 4, v{vGW}
            v_add_u32 v{vGW}, m0, v{vGW}
            """)
            k(f"buffer_load_dwordx4 v{vT0}, {s(sW2,4)}, 0 offen lds", wr=["gw"])
        k(f"""
        s_mul_i32 s{sSt}, s{sTT}, 56
        s_add_u32 s{sSt}, s{sSt}, s{sFS}
        s_lshl_b32 s{sSt}, s{sSt}, 11
        s_add_u32 s{sSt}, s{sSt}, {WS_ACT}
        {fmap(sR2, sKH)}
        s_lshr_b32 s{sCT}, s2, 5
        s_lshl_b32 s{sT0}, s{sKH}, 2
        s_add_u32 s{sT0}, s{sT0}, s{sJ}
        s_mul_i32 s{sT0}, s{sT0}, {224*896}
        s_lshl_b32 s3, s{sCT}, 7
        s_add_u32 s{sT0}, s{sT0}, s3
        s_sub_u32 s{sT1}, {224*896}, s3
        s_cmp_lt_u32 s2, 224
        s_cselect_b32 s{sT1}, s{sT1}, 0
        """)
        srd(k, sW2, 16, 17, f"s{sT0}", f"s{sT1}")
        k(f"""
        s_mul_i32 s{sT0}, s{sJ}, {16*896}
        s_add_u32 s{sT0}, s{sT0}, s3
        s_sub_u32 s{sT1}, {448*896}, s{sT0}
        s_cmp_lt_u32 s2, 224
        s_cselect_b32 s{sT1}, s{sT1}, 0
        """)
        srd(k, sWO, 8, 9, f"s{sT0}", f"s{sT1}")
        for r in range(10):
            k(f"v_mov_b32 v{BZ+r}, 0")
        k(f"""
        v_mov_b32 v{vT0}, 0x3f80
        v_cmp_gt_u32 vcc, 32, v{vL}
        v_cndmask_b32 v{BZ+2}, 0, v{vT0}, vcc
        v_cndmask_b32 v{BZ+6}, v{vT0}, v{BZ+6}, vcc
        v_mov_b32 v{BA+1}, 0
        v_mov_b32 v{BA+3}, 0
        """)

        W2ROW = [0, 1] + list(range(7, 19))

        TH = OPT.get("th", 4)

        def thr():
            f = E(k, f"s_waitcnt vmcnt({TH - 1})")
            f.thr = 1
            return [f] if TH else []

        def dma_rows(srdn, items, gstride, tag):
            out = []
            for st, row in items:
                out += [[E(k, f"s_add_u32 m0, s{sL2}, {8192*row}"), E(k, f"s_mov_b32 s{sSo}, {st*gstride}"), *thr(),
                         E(k, f"buffer_load_dwordx4 v{vD}, {s(srdn,4)}, s{sSo} offen lds", wr=[tag])],
                        [E(k, f"s_mov_b32 s{sSo}, {st*gstride+8*896-1024}"), *thr(),
                         E(k, f"buffer_load_dwordx4 v{vD}, {s(srdn,4)}, s{sSo} offen offset:1024 lds", wr=[tag])]]
            return out

        def dma_w2(sts, tag):
            return dma_rows(sW2, [(st, W2ROW[st]) for st in sts], 16 * 896, tag)

        st8 = dict(base=0)
        for c in range(7):
            if c == 0:
                k.need("ch0")
            else:
                k.need(f"rd{c-1}", f"ch{c}")
            k("s_barrier")
            if c in (0, 6):
                stamp(2 + c // 3)
            rdx = rebase(st8, c, xa) + [
                E(k, f"ds_read_b128 {v(X+16*c+4*st,4)}, v{xa[st]} offset:{SLOTS[c%3]-st8['base']}", wr=[f"rd{c}"]) for st in range(4)]
            if c <= 4:
                dm = dma_chunk(c + 2, (0, 1))
                run(dm[:2] + [rdx] + dm[2:])
            else:
                run([rdx])
                k(f"s_cmp_eq_u32 s{sLong}, 1")
                with k.if_("s_cbranch_scc0") as lg:
                    run(dma_w1(sW, L_W1A, range(4), "wa1") if c == 5 else dma_w1(sW, L_W1A, [4, 5, 6], "wa2"))
                    k.need("ch6" if c == 5 else "wa1")
                    if c == 5:
                        lg.else_()
                        k.need("ch6")
            if c == 1:
                make_tag()
            if c == 2:
                for t, w in enumerate((BZ + 2, BZ + 6, BZ, BZ + 4)):
                    k(f"{MFMA} {v(acc[t],16)}, {v(BA,4)}, {v(w,4)}, 0")

        def act_store(t):
            out = []
            for i in range(2):
                if OPT.get("ths", 1):
                    out += thr()
                out += [E(k, f"buffer_store_dwordx4 {v(acc[t]+4*i,4)}, v{vL16}, {s(sWS,4)}, s{sSt} offen offset:{1024*i}{SC}", wr=["act"])]
            return out + [E(k, f"s_add_u32 s{sSt}, s{sSt}, 2048")]

        D = 5

        def rd2(m):
            t, n = divmod(m, 28)
            j, st = n >> 2, n & 3
            return [E(k, f"ds_read_b64_tr_b16 {v(W6[m%NS]+2*e,2)}, v{wa[t%2]} offset:{8192*j+(16*st+4*e)*128}", wr=["wrd", f"w{m}"])
                    for e in range(2)]

        def tile(t, lim, fill, hooks={}):
            groups = []
            for n in range(28):
                m = 28 * t + n
                g = [E(k, f"{MFMA} {v(acc[t],16)}, {v(W6[m%NS],4)}, {v(X+4*n,4)}, {v(acc[t],16)}")]
                if n & 1 and m + 2 < lim:
                    g += [lambda m=m: k.need(f"w{m+2}")]
                if n in hooks:
                    g += [hooks[n]]
                if m + D < lim:
                    g += rd2(m + D)
                groups.append(g)
            run(groups[:2])
            spread(k, groups[2:26], fill)
            run(groups[26:])

        def mish(t):
            if not OPT.get("mpk", 10) >> t & 1:
                return mish_ops(k, acc[t], tmp)
            a, o = acc[t], []
            o += [E(k, f"s_mov_b32 s{sM}, {f32(LOG2E)}"), E(k, f"s_mov_b32 s{sM+1}, {f32(LOG2E)}")]
            for b in range(0, 16, 4):
                u, w = tmp, tmp + 4
                o += [E(k, f"v_pk_mul_f32 {v(u+r,2)}, {v(a+b+r,2)}, {s(sM,2)}") for r in (0, 2)]
                o += [E(k, f"v_exp_f32 v{u+r}, v{u+r}") for r in range(4)]
                o += [E(k, f"v_pk_fma_f32 {v(w+r,2)}, {v(u+r,2)}, 0.5, 1.0 op_sel_hi:[1,0,0]") for r in (0, 2)]
                o += [E(k, f"v_pk_fma_f32 {v(u+r,2)}, {v(u+r,2)}, {v(w+r,2)}, 1.0 op_sel_hi:[1,1,0]") for r in (0, 2)]
                o += [E(k, f"v_rcp_f32 v{u+r}, v{u+r}") for r in range(4)]
                o += [E(k, f"v_pk_fma_f32 {v(a+b+r,2)}, {v(a+b+r,2)}, {v(u+r,2)}, {v(a+b+r,2)} neg_lo:[1,0,0] neg_hi:[1,0,0]") for r in (0, 2)]
                o += [E(k, f"v_cvt_pk_bf16_f32 v{a+(b+r)//2}, v{a+b+r}, v{a+b+r+1}") for r in (0, 2)]
            return o

        def mark(*tags, val=1):
            k.need(*tags)
            cnt_add(0, vT0, vT1, val)

        k(f"s_cmp_eq_u32 s{sLong}, 1")
        with k.if_("s_cbranch_scc0") as lg:
            mark("wa1", "rd6")
            cnt_wait(0, LV(1), vT0, vT1)
            stamp(3)
            for m in range(D):
                run([rd2(m)])
            tile(0, 56, [],
                 {OPT.get("m2", 8): lambda: mark("wa2"), 16 - D: lambda: cnt_wait(0, LV(2), vT0, vT1)})
            dstamp(1, 7)
            tile(1, 56, mish_ops(k, acc[0], tmp))
            dstamp(1, 8)
            if OPT.get("m1e", 1):
                run([mish(1)])
            lg.else_()
            mark("rd6", val=2)
            stamp(3)
            k(f"s_cmp_eq_u32 s{sG}, 3")
            with k.if_("s_cbranch_scc0"):
                k.need("gw")
                rd = lambda n: k(f"ds_read_b128 {v(W6[n%6],4)}, v{vGW} offset:{32*n}")
                for n in range(4):
                    rd(n)
                a = acc[0]
                for n in range(28):
                    k(f"{MFMA} {v(a,16)}, {v(W6[n%6],4)}, {v(X+4*n,4)}, {'0' if n == 0 else v(a,16)}")
                    if n + 4 < 28:
                        rd(n + 4)
                k(f"""
                v_mul_f32 v{a}, {f32(-LOG2E)}, v{a}
                v_exp_f32 v{a}, v{a}
                v_add_f32 v{a}, 1.0, v{a}
                v_rcp_f32 v{a}, v{a}
                v_and_b32 v{a+1}, 31, v{vL}
                v_lshlrev_b32 v{a+1}, 2, v{a+1}
                """)
        for r in wa[:2]:
            k(f"v_subrev_u32 v{r}, {L_W1A - L_W1B}, v{r}")
        cnt_wait(1, 4, vT0, vT1, 0xff, prio=2)
        stamp(5)
        for m in range(56, 56 + D):
            run([rd2(m)])
        tile(2, 112, [] if OPT.get("m1e", 1) else mish_ops(k, acc[1], tmp), {16 - D: lambda: cnt_wait(1, 0x400, vT0, vT1, 0xff00)})
        dstamp(1, 9)
        tile(3, 112, mish_ops(k, acc[2], tmp))
        dstamp(1, 10)
        mark("wrd")
        run([mish(3)])
        dstamp(1, 11)
        cnt_wait(0, LV(3), vT0, vT1)
        cnt_wait(1, 0x40000, vT0, vT1)
        k("s_setprio 0")
        dstamp(1, 12)
        dstamp(2, 7)
        k(f"s_cmp_eq_u32 s{sLong}, 1")
        with k.if_("s_cbranch_scc0") as lg:
            run([act_store(0), act_store(1)])
            lg.else_()
            k(f"s_cmp_eq_u32 s{sG}, 3")
            with k.if_("s_cbranch_scc0"):
                k(f"""
                s_lshl_b32 s3, s{sTT}, 7
                s_add_u32 s{sT0}, s3, {WS_G}
                """)
                k(f"buffer_store_dword v{acc[0]}, v{acc[0]+1}, {s(sWS,4)}, s{sT0} offen{SC}", wr=["act"])
        run([act_store(2), act_store(3)])
        dstamp(2, 8)
        k(f"s_add_u32 s10, s10, {WS_FA}")
        k("s_setprio 2")
        k("s_cmp_ge_u32 s2, 224")
        with k.if_("s_cbranch_scc0"):
            k.need("act")
            k("s_setprio 2")
            flag_last(3, "s10", vT0, vT1)
            cnt_add(5, vT0, vT1)
            if OPT.get("fg", 14) < 16:
                k("s_barrier")
            k("s_lshl_b32 s3, s2, 2")
            k(f"s_add_u32 s3, s3, s{sJ}")
            k("s_cmp_eq_u32 s3, 1023")
            with k.if_("s_cbranch_scc0"):
                k(f"v_lshlrev_b32 v{vT0}, 9, v{vL}")
                k(f"v_add_u32 v{vT0}, {WS_FQ}, v{vT0}")
                poll(vT0, 192, -1, (0, 128, 256, 384))
                flag("0")
            endpgm(2)
        vTa = 250
        RING = 192
        sAo = [8, 9, 11, 12]
        sGl, sPxW, sSel = 15, 13, [14, 18]
        k(f"""
        s_lshl_b32 s{sT0}, s{sKH}, 2
        s_add_u32 s{sT0}, s{sT0}, s{sJ}
        s_mul_i32 s{sT0}, s{sT0}, 7
        s_mul_i32 s3, s{sR2}, 224
        s_add_u32 s3, s3, s{sT0}
        s_add_u32 s3, s3, s{sCT}
        s_lshl_b32 s3, s3, 11
        s_add_u32 s3, s3, {WS_ACT}
        v_lshrrev_b32 v{vT0}, 4, v{vL}
        v_mul_u32_u24 v{vT0}, {56*2048 - 2048}, v{vT0}
        v_lshl_add_u32 v{vT0}, v{vL}, 7, v{vT0}
        v_add_u32 v{vTa}, s3, v{vT0}
        s_lshl_b32 s3, s{sKH}, 7
        s_add_u32 s3, s3, s{sR2}
        s_lshl_b32 s3, s3, 7
        s_add_u32 s3, s3, {WS_FA}
        v_lshl_add_u32 v{vT2}, v{vL}, 11, s3
        s_lshl_b32 s3, s{sR2}, 7
        s_add_u32 s3, s3, {WS_FA + 48*128}
        v_writelane_b32 v{vT2}, s3, 8
        s_lshl_b32 s{sT1}, s{sR2}, 1
        s_add_u32 s{sT1}, s{sT1}, s{sKH}
        s_lshl_b32 s{sT1}, s{sT1}, 1
        s_and_b32 s3, s{sJ}, 1
        s_add_u32 s{sT1}, s{sT1}, s3
        s_xor_b32 s3, s{sT1}, 2
        s_mul_i32 s{sPxW}, s3, 7
        s_add_u32 s{sPxW}, s{sPxW}, s{sCT}
        s_lshl_b32 s{sPxW}, s{sPxW}, 1
        s_lshr_b32 s3, s{sJ}, 1
        s_add_u32 s{sPxW}, s{sPxW}, s3
        s_lshl_b32 s{sPxW}, s{sPxW}, 12
        s_add_u32 s{sPxW}, s{sPxW}, {WS_PX}
        s_mov_b32 s{sSel[0]}, 0x07060500
        s_mov_b32 s{sSel[1]}, 0x07060501
        """)
        for q in range(4):
            k(f"""
            s_xor_b32 s3, s{sT1}, {[3, 1, 2, 0][q]}
            s_mul_i32 s3, s3, 56
            s_add_u32 s3, s3, s{sT0}
            s_lshl_b32 s3, s3, 11
            s_add_u32 s{sAo[q]}, s3, {WS_ACT}
            """)
        vO = [11, 9, 0]
        for i in range(3):
            k(f"""
            s_xor_b32 s3, s{sJ}, {i}
            s_mul_i32 s3, s3, 12288
            s_add_u32 s3, s3, {L_FRED}
            v_add_u32 v{vO[i]}, s3, v{vL16}
            """)
        wr = [[wr0, wr1], [vTa + 1, vTa + 2], [vTa + 3, vTa + 4]]
        for i in (1, 2):
            for t in range(2):
                k(f"v_add_u32 v{wr[i][t]}, {65536*i}, v{wr[0][t]}")
        W2 = X
        k("s_setprio 0")
        nfa = OPT.get("nfa", 3)
        for p in range(nfa):
            run(dma_w2([p], f"w2{p}"))
        k.need("act")
        k("s_setprio 2")
        flag_last(3, "s10", vT0, vT1)
        k("s_setprio 0")
        stamp(6)
        if OPT.get("pw", 1):
            for r in range(4):
                k(f"v_not_b32 v{acc[0]+r}, v{vTag}")
            k(f"v_lshrrev_b32 v{acc[0]+1}, 8, v{acc[0]+1}")
            for c in range(4):
                run([thr()])
                k(f"buffer_store_dwordx4 {v(acc[0],4)}, v{vL16}, {s(sWS,4)}, s{sPxW} offen offset:{1024*c}{SC}", wr=["pw"])

        def rdw2(st):
            row = W2ROW[st]
            for t in range(2):
                for e in range(2):
                    k(f"ds_read_b64_tr_b16 {v(W2+8*st+4*t+2*e,2)}, v{wr[row // 8][t]} offset:{8192*(row % 8)+8*e*128}",
                      wr=["r0" if st < 2 else "r1"], rd=[f"w2{st}"])
        lag = OPT.get("lag", 3)
        done = 0
        for p in range(nfa, 21):
            if p < 14:
                run(dma_w2([p], f"w2{p}"))
            else:
                if p == 14:
                    dstamp(0, 7)
                    dstamp(2, 9)
                if p == 19:
                    k.need("r0")
                run(dma_rows(sWO, [((p - 12) % 7,) * 2], 64 * 896, "wo"))
            while done <= min(p - lag, 13):
                rdw2(done)
                done += 1
        assert done == 14
        k("s_setprio 2")
        dstamp(2, 12)
        vOne, vHun = 1, vTa + 1
        k(f"v_mov_b32 v{vT0}, {L_CNT}")
        k(f"v_mov_b32 v{vOne}, 1")

        def mark2(*tags, word=0, val=1):
            if val != 1:
                k(f"v_mov_b32 v{vHun}, {val}")
            k.need(*tags)
            k("s_mov_b64 exec, 1")
            k(f"ds_add_u32 v{vT0}, v{vOne if val == 1 else vHun} offset:{4*word}")
            k("s_mov_b64 exec, -1")

        k("s_mov_b64 exec, 0x1ff")
        k(f"buffer_load_dword v{vFd}, v{vT2}, {s(sWS,4)}, 0 offen{SC}")
        mark2("r0", "r1", "wo", word=5)
        k(f"v_cmp_ne_u32 vcc, s{sTag}, v{vFd}")
        k("s_and_b32 s3, vcc_lo, 0x1ff")
        with k.if_("s_cbranch_scc0"):
            poll(vT2, vFd, "0x1ff")
        dstamp(0, 8)

        def slot(f):
            return (acc[0] + 4 * f if f < 4 else acc[2] + 4 * (f - 4)) if f < 8 else RING + 4 * ((f - 8) % 16)

        npre = OPT.get("npre", 24)

        def ldA(f):
            q, st = divmod(f, 14)
            if st % 4 == 0:
                k(f"s_add_u32 s{sA}, s{sAo[q]}, {st*1024}")
            if f < npre:
                run([thr()])
            k(f"buffer_load_dwordx4 {v(slot(f),4)}, v{vL16}, {s(sWS,4)}, s{sA} offen offset:{(st%4)*1024}{['', SC][OPT.get('asc', 1)]}", wr=[f"a{f}"])

        k("s_setprio 0")
        if OPT.get("ta", 0):
            k(f"buffer_load_dword v{vFd}, v{vTa}, {s(sWS,4)}, 0 offen{SC}")
        for f in range(npre):
            ldA(f)
        k(f"v_mov_b32 v{vT2}, 0x10000")

        def peek(word=0):
            k(f"ds_read_b32 v{vT1}, v{vT0} offset:{4*word}")

        def check(lv, word=0, mask=None):
            k(f"v_readfirstlane_b32 s3, v{vT1}")
            if mask:
                k(f"s_and_b32 s3, s3, {mask}")
            k(f"s_cmp_lt_u32 s3, {lv}")
            with k.if_("s_cbranch_scc0"):
                cnt_wait(word, lv, vT0, vT1, mask)

        send = lambda i, to, sl: [E(k, f"ds_write_b128 v{vO[to]}, {v(acc[i]+4*c,4)} offset:{4096*sl+1024*c}", wr=["fw"]) for c in range(4)]
        recv = lambda i, sl: [E(k, f"ds_read_b128 {v(acc[i]+4*c,4)}, v{vO[0]} offset:{4096*sl+1024*c}", wr=["fr"]) for c in range(4)]
        dstamp(0, 9)
        if OPT.get("fg", 14) < 16:
            k("s_barrier")
        k(f"s_setprio {OPT.get('fprio', 2)}")
        dstamp(3, 5)
        ev = {}
        at = lambda m, fn: ev.setdefault(m, []).append(fn)

        def seq_at(m, fns, step=1, per=1):
            for i, fn in enumerate(fns):
                at(m + (i // per) * step, fn)
            return m + ((len(fns) - 1) // per) * step

        def sync(m, lv, d=OPT.get("sd", 3)):
            at(m, lambda: mark2("fw"))
            at(m + d - 2, peek)
            at(m + d, lambda: check(lv))
            return m + d
        fe, fe2 = OPT.get("fe", 6), OPT.get("fe2", 6)
        if OPT.get("fg", 14) >= 16:
            at(24, lambda: peek(5))
            at(27, lambda: check(4, 5, 0xff))
        sw, sw2, sw3 = OPT.get("sw", 2), OPT.get("sw2", 2), OPT.get("sw3", 2)
        m = seq_at(28, send(1, 1, 0) + send(3, 1, 1), sw)
        m = sync(m + 2, LV(4), OPT.get("sd1", 4))
        m = seq_at(m, recv(1, 0) + recv(3, 1), per=2)
        at(m + 3, lambda: mark2("fr"))
        assert m + 3 <= 55
        m = seq_at(56, send(0, 1, 2), sw2)
        at(m - 1, peek)
        at(m + 1, lambda: check(LV(5)))
        m = seq_at(m + sw2, send(2, 1, 0), sw2)
        m = sync(m + 2, LV(6), OPT.get("sd2", 3))
        m = seq_at(m, recv(2, 0) + recv(0, 2), per=2)
        assert m <= 85 - fe2
        m = seq_at(85 - fe2, send(3, 2, 1), sw3)
        m = sync(m + 2, LV(7))
        m = seq_at(m, recv(3, 1), per=2) + 2
        assert m >= 85
        for c in range(4):
            at(m + c, lambda c=c: run([padd(acc[1] + 4 * c, acc[1] + 4 * c, acc[3] + 4 * c, 4, pk=OPT.get("fpk", 0))]))
            at(m + c, lambda c=c: [k(f"v_perm_b32 v{acc[1]+4*c+i}, v{acc[1]+4*c+i}, v{vTag}, s{sSel[i]}") for i in range(2)])
            at(m + c, E(k, f"buffer_store_dwordx4 {v(acc[1]+4*c,4)}, v{vL16}, {s(sWS,4)}, s{sPxW} offen offset:{1024*c}{SC}", wr=["px"]))
        px0 = m
        seq_at(113 - fe, send(2, 2, 2), OPT.get("sw4", 1))

        def omark():
            k("s_mov_b64 exec, 1")
            k(f"ds_add_u32 v{vT0}, v{vT2} offset:20")
            k("s_mov_b64 exec, -1")
        at(OPT.get("om", 82), omark)
        il = lambda o, f0, sts, fr=True: [(ai, st, ai >> 1, f0 + st, fr and ai == o[-1]) for st in sts for ai in o]
        seq = il((1, 3), 0, range(14)) + il((0, 2), 14, range(14))
        seq += il((1, 3), 28, range(14 - fe2)) + il((3,), 28, range(14 - fe2, 14), False) + il((1,), 28, range(14 - fe2, 14))
        seq += il((2, 0), 42, range(14 - fe)) + il((2,), 42, range(14 - fe, 14), False) + il((0,), 42, range(14 - fe, 14))
        assert len(seq) == 112
        la, lr = OPT.get("la", 16), OPT.get("lr", 0)
        nxt_ = npre
        for m, (ai, st, t, f, free) in enumerate(seq):
            a = acc[ai]
            k(f"{MFMA} {v(a,16)}, {v(W2+8*st+4*t,4)}, {v(slot(f),4)}, {'0' if st == 0 and m < 56 else v(a,16)}")
            if m + 1 < 112:
                k.need(f"a{seq[m+1][3]}")
            if free:
                g_ = f
            if m and nxt_ < 56 and nxt_ <= g_ + (la if g_ < lr else 16):
                assert m < px0
                ldA(nxt_)
                nxt_ += 1
            for fn in ev.get(m, []):
                fn()
            if m % 16 == 15:
                dstamp(3, 6 + m // 16)
            if m == 55:
                dstamp(0, 10)
        assert nxt_ == 56 and max(ev) < 112
        dstamp(0, 11)
        run([send(0, 0, 0)])
        mark2("fw")
        dstamp(0, 12)
        k("s_barrier")
        endpgm(1)
    return k


def main():
    for a in sys.argv[2:]:
        kk, vv = a.split("=")
        try:
            vv = int(vv)
        except ValueError:
            vv = " " + vv.replace("+", " ")
        OPT[kk] = vv
    out = sys.argv[1]
    open(out, "w").write(build([(NAME + "_kernel", gen, 256, 512, 163840)]))


if __name__ == "__main__":
    main()
```

```python
import math, struct, sys, os
sys.path.insert(0, os.path.dirname(os.path.abspath(__file__)))
from asmlib import *
from gen import f32, MFMA, SMF, LOG2E, NAME, srd, spread, E, mish_ops, build

OPT = dict()
WS_FQ, WS_FA, WS_FO, WS_FP, WS_G = 0x8000, 0x10000, 0x20000, 0x40000, 0x60000
WS_QKV, WS_ACT, WS_OF, WS_PX, WS_DBG, WS_SIZE = 0x100000, 0x700000, 0xE00000, 0x1000000, 0x1400000, 0x1500000
SLOT = 32768
SLOTS = [0, 32768, 65536]
L_W1B = 32768
L_W1A, L_FRED, L_ORED, L_CNT, L_GW = 98304, 57344, 106496, 155648, 159744
SST = 74
SC = " sc1"
SPIN = 1 << 16


def gen(code_size):
    k = Prog("f5")
    sX, sQ, sW, sWS, sWA, sW2, sWO = 24, 28, 32, 36, 40, 44, 48
    sWv, sRB, sG, sTT, sFS, sLong, sO0, sT0, sT1, sL2, sL1, sC, sSo, sTag, sCnt, sA, sM, _, sB, sD, sEe, sF = range(52, 74)
    vL, vL16, vT0, vT1, vT2 = 1, 2, 3, 4, 5
    vX0, vX1, vQ0, vQ1, vW = 240, 241, 242, 243, 244
    xa = [245, 246, 247, 248]
    wa = [249, 250, 251]
    vPad, vE, vPF = 252, 253, 254
    X = 16
    vTag = 12

    st_off = [0]

    def bstamp():
        if OPT.get("blk"):
            st_off[0] = 1
            k("s_max_i32 s3, s9, 0")
            k("s_min_i32 m0, s3, 26")
            k("s_add_u32 s9, s9, 2")
            k(f"s_movreld_b32 s{SST}, s16")
            k(f"{'s_memtime' if OPT['stamp'] == 2 else 's_memrealtime'} s[16:17]")

    def dstamp(lvl, i):
        if OPT.get("dbg", 0) == lvl:
            stamp(i)

    def stamp(i):
        if OPT.get("amp") and i not in (0, 13, OPT.get("ps0", 13), OPT.get("ps1", 13)):
            return
        if OPT.get("blk") and st_off[0]:
            return
        if OPT.get("stamp") == 2:
            k(f"s_memtime {s(SST + 2 * i, 2)}")
        elif OPT.get("stamp"):
            k(f"s_memrealtime {s(SST + 2 * i, 2)}")

    def endpgm(role=0):
        if OPT.get("amp"):
            k("s_waitcnt vmcnt(0)")
            stamp(13)
            ps = OPT.get("ps%d" % role, 13 if "ps0" not in OPT and "ps1" not in OPT else 0)
            k(f"s_sub_u32 s3, s{SST + 2 * ps}, s{SST}")
            k(f"s_mul_i32 s3, s3, {OPT['amp']}")
            k(f"s_add_u32 s{SST}, s{SST}, s3")
            with k.loop([1, 2]) as lp:
                k(f"s_memrealtime {s(SST + 2, 2)}")
                k(f"s_sub_u32 s3, s{SST + 2}, s{SST}")
                k("s_cmp_lt_i32 s3, 0")
                lp.back("s_cbranch_scc1")
            k("s_endpgm")
            return
        if OPT.get("pad"):
            k("s_waitcnt vmcnt(0)")
            stamp(13)
            ps = OPT.get("ps%d" % role, 0)
            k(f"s_add_u32 s{SST}, s{SST + 2 * ps}, {OPT['pad'] * 100}")
            if "padwg" in OPT:
                k(f"s_cmp_eq_u32 s2, {OPT['padwg']}")
                k(f"s_cselect_b32 s{SST}, s{SST}, s{SST + 2 * ps}")
            with k.loop([1, 2]) as lp:
                k(f"s_memrealtime {s(SST + 2, 2)}")
                k(f"s_sub_u32 s3, s{SST + 2}, s{SST}")
                k("s_cmp_lt_i32 s3, 0")
                lp.back("s_cbranch_scc1")
            k("s_endpgm")
            return
        if OPT.get("stamp"):
            k("s_waitcnt vmcnt(0)")
            stamp(13)
            k(f"""
            s_lshl_b32 s3, s2, 3
            s_add_u32 s3, s3, s{sWv}
            s_lshl_b32 s3, s3, 6
            s_add_u32 s3, s3, {WS_DBG}
            v_mov_b32 v1, 0
            """)
            for i in range(14):
                k(f"v_mov_b32 v2, s{SST + 2 * i}")
                k(f"buffer_store_dword v2, v1, {s(sWS, 4)}, s3 offen offset:{4 * i}")
        k("s_endpgm")

    def poll(vA, vD, mask, offs=(0,), prio=None, req=None):
        k(f"s_mov_b32 s{sCnt}, {SPIN}")
        if prio is not None:
            k("s_setprio 0")
        k(f"s_mov_b64 exec, {mask}")
        with k.loop([1, 2]) as lp:
            for i, o in enumerate(offs):
                if OPT.get("pa"):
                    k(f"v_mov_b32 v{vD+i}, 0")
                    k(f"buffer_atomic_or v{vD+i}, v{vA}, {s(sWS,4)}, 0 offen offset:{o} sc0 sc1")
                else:
                    k(f"buffer_load_dword v{vD+i}, v{vA}, {s(sWS,4)}, 0 offen offset:{o}{OPT.get('pf', SC)}")
            k(f"s_sub_u32 s{sCnt}, s{sCnt}, 1")
            k(f"v_cmp_ne_u32 vcc, s{sTag}, v{vD}")
            for i in range(1, len(offs)):
                k(f"v_cmp_ne_u32 {s(sM,2)}, s{sTag}, v{vD+i}")
                k(f"s_or_b64 vcc, vcc, {s(sM,2)}")
            k(f"""
            {"s_cmp_lg_u64 vcc, 0" if req is None else f"s_and_b32 s3, vcc_lo, {req}"}
            s_cselect_b32 s3, s{sCnt}, 0
            s_cmp_lg_u32 s3, 0
            """)
            lp.back("s_cbranch_scc1")
        if prio is not None:
            k(f"s_setprio {prio}")
        k("s_mov_b64 exec, -1")

    def flag(so):
        k("s_mov_b64 exec, 0xff")
        k(f"buffer_store_dwordx4 {v(vTag,4)}, v{vL16}, {s(sWS,4)}, {so} offen{OPT.get('ff', SC)}")
        k("s_mov_b64 exec, -1")

    def flag_last(which, so, va, vb):
        k(f"v_mov_b32 v{va}, {L_CNT}")
        k(f"v_mov_b32 v{vb}, 1")
        k("s_mov_b64 exec, 1")
        k(f"ds_add_rtn_u32 v{vb}, v{va}, v{vb} offset:{4*which}")
        k("s_mov_b64 exec, -1")
        k(f"v_readfirstlane_b32 s3, v{vb}")
        k("s_cmp_eq_u32 s3, 3")
        with k.if_("s_cbranch_scc0"):
            flag(so)

    def cnt_add(which, va, vb, val=1):
        k(f"v_mov_b32 v{va}, {L_CNT}")
        k(f"v_mov_b32 v{vb}, {val}")
        k("s_mov_b64 exec, 1")
        k(f"ds_add_u32 v{va}, v{vb} offset:{4*which}")
        k("s_mov_b64 exec, -1")

    def cnt_wait(which, target, va, vb, mask=None, prio=None):
        k(f"v_mov_b32 v{va}, {L_CNT}")
        if prio is not None:
            k("s_setprio 0")
        k(f"s_mov_b32 s{sCnt}, {SPIN * 16}")
        with k.loop([1, 2]) as lp:
            k(f"""
            ds_read_b32 v{vb}, v{va} offset:{4*which}
            s_sub_u32 s{sCnt}, s{sCnt}, 1
            v_readfirstlane_b32 s3, v{vb}
            {f"s_and_b32 s3, s3, {mask}" if mask else ""}
            s_cmp_lt_u32 s3, {target}
            s_cselect_b32 s3, s{sCnt}, 0
            s_cmp_lg_u32 s3, 0
            """)
            lp.back("s_cbranch_scc1")
        if prio is not None:
            k(f"s_setprio {prio}")

    def padd(d, a, b, n=16, pk=False):
        if pk:
            return [E(k, f"v_pk_add_f32 {v(d+r,2)}, {v(a+r,2)}, {v(b+r,2)}") for r in range(0, n, 2)]
        return [E(k, f"v_add_f32 v{d+r}, v{a+r}, v{b+r}") for r in range(n)]

    def fmap(r2, kh):
        if OPT.get("loc", 1):
            return f"""s_and_b32 s{r2}, s2, 7
            s_lshl_b32 s{r2}, s{r2}, 1
            s_bfe_u32 s3, s2, 0x10003
            s_add_u32 s{r2}, s{r2}, s3
            s_bfe_u32 s{kh}, s2, 0x10004"""
        return f"""s_bfe_u32 s{r2}, s2, 0x20001
            s_lshl_b32 s{r2}, s{r2}, 2
            s_bfe_u32 s3, s2, 0x20003
            s_add_u32 s{r2}, s{r2}, s3
            s_and_b32 s{kh}, s2, 1"""

    def tr_parts(r, p):
        k(f"""
        v_bfe_u32 v{p}, v{vL}, 4, 1
        v_and_b32 v{r}, 3, v{vL}
        v_lshl_add_u32 v{p}, v{p}, 2, v{r}
        v_bfe_u32 v{r}, v{vL}, 2, 2
        """)

    k.label("KST")
    k("s_load_dwordx16 s[4:19], s[0:1], 0")
    k("s_load_dwordx2 s[20:21], s[0:1], 80")
    k("s_load_dwordx2 s[22:23], s[0:1], 64")
    k("s_cmp_ge_u32 s2, 256")
    with k.if_("s_cbranch_scc0"):
        k("s_endpgm")
    stamp(0)
    k(f"""
    v_lshrrev_b32 v{vT0}, 6, v0
    v_and_b32 v{vL}, 63, v0
    s_getpc_b64 {s(sM, 2)}
    v_readfirstlane_b32 s{sWv}, v{vT0}
    """)
    nl = code_size // 128 + 1
    per = (nl + 31) // 32
    assert per <= 64
    k(f"s_cmp_eq_u32 s{sWv}, 7")
    with k.if_("s_cbranch_scc0"):
        k(f"""
        s_lshr_b32 s3, s2, 3
        s_mul_i32 s3, s3, {per}
        v_min_u32 v{vPF}, {per - 1}, v{vL}
        v_add_u32 v{vPF}, s3, v{vPF}
        v_lshlrev_b32 v{vPF}, 7, v{vPF}
        v_min_u32 v{vPF}, {max(code_size - 64, 0) & ~3}, v{vPF}
        global_load_dword v{vPF}, v{vPF}, {s(sM, 2)}
        """)
    k(f"""
    s_and_b32 s3, s2, 4
    s_lshl_b32 s3, s3, 1
    s_bfe_u32 s{sRB}, s2, 0x30003
    s_add_u32 s{sRB}, s{sRB}, s3
    s_and_b32 s3, s2, 3
    s_lshl_b32 s3, s3, 2
    s_lshr_b32 s{sG}, s2, 6
    s_add_u32 s{sG}, s{sG}, s3
    s_add_u32 s{sC}, s{sRB}, s{sG}
    s_mul_i32 s3, s{sC}, 37
    s_lshr_b32 s3, s3, 8
    s_mul_i32 s3, s3, 7
    s_sub_u32 s{sC}, s{sC}, s3
    s_and_b32 s{sA}, s{sWv}, 3
    s_lshl_b32 s{sTT}, s{sRB}, 2
    s_add_u32 s{sTT}, s{sTT}, s{sA}
    s_lshl_b32 s{sL2}, s{sWv}, 11
    s_mul_i32 s{sT0}, s{sG}, 168
    s_bitcmp1_b32 0x1248, s{sG}
    s_cselect_b32 s{sLong}, 0, 1
    s_cselect_b32 s3, 15, 127
    s_and_b32 s{sO0}, s{sT0}, s3
    s_sub_u32 s{sT0}, s{sT0}, s{sO0}
    v_lshrrev_b32 v{vT0}, 3, v{vL}
    s_lshl_b32 s3, s{sWv}, 4
    v_add_u32 v{vT1}, s3, v{vT0}
    v_mul_u32_u24 v{vX0}, 896, v{vT1}
    v_lshrrev_b32 v{vT1}, 4, v{vL}
    v_and_b32 v{vT2}, 7, v{vL}
    v_xor_b32 v{vX1}, v{vT2}, v{vT1}
    v_lshl_add_u32 v{vQ0}, v{vX1}, 4, v{vX0}
    v_xor_b32 v{vX1}, 4, v{vX1}
    v_lshl_add_u32 v{vX1}, v{vX1}, 4, v{vX0}
    v_add_u32 v{vX1}, {8*896-1024}, v{vX1}
    v_mov_b32 v{vX0}, v{vQ0}
    s_lshl_b32 s3, s{sWv}, 3
    v_add_u32 v{vT0}, s3, v{vT1}
    v_mul_u32_u24 v{vQ0}, 2688, v{vT0}
    v_lshlrev_b32 v{vT0}, 2, v{vT1}
    v_and_b32 v{vT2}, 15, v{vL}
    v_xor_b32 v{vT0}, v{vT0}, v{vT2}
    v_lshl_add_u32 v{vQ0}, v{vT0}, 4, v{vQ0}
    v_add_u32 v{vQ1}, {4*2688-1024}, v{vQ0}
    v_mov_b32 v{vE}, 0
    s_mul_i32 s{sB}, s{sRB}, {128*896}
    s_sub_u32 s{sD}, {448*2688}, s{sT0}
    """)
    srd(k, sX, 4, 5, f"s{sB}", 128 * 896)
    srd(k, sQ, 6, 7, f"s{sT0}", f"s{sD}")

    def nxt():
        return [E(k, f"s_add_u32 s{sC}, s{sC}, 1"), E(k, f"s_cmp_eq_u32 s{sC}, 7"), E(k, f"s_cselect_b32 s{sC}, 0, s{sC}")]

    def dma_chunk(c, halves=(0,)):
        so = SLOTS[c % 3]
        t = dict(wr=[f"ch{c}"])
        out = []
        for hf in halves:
            out += [
                [E(k, f"s_add_u32 m0, s{sL2}, {so+8192*hf}"),
                 E(k, f"s_lshl_b32 s{sSo}, s{sC}, 7" if hf == 0 else f"s_add_u32 s{sSo}, s{sSo}, {64*896}"),
                 E(k, f"buffer_load_dwordx4 v{vX0}, {s(sX,4)}, s{sSo} offen lds", **t)],
                [E(k, f"buffer_load_dwordx4 v{vX1}, {s(sX,4)}, s{sSo} offen offset:1024 lds", **t)]]
        for hf in halves:
            out += [
                [E(k, f"s_add_u32 m0, s{sL2}, {so+16384+8192*hf}"),
                 E(k, f"s_mul_i32 s{sSo}, s{sC}, {64*2688}" if hf == 0 else f"s_add_u32 s{sSo}, s{sSo}, {32*2688}"),
                 E(k, f"buffer_load_dwordx4 v{vQ0}, {s(sQ,4)}, s{sSo} offen lds", **t)],
                [E(k, f"buffer_load_dwordx4 v{vQ1}, {s(sQ,4)}, s{sSo} offen offset:1024 lds", **t)]]
        out[-1] += nxt()
        return out

    def run(groups):
        for g in groups:
            for f in g:
                f()

    stamp(1)
    run(dma_chunk(0))
    k(f"global_load_dword v{vE}, v{vE}, s[20:21]{SC}")
    if OPT.get("t1", 1):
        k(f"s_cmp_eq_u32 s{sWv}, 5")
        with k.if_("s_cbranch_scc0"):
            k(f"""
            s_bfe_u32 s{sT0}, s2, 0x10002
            s_lshl_b32 s{sT0}, s{sT0}, 5
            s_lshr_b32 s3, s2, 3
            s_add_u32 s{sT0}, s{sT0}, s3
            s_mul_i32 s{sT0}, s{sT0}, {7*3584}
            s_and_b32 s3, s2, 3
            s_mul_i32 s3, s3, 896
            s_add_u32 s{sT0}, s{sT0}, s3
            v_min_u32 v{vT0}, 48, v{vL}
            v_mul_u32_u24 v{vT1}, 37, v{vT0}
            v_lshrrev_b32 v{vT1}, 8, v{vT1}
            v_mul_u32_u24 v{vT1}, {3584-896}, v{vT1}
            v_lshl_add_u32 v{vT0}, v{vT0}, 7, v{vT1}
            v_add_u32 v{vT0}, s{sT0}, v{vT0}
            global_load_dword v{vPF}, v{vT0}, s[12:13]
            """)
    k("s_barrier")
    run(dma_chunk(1))
    srd(k, sWS, 20, 21, 0, WS_SIZE)
    k(f"""
    v_lshlrev_b32 v{vL16}, 4, v{vL}
    v_mov_b32 v{vT0}, {L_CNT}
    v_mov_b32 v{vT1}, 0
    v_mov_b32 v{vT2}, 0
    s_lshl_b32 s{sF}, s{sG}, 4
    s_add_u32 s{sF}, s{sF}, s{sRB}
    s_lshl_b32 s10, s{sF}, 7
    """)
    k(f"ds_write_b64 v{vT0}, {v(vT1,2)}", wr=["ch0"])
    k(f"ds_write_b64 v{vT0}, {v(vT1,2)} offset:8", wr=["ch0"])
    k(f"ds_write_b64 v{vT0}, {v(vT1,2)} offset:16", wr=["ch0"])
    k(f"""
    v_and_b32 v{vT0}, 31, v{vL}
    s_lshl_b32 s3, s{sA}, 5
    v_add_u32 v{vT1}, s3, v{vT0}
    v_lshlrev_b32 v{vT1}, 7, v{vT1}
    v_bfe_u32 v{vT0}, v{vL}, 1, 3
    v_lshrrev_b32 v{vT2}, 5, v{vL}
    v_xor_b32 v{vT0}, v{vT0}, v{vT2}
    v_lshl_add_u32 v{xa[0]}, v{vT0}, 4, v{vT1}
    v_xor_b32 v{xa[1]}, 32, v{xa[0]}
    v_xor_b32 v{xa[2]}, 64, v{xa[0]}
    v_xor_b32 v{xa[3]}, 96, v{xa[0]}
    """)
    k(f"""
    s_bfm_b32 s3, s{sG}, 0
    s_and_b32 s3, s3, 0x1248
    s_bcnt1_i32_b32 s3, s3
    s_lshl_b32 s{sFS}, s{sG}, 1
    s_sub_u32 s{sFS}, s{sFS}, s3
    s_lshl_b32 s{sFS}, s{sFS}, 1
    s_lshl_b32 s{sL2}, s{sA}, 11
    v_bfe_u32 v{vT1}, v{vL}, 4, 1
    v_lshlrev_b32 v{vT1}, 2, v{vT1}
    v_and_b32 v{vT0}, 7, v{vL}
    v_xor_b32 v{vT1}, v{vT1}, v{vT0}
    v_lshrrev_b32 v{vT0}, 3, v{vL}
    s_lshl_b32 s3, s{sA}, 4
    v_add_u32 v{vT0}, s3, v{vT0}
    v_mul_u32_u24 v{vW}, 3584, v{vT0}
    v_lshl_add_u32 v{vW}, v{vT1}, 4, v{vW}
    """)
    tr_parts(vT0, vT1)
    k(f"v_lshl_add_u32 v{vT2}, v{vT2}, 3, v{vT0}")

    def dma_w1(srdn, base, js, tag):
        out = []
        for j in js:
            out += [[E(k, f"s_add_u32 m0, s{sL2}, {base+8192*j}"), E(k, f"s_mul_i32 s{sSo}, s{sC}, {64*3584}"),
                     E(k, f"buffer_load_dwordx4 v{vW}, {s(srdn,4)}, s{sSo} offen lds", wr=[tag])],
                    [E(k, f"s_add_u32 s{sSo}, s{sSo}, {8*3584-1024}"),
                     E(k, f"buffer_load_dwordx4 v{vW}, {s(srdn,4)}, s{sSo} offen offset:1024 lds", wr=[tag])] + nxt()]
        return out

    def make_tag():
        k(f"v_readfirstlane_b32 s{sTag}, v{vE}")
        k(f"s_mul_i32 s{sTag}, s{sTag}, 0x9E3779B1")
        k(f"s_add_u32 s{sTag}, s{sTag}, 0x7F4A7C15")
        for i in range(4):
            k(f"v_mov_b32 v{vTag+i}, s{sTag}")

    def rebase(st8, c, regs):
        out = []
        if SLOTS[c % 3] - st8["base"] not in (0, SLOT):
            nb = SLOT if SLOTS[c % 3] == 2 * SLOT else 0
            d = "v_add_u32" if nb > st8["base"] else "v_subrev_u32"
            out = [E(k, f"{d} v{r}, {SLOT}, v{r}") for r in regs]
            st8["base"] = nb
        return out

    LV = lambda n: 0x400 + 4 * n

    k(f"s_cmp_lt_u32 s{sWv}, 4")
    with k.if_("s_cbranch_scc0") as role:
        acc = [112, 128, 144]
        Xr = [16 + 4 * i for i in range(4)]
        Wf = [[32 + 16 * t + 4 * i for i in range(4)] for t in range(3)]
        sSc, sSt, sR, sOff, sQo = [4, 6, 14], 11, [12, 13, 18], 19, [sRB, sTT, sFS, sO0]
        sH, sQB, sIt, sOFs, sFO, sOFl, sGl, sHH = range(44, 52)
        sTo, sCT, sPx, sPxW, sTagH, sSel, sRot = sB, sD, sF, 4, 5, [6, 7, 15], 14
        vTc, vTd = 0, 255
        sK, sV, sOUT = sX, sQ, sW
        vLp, vIdx, vIn, vFd, vCn, vCv = 6, 7, 8, 9, 10, 11
        vOut, vPq = [240, 241, 242], 243
        wA, wB, wC, wD, vPo, vG, vSt, vPi, vBi = range(245, 254)
        Q = [16 + 8 * j for j in range(4)]
        KB = [48 + 8 * j for j in range(4)]
        VB = [80 + 8 * j for j in range(4)]
        S = [112 + 16 * j for j in range(4)]
        O = [176 + 16 * j for j in range(4)]
        k("s_setprio 3")
        k(f"""
        s_lshl_b32 s{sT1}, s{sFS}, 6
        s_lshl_b32 s3, s{sLong}, 7
        s_add_u32 s{sT1}, s{sT1}, s3
        s_sub_u32 s{sEe}, {448*3584}, s{sT1}
        s_add_u32 s{sC}, s{sC}, 5
        s_cmp_ge_u32 s{sC}, 7
        s_cselect_b32 s3, 7, 0
        s_sub_u32 s{sC}, s{sC}, s3
        """)
        srd(k, sWA, 12, 13, f"s{sT1}", f"s{sEe}")
        t2 = OPT.get("t2", 1)
        if t2 == 1:
            k(f"""
            s_lshr_b32 s3, s2, 1
            s_lshl_b32 s3, s3, 2
            s_add_u32 s{sT0}, s3, s{sWv}
            s_mul_i32 s{sT0}, s{sT0}, 49
            s_lshr_b32 s{sT0}, s{sT0}, 2
            s_and_b32 s3, s2, 1
            s_mul_i32 s3, s3, 6272
            s_add_u32 s{sT0}, s{sT0}, s3
            s_lshl_b32 s3, s2, 2
            s_add_u32 s{sT1}, s3, s{sWv}
            s_mul_i32 s{sT1}, s{sT1}, 49
            s_lshr_b32 s{sT1}, s{sT1}, 4
            """)
            n2, no = 13, 4
        else:
            k(f"""
            s_lshr_b32 s3, s2, 3
            s_lshl_b32 s3, s3, 2
            s_add_u32 s3, s3, s{sWv}
            s_mul_i32 s{sT1}, s3, 49
            s_and_b32 s3, s2, 1
            s_mul_i32 s3, s3, 6272
            s_add_u32 s{sT0}, s{sT1}, s3
            s_lshr_b32 s{sT1}, s{sT1}, 1
            """)
            n2, no = 49, 25
        k(f"""
        v_min_u32 v{vTc}, {n2-1}, v{vL}
        v_add_u32 v{vTc}, s{sT0}, v{vTc}
        v_lshlrev_b32 v{vTc}, 7, v{vTc}
        v_min_u32 v{vTd}, {no-1}, v{vL}
        v_add_u32 v{vTd}, s{sT1}, v{vTd}
        v_lshlrev_b32 v{vTd}, 7, v{vTd}
        """)
        k(f"""
        v_min_u32 v{wa[0]}, 6, v{vT1}
        v_lshlrev_b32 v{wa[0]}, 3, v{wa[0]}
        v_add_u32 v{wa[0]}, s{sO0}, v{wa[0]}
        v_add_u32 v{wa[1]}, 56, v{wa[0]}
        v_add_u32 v{wa[2]}, 112, v{wa[0]}
        v_lshlrev_b32 v{vT0}, 6, v{vT0}
        v_lshlrev_b32 v{vT2}, 8, v{vT2}
        v_add_u32 v{vT2}, 16384, v{vT2}
        v_xor_b32 v{wa[0]}, v{wa[0]}, v{vT0}
        v_xor_b32 v{wa[1]}, v{wa[1]}, v{vT0}
        v_xor_b32 v{wa[2]}, v{wa[2]}, v{vT0}
        v_add_u32 v{wa[0]}, v{wa[0]}, v{vT2}
        v_add_u32 v{wa[1]}, v{wa[1]}, v{vT2}
        v_add_u32 v{wa[2]}, v{wa[2]}, v{vT2}
        v_and_b32 v{vT0}, 31, v{vL}
        v_mov_b32 v{vT1}, 0x3f803f80
        v_cmp_eq_u32 vcc, 28, v{vT0}
        v_cndmask_b32 v{vPad}, 0, v{vT1}, vcc
        s_mul_i32 s{sT0}, s{sG}, 3
        """)
        for t in range(3):
            k(f"s_cmp_lt_u32 s{sT0}, {16 - t}")
            k(f"s_cselect_b32 s{sSc[t]}, {f32(28 ** -0.5 * LOG2E)}, 1.0")
            k(f"s_mov_b32 s{sSc[t]+1}, s{sSc[t]}")
        k(f"""
        s_lshl_b32 s{sT0}, s{sT0}, 6
        s_add_u32 s{sT0}, s{sT0}, s{sTT}
        s_lshl_b32 s{sSt}, s{sT0}, 11
        s_add_u32 s{sSt}, s{sSt}, {WS_QKV}
        s_add_u32 s10, s10, {WS_FQ}
        s_and_b32 s{sH}, s2, 7
        s_lshl_b32 s{sH}, s{sH}, 1
        s_bfe_u32 s3, s2, 0x10003
        s_add_u32 s{sH}, s{sH}, s3
        s_lshr_b32 s{sQB}, s2, 4
        v_and_b32 v{vT0}, 0x33, v{vL}
        v_bfe_u32 v{vT1}, v{vL}, 2, 1
        v_bfe_u32 v{vT2}, v{vL}, 3, 1
        v_lshl_or_b32 v{vT0}, v{vT1}, 3, v{vT0}
        v_lshl_or_b32 v{vT0}, v{vT2}, 2, v{vT0}
        v_lshlrev_b32 v{vLp}, 4, v{vT0}
        s_lshl_b32 s{sT0}, s{sH}, 17
        s_add_u32 s{sT0}, s{sT0}, {WS_QKV}
        s_lshl_b32 s{sT1}, s{sWv}, 15
        s_add_u32 s{sT1}, s{sT1}, s{sT0}
        s_add_u32 s3, s{sT1}, {16*64*2048}
        """)
        srd(k, sK, 20, 21, "s3", 32768)
        k(f"s_add_u32 s3, s{sT1}, {32*64*2048}")
        srd(k, sV, 20, 21, "s3", 32768)
        k(f"""
        v_lshrrev_b32 v{vT0}, 4, v{vL}
        v_add_u32 v{vT0}, 1, v{vT0}
        v_cmp_gt_u32 vcc, 32, v{vL}
        v_cndmask_b32 v{vT0}, 0, v{vT0}, vcc
        v_lshl_add_u32 v{vT0}, v{vT0}, 4, s{sH}
        v_mul_u32_u24 v{vT0}, 43, v{vT0}
        v_lshrrev_b32 v{vT0}, 7, v{vT0}
        v_and_b32 v{vT1}, 15, v{vL}
        v_mov_b32 v{vT2}, s{sQB}
        v_cndmask_b32 v{vT1}, v{vT2}, v{vT1}, vcc
        v_lshl_add_u32 v{vT0}, v{vT0}, 4, v{vT1}
        v_lshlrev_b32 v{vT0}, 7, v{vT0}
        v_add_u32 v{vPq}, {WS_FQ}, v{vT0}
        s_lshl_b32 s3, s{sQB}, 13
        s_add_u32 s{sT0}, s{sT0}, s3
        """)
        for j in range(4):
            for r in range(16):
                k(f"v_mov_b32 v{O[j]+r}, 0")
        for r in range(8, 16):
            k(f"v_mov_b32 v{S[3]+r}, 0")
        for r in range(4, 8):
            k(f"v_mov_b32 v{VB[3]+r}, 0")
        k(f"v_mov_b32 v{vIdx}, 0xdddd")
        k(f"v_mov_b32 v{vCn}, {L_CNT}")
        k(f"s_mov_b32 s{sR[0]}, 4096")
        k(f"s_mov_b32 s{sOff}, 6144")
        for j in range(4):
            k(f"""
            s_add_u32 s3, s{sWv}, {1+j}
            s_and_b32 s3, s3, 3
            s_mul_i32 s{sT1}, s3, 12288
            s_add_u32 s{sT1}, s{sT1}, {L_ORED + 4096 * (j % 3)}
            v_add_u32 v{(vOut + [vIn])[j]}, s{sT1}, v{vL16}
            s_lshl_b32 s3, s3, 11
            s_add_u32 s{sQo[j]}, s3, s{sT0}
            """)
        k(f"""
        s_lshl_b32 s{sT0}, s{sQB}, 2
        s_add_u32 s{sT0}, s{sT0}, s{sWv}
        s_lshl_b32 s3, s{sT0}, 4
        s_add_u32 s3, s3, s{sH}
        s_lshl_b32 s{sOFs}, s3, 11
        s_add_u32 s{sOFs}, s{sOFs}, {WS_OF}
        s_lshr_b32 s{sHH}, s{sWv}, 1
        {fmap(sTo, 3)}
        s_lshl_b32 s{sTo}, s{sTo}, 1
        s_add_u32 s{sTo}, s{sTo}, s3
        s_lshl_b32 s{sTo}, s{sTo}, 1
        s_and_b32 s3, s{sWv}, 1
        s_add_u32 s{sTo}, s{sTo}, s3
        s_lshr_b32 s{sCT}, s2, 5
        s_lshl_b32 s3, s{sTo}, 7
        s_add_u32 s{sGl}, s3, {WS_G}
        s_lshl_b32 s{sOFl}, s{sTo}, 1
        s_add_u32 s{sOFl}, s{sOFl}, s{sHH}
        s_lshl_b32 s{sOFl}, s{sOFl}, 14
        s_add_u32 s{sOFl}, s{sOFl}, {WS_OF}
        s_mul_i32 s3, s{sTo}, {32*896}
        """)
        srd(k, sOUT, 22, 23, "s3", 32 * 896)
        if OPT.get("oq", 1):
            k(f"""
            s_mov_b32 s{sOFs}, s{sQo[3]}
            s_lshl_b32 s3, s{sHH}, 9
            s_add_u32 s3, s3, s{sTo}
            s_lshl_b32 s3, s3, 11
            s_add_u32 s{sOFl}, s3, {WS_QKV}
            """)

        nb0, nb1 = OPT.get("nb0", 0), OPT.get("nb1", 4)
        assert nb0 <= nb1 <= 4

        def p1_role0(swap):
            st8 = dict(base=0)

            def rdX(n):
                c, st = n >> 2, n & 3
                out = rebase(st8, c, xa + wa) if st == 0 else []
                return out + [E(k, f"ds_read_b128 {v(Xr[n%4],4)}, v{xa[st]} offset:{SLOTS[c%3]-st8['base']}", wr=[f"rd{c}"])]

            def rdW(n, t):
                c, st = n >> 2, n & 3
                return [E(k, f"ds_read_b64_tr_b16 {v(Wf[t][n%4]+2*e,2)}, v{wa[t]} offset:{SLOTS[c%3]-st8['base']+(16*st+4*e)*256}",
                          wr=[f"rd{c}"]) for e in range(2)]

            def reads(n):
                return rdX(n) + rdW(n, 0) + rdW(n, 1) + rdW(n, 2)

            def mm(n, t):
                a, b = v(Wf[t][n % 4], 4), v(Xr[n % 4], 4)
                if swap[t]:
                    a, b = b, a
                return [E(k, f"{MFMA} {v(acc[t],16)}, {a}, {b}, {'0' if n == 0 else v(acc[t],16)}")]

            def epi(t):
                a = acc[t]
                out = []
                if swap[t]:
                    if t == 0 or not swap[t - 1]:
                        out += [E(k, f"s_mov_b32 s{sM}, 0xf0000000"), E(k, f"s_mov_b32 s{sM+1}, 0xf0000000")]
                    for i in range(2):
                        R = range(4 * i, 4 * i + 4)
                        out += [E(k, f"v_cvt_pk_bf16_f32 v{a+r}, v{a+2*r}, v{a+2*r+1}") for r in R]
                        out += [E(k, f"v_cndmask_b32 v{a+r}, v{a+r}, v{vPad}, {s(sM,2)}") for r in R]
                        out += [E(k, f"buffer_store_dwordx4 {v(a+4*i,4)}, v{vL16}, {s(sWS,4)}, s{sSt} offen offset:{1024*i}{OPT.get('sq', SC)}", wr=["qkv"])]
                else:
                    if t == 0:
                        out += [E(k, f"s_mov_b32 s{sM}, 0"), E(k, f"s_mov_b32 s{sM+1}, -1")]
                    for i in range(2):
                        R = range(4 * i, 4 * i + 4)
                        if OPT.get("epk", 0) >> t & 1:
                            out += [E(k, f"v_pk_mul_f32 {v(a+2*r,2)}, {v(a+2*r,2)}, {s(sSc[t],2)}") for r in R]
                        else:
                            out += [E(k, f"v_mul_f32 v{a+r}, s{sSc[t]}, v{a+r}") for r in range(8 * i, 8 * i + 8)]
                        out += [E(k, f"v_cvt_pk_bf16_f32 v{a+r}, v{a+2*r}, v{a+2*r+1}") for r in R]
                        out += [E(k, f"v_cndmask_b32 v{a+r}, v{a+r}, 0, {s(sM,2)}") for r in R if r >= 6]
                        out += [E(k, f"buffer_store_dwordx4 {v(a+4*i,4)}, v{vL16}, {s(sWS,4)}, s{sSt} offen offset:{1024*i}{OPT.get('sq', SC)}", wr=["qkv"])]
                if t < 2:
                    out += [E(k, f"s_add_u32 s{sSt}, s{sSt}, {64*2048}")]
                return out

            k.need("ch0")
            k("s_barrier")
            stamp(2)
            run([reads(0), reads(1)])
            for n in range(24):
                ms = [mm(n, t) for t in range(3)]
                c = (n + 2) // 4
                if n >= 22:
                    run(ms)
                elif (n + 2) % 4 == 0:
                    run(ms)
                    k.need(f"rd{c-1}", f"ch{c}")
                    k("s_barrier")
                    if c == 3:
                        stamp(3)
                    run([reads(n + 2)])
                    if c == 1:
                        make_tag()
                else:
                    spread(k, ms, reads(n + 2))
            k.need("rd5")
            k("s_barrier")
            stamp(4)
            for n in range(24, 28):
                run([rdX(n), rdW(n, 0)])
            for t in (1, 2):
                for n in range(24, 28):
                    run([rdW(n, t)])
            run(dma_w1(sWA, L_W1B, range(nb0), "wb1"))
            run([mm(n, 0) for n in range(24, 28)] + [mm(24, 1), mm(25, 1)])
            spread(k, [mm(26, 1), mm(27, 1), mm(24, 2), mm(25, 2)], epi(0))
            k(f"v_mov_b32 v{vCv}, 0x100")
            spread(k, [mm(26, 2), mm(27, 2)], epi(1)[:4])
            k("s_mov_b64 exec, 1")
            k(f"ds_add_u32 v{vCn}, v{vCv}", rd=["rd6"])
            k("s_mov_b64 exec, -1")
            run([epi(1)[4:], epi(2)])
            assert st8["base"] == 0

        k(f"s_cmp_lt_u32 s{sG}, 10")
        with k.if_("s_cbranch_scc0") as v0:
            p1_role0([0, 0, 0])
            v0.else_()
            k(f"s_cmp_eq_u32 s{sG}, 10")
            with k.if_("s_cbranch_scc0") as v1:
                p1_role0([0, 0, 1])
                v1.else_()
                p1_role0([1, 1, 1])
        stamp(5)
        run(dma_w1(sWA, L_W1B, range(nb0, nb1), "wb1"))
        k.need("qkv")
        flag_last(2, "s10", vT0, vT1)
        stamp(6)
        run(dma_w1(sWA, L_W1B, range(nb1, 4), "wb1"))
        run(dma_w1(sWA, L_W1B, range(4, 7), "wb2"))

        def touch(pos):
            if t2 and OPT.get("tp", 1) == pos:
                k(f"global_load_dword v{vTc}, v{vTc}, s[16:17]")
                k(f"global_load_dword v{vTd}, v{vTd}, s[8:9]")
        touch(1)
        k.need("wb1")
        cnt_add(1, vT0, vT1)
        k("s_setprio 0")
        tr_parts(vT0, vT1)
        k(f"""
        s_mul_i32 s3, s{sHH}, {224*128 + 64}
        v_lshl_add_u32 v{wD}, v{vT1}, 3, s3
        v_lshrrev_b32 v{vT2}, 5, v{vL}
        v_lshl_add_u32 v{wA}, v{vT2}, 2, v{vT0}
        v_lshl_add_u32 v{wB}, v{vT2}, 1, v{vT0}
        v_add_u32 v{wB}, 16, v{wB}
        v_lshl_add_u32 v{wC}, v{vT2}, 2, 3
        v_cmp_gt_u32 vcc, 2, v{vT0}
        v_cndmask_b32 v{wB}, v{wC}, v{wB}, vcc
        """)
        for w in (wA, wB):
            k(f"""
            v_and_b32 v{vT1}, 2, v{w}
            v_lshlrev_b32 v{vT1}, 5, v{vT1}
            v_lshl_add_u32 v{w}, v{w}, 7, v{wD}
            v_xor_b32 v{w}, v{w}, v{vT1}
            """)
        k(f"""
        v_xor_b32 v{wC}, 64, v{wA}
        v_xor_b32 v{wD}, 64, v{wB}
        s_lshl_b32 s{sT0}, s{sCT}, 1
        s_add_u32 s{sT0}, s{sT0}, s{sHH}
        s_lshl_b32 s{sTagH}, s{sTag}, 16
        s_mov_b32 s{sSel[2]}, 0x04000c0c
        s_mul_i32 s{sPx}, s{sTo}, 14
        s_add_u32 s{sPx}, s{sPx}, s{sT0}
        s_lshl_b32 s{sPx}, s{sPx}, 12
        s_add_u32 s{sPx}, s{sPx}, {WS_PX}
        v_and_b32 v{vT0}, 31, v{vL}
        v_lshlrev_b32 v{vG}, 2, v{vT0}
        v_mul_u32_u24 v{vSt}, 896, v{vT0}
        v_lshl_add_u32 v{vSt}, v{vT2}, 4, v{vSt}
        s_lshl_b32 s3, s{sT0}, 6
        v_add_u32 v{vSt}, s3, v{vSt}
        s_xor_b32 s3, s{sWv}, 2
        s_mul_i32 s3, s3, 12288
        s_add_u32 s3, s3, {L_ORED}
        v_add_u32 v{vPi}, s3, v{vL16}
        v_add_u32 v{vBi}, {L_FRED - L_ORED + (1 << 32)}, v{vIn}
        """)
        k("s_setprio 3")
        k.need("wb2")
        cnt_add(1, vT0, vT1, 0x100)
        dstamp(6, 3)
        k(f"s_cmp_eq_u32 s{sWv}, 0")
        with k.if_("s_cbranch_scc0") as pl:
            if not OPT.get("nopoll"):
                poll(vPq, vFd, -1)
                if OPT.get("dbg") == 6:
                    k(f"s_sub_u32 s3, {SPIN}, s{sCnt}")
                    k(f"s_mul_i32 s3, s3, 100")
                    k(f"s_add_u32 s{SST+2*2}, s{SST}, s3")
            cnt_add(4, vCn, vCv, 0x100)
            pl.else_()
            if not OPT.get("nopoll"):
                cnt_wait(4, 0x100, vCn, vCv, prio=3)
        stamp(7)

        KVS = {0: SC, 1: "", 2: " nt", 3: " sc0", 4: " sc1 nt"}[OPT.get("kv", 0)]

        def ldK(buf, so, hs=(0, 1), o=0):
            for i in hs:
                k(f"buffer_load_dwordx4 {v(KB[buf]+4*i,4)}, v{vLp}, {s(sK,4)}, {so} offen offset:{o+1024*i}{KVS}", wr=[f"k{buf}"])

        def ldV(buf, so, hs=(0, 1), o=0):
            for i in hs:
                k(f"buffer_load_dwordx4 {v(VB[buf]+4*i,4)}, v{vL16}, {s(sV,4)}, {so} offen offset:{o+1024*i}{KVS}", wr=[f"v{buf}"])

        def ldQ(j):
            for i in range(2):
                k(f"buffer_load_dwordx4 {v(Q[j]+4*i,4)}, v{vL16}, {s(sWS,4)}, s{sQo[j]} offen offset:{1024*i}{SC}")

        ldK(0, "0")
        ldQ(0)
        ldQ(1)
        ldQ(2)
        ldV(0, "0")
        ldQ(3)
        ldK(1, "0", o=2048)
        ldV(1, "0", o=2048)
        ldK(2, f"s{sR[0]}")
        ldV(2, f"s{sR[0]}")
        ldK(3, f"s{sOff}")
        k(f"v_add_u32 v{vLp}, 2048, v{vLp}")
        touch(0)
        cnt_add(1, vT0, vT1, 0x10000)
        k(f"s_setprio {OPT.get('aprio', 1)}")

        def QK(u, half):
            j, t = u & 3, (u >> 2) & 3
            c = "0" if half == 0 else v(S[j], 16)
            k(f"{MFMA} {v(S[j],16)}, {v(KB[t]+4*half,4)}, {v(Q[j]+4*half,4)}, {c}")

        def PV(u, half):
            j, t = u & 3, (u >> 2) & 3
            k(f"{SMF} {v(O[j],16)}, {v(VB[t]+4*half,4)}, {v(S[j]+8*half,8)}, v{vIdx}")

        pend = []

        def EX(u, a, b):
            for r in range(a, b):
                k(f"v_exp_f32 v{S[u&3]+r}, v{S[u&3]+r}")
                if pend and r & 1:
                    pend.pop(0)()

        def putO(j, i):
            k(f"ds_write_b128 v{vOut[j]}, {v(O[j]+4*i,4)} offset:{1024*i}", wr=["red"])

        gate = OPT.get("gate", 14)
        WOB = [KB[0], VB[0], KB[1], VB[1], KB[2], Q[0], Q[1], Q[2], VB[2], KB[3], S[0], S[0] + 8, S[1], S[1] + 8, VB[3], Q[3]]
        wu0 = OPT.get("wu0", 14)
        fg = OPT.get("fg", 14)
        avail = [2, 5, 6, 9, 10, 11, 12, 13, 13]
        nwe = OPT.get("nwe", 0)
        wsch = {}
        for n in range(nwe):
            u = max(avail[n], wu0)
            while u < 13 and len(wsch.get(u, [])) >= OPT.get("wpu", 1):
                u += 1
            wsch.setdefault(u, []).append(n)

        def rdWO(ns):
            out = []
            for n in ns:
                hh, st = n >> 1, n & 1
                for t in range(2):
                    for e in range(2):
                        x = st == 1 and e == 1
                        a = [[wA, wB], [wC, wD]][t][x]
                        out += [E(k, f"ds_read_b64_tr_b16 {v(WOB[n]+4*t+2*e,2)}, v{a} offset:{(28*hh+(8 if x else 16*st+8*e))*128}")]
            return out

        def unit(u, last, inloop=False):
            i, q = u >> 2, u & 3
            if last and u == gate:
                k("s_setprio 3")
            pend.extend(rdWO(wsch.get(u, [])) if last else [])
            if last and u == fg:
                k("s_barrier")
            if last and u == wu0 - 2 and wu0 < fg:
                k(f"ds_read_b32 v{vCv}, v{vCn} offset:20")
            if last and u == wu0 and wu0 < fg:
                k(f"v_readfirstlane_b32 s3, v{vCv}")
                k("s_and_b32 s3, s3, 0xff")
                k("s_cmp_lt_u32 s3, 4")
                with k.if_("s_cbranch_scc0"):
                    cnt_wait(5, 4, vCn, vCv, 0xff)
            if not (last and u >= 14):
                QK(u + 2, 0)
            if q < 2 and (u < 2 or not last):
                ldV((i - 1) & 3, f"s{sOff}", (q,), 2048 * (i & 1))
            if q >= 2 and not last:
                ldK(i, f"s{sOff}", (q - 2,), 2048 * (i & 1))
            EX(u, 0, 4)
            if not (last and u >= 14):
                QK(u + 2, 1)
            else:
                PV(u - 1, 1)
            if OPT.get("wq", 1):
                if q == 1 and (not last or u < 12):
                    k(f"s_waitcnt vmcnt({8 if not last else 9 - u})")
            elif q & 1 and (not last or u < 12):
                k(f"s_waitcnt vmcnt({10 if not last else 11 - u})")
            if last and u >= 14:
                for c in range(4):
                    EX(u, 4 + c, 5 + c)
                    putO(u - 14, c)
            else:
                EX(u, 4, 8)
                PV(u - 1, 1)
            if u & 7 == 7 and not last:
                k(f"s_add_u32 s{sOff}, s{sOff}, 4096")
            if last and u == 15:
                PV(u, 0)
                for c in range(4):
                    EX(u, 8 + 2 * c, 10 + 2 * c)
                    putO(2, c)
                PV(u, 1)
                return
            EX(u, 8, 12)
            PV(u, 0)
            if u == 1 and inloop:
                k(f"s_cmp_lt_u32 s{sOff}, {15*2048}")
            EX(u, 12, 16)

        assert gate <= 14
        for u in range(2):
            QK(u, 0)
            QK(u, 1)
        stamp(8)
        if OPT.get("blk"):
            k(f"s_mov_b32 s9, {-2 - 2 * OPT.get('b0', 0)}")
            k("s_mov_b32 s16, 0")
        bstamp()
        assert min(gate, fg, wu0 - 2) >= 2
        unit(0, False)
        unit(1, False)
        with k.loop(3, align=6) as lp:
            for u in list(range(2, 16)) + [0, 1]:
                if OPT.get("blk") and u % OPT["blk"] == OPT["blk"] - 1:
                    bstamp()
                unit(u, False, True)
            lp.back("s_cbranch_scc1")
        for u in range(2, 16):
            if OPT.get("blk") and u % OPT["blk"] == OPT["blk"] - 1:
                bstamp()
            unit(u, True)
        bstamp()
        bstamp()
        stamp(9)
        if "eprio" in OPT:
            k(f"s_setprio {OPT['eprio']}")
        k.need("red")
        cnt_add(4, vCn, vCv)
        cnt_wait(4, 0x104, vCn, vCv)
        assert not pend
        for j in range(3):
            for i in range(4):
                k(f"ds_read_b128 {v(O[j]+4*i,4)}, v{vIn} offset:{4096*j+1024*i}")
        A = O[3]
        opk = OPT.get("opk", 0)
        nwr = OPT.get("nwr", 0)
        adds = [[f] for j in range(3) for f in padd(A, A, O[j], pk=opk)]
        w0 = OPT.get("wr0", 4)
        run(adds[:w0])
        spread(k, adds[w0:], rdWO(range(nwe, nwr)))

        def get_l():
            k(f"""
            v_mov_b32 v{vT0}, v{A+12}
            v_mov_b32 v{vT1}, v{A+12}
            v_permlane32_swap_b32 v{vT0}, v{vT1}
            """)
        get_l()
        k(f"v_mul_f32 v{vCn}, v{A}, v{A+1}")
        k(f"v_mul_f32 v{vCv}, v{A+2}, v{A+3}")
        for r in range(4, 16, 2):
            k(f"v_fma_f32 v{vCn + (r >> 1 & 1)}, v{A+r}, v{A+r+1}, v{vCn + (r >> 1 & 1)}")
        k(f"""
        v_fma_f32 v{vT2}, v{vCn}, 0, v{vT1}
        v_fma_f32 v{vT2}, v{vCv}, 0, v{vT2}
        v_cmp_nlt_f32 vcc, {f32(2.0**-30)}, v{vT2}
        s_mov_b64 {s(sM,2)}, vcc
        v_cmp_ngt_f32 vcc, {f32(2.0**40)}, v{vT2}
        s_or_b64 {s(sM,2)}, {s(sM,2)}, vcc
        """)
        if OPT.get("force_fb"):
            k(f"s_mov_b64 {s(sM,2)}, -1")
        k(f"s_cmp_lg_u64 {s(sM,2)}, 0")
        with k.if_("s_cbranch_scc0"):
            k(f"s_lshl_b32 s{sT1}, s{sH}, 17")
            k(f"s_add_u32 s3, s{sT1}, {WS_QKV+16*64*2048}")
            srd(k, sK, 20, 21, "s3", 131072)
            k(f"s_add_u32 s3, s{sT1}, {WS_QKV+32*64*2048}")
            srd(k, sV, 20, 21, "s3", 131072)
            fK, fV, fM = S[2], S[2] + 8, O[0]

            def fld(d, va, sr):
                for i in range(2):
                    k(f"buffer_load_dwordx4 {v(d+4*i,4)}, v{va}, {s(sr,4)}, s{sOff} offen offset:{1024*i}{SC}")

            def fqk(c):
                k(f"{MFMA} {v(S[3],16)}, {v(fK,4)}, {v(Q[3],4)}, {c}")
                k(f"{MFMA} {v(S[3],16)}, {v(fK+4,4)}, {v(Q[3]+4,4)}, {v(S[3],16)}")
            k(f"v_subrev_u32 v{vLp}, 2048, v{vLp}")
            k(f"v_mov_b32 v{vT0}, 0xff800000")
            k(f"s_mov_b32 s{sOff}, 0")
            with k.loop(3) as l1:
                fld(fK, vLp, sK)
                fqk("0")
                for r in range(0, 16, 2):
                    k(f"v_max3_f32 v{vT0}, v{S[3]+r}, v{S[3]+r+1}, v{vT0}")
                k(f"s_add_u32 s{sOff}, s{sOff}, 2048")
                k(f"s_cmp_lt_u32 s{sOff}, 131072")
                l1.back("s_cbranch_scc1")
            k(f"""
            v_mov_b32 v{vT1}, v{vT0}
            v_permlane32_swap_b32 v{vT0}, v{vT1}
            v_max_f32 v{vT0}, v{vT0}, v{vT1}
            """)
            for r in range(16):
                k(f"v_mul_f32 v{fM+r}, -1.0, v{vT0}")
                k(f"v_mov_b32 v{A+r}, 0")
            k(f"s_mov_b32 s{sOff}, 0")
            with k.loop(3) as l2:
                fld(fK, vLp, sK)
                fld(fV, vL16, sV)
                fqk(v(fM, 16))
                EX(3, 0, 16)
                for h_ in range(2):
                    k(f"{SMF} {v(A,16)}, {v(fV+4*h_,4)}, {v(S[3]+8*h_,8)}, v{vIdx}")
                k(f"s_add_u32 s{sOff}, s{sOff}, 2048")
                k(f"s_cmp_lt_u32 s{sOff}, 131072")
                k("s_nop 4")
                l2.back("s_cbranch_scc1")
            get_l()
        k(f"v_rcp_f32 v{vT1}, v{vT1}")
        for i in range(2):
            for r in range(8 * i, 8 * i + 8):
                k(f"v_mul_f32 v{A+r}, v{A+r}, v{vT1}")
            if i == 0:
                k(f"v_cvt_pk_bf16_f32 v{vT0}, v{A+6}, v{A+7}")
                k(f"v_cvt_pk_bf16_f32 v{vT2}, v{A+7}, v{A+6}")
                for r in range(3):
                    k(f"v_cvt_pk_bf16_f32 v{A+r}, v{A+2*r}, v{A+2*r+1}")
                k(f"v_alignbit_b32 v{A+3}, v{vTag}, v{vT2}, 16")
            else:
                for r in (6, 7, 4, 5):
                    k(f"v_cvt_pk_bf16_f32 v{A+r}, v{A+2*r}, v{A+2*r+1}")
                k(f"v_permlane32_swap_b32 v{A+6}, v{A+7}")
                k(f"v_alignbit_b32 v{A+7}, v{vTag}, v{vT0}, 16")
            k(f"buffer_store_dwordx4 {v(A+4*i,4)}, v{vL16}, {s(sWS,4)}, s{sOFs} offen offset:{1024*i}{OPT.get('so', SC)}", wr=["o"])
        stamp(10)
        k("s_cmp_ge_u32 s2, 224")
        with k.if_("s_cbranch_scc0"):
            endpgm(2)
        OFr = 144
        fac = [208, 224]

        def ldO(hh):
            k(f"s_add_u32 s3, s{sOFl}, {(131072 if OPT.get('oq', 1) else 2048)*hh}")
            for i in range(2):
                k(f"buffer_load_dwordx4 {v(OFr+8*hh+4*i,4)}, v{vL16}, {s(sWS,4)}, s3 offen offset:{1024*i}{SC}")

        PX = 240

        def ldP(sc=SC):
            for c in range(4):
                k(f"buffer_load_dwordx4 {v(PX+4*c,4)}, v{vL16}, {s(sWS,4)}, s{sPx} offen offset:{1024*c}{sc}")

        def chkO(g, ng):
            D = [OFr + 8 * ng * g + 4 * i + 3 for i in range(2 * ng)]
            out = []
            for i in range(0, 2 * ng, 2):
                out += [E(k, f"v_xor_b32 v{D[i]}, s{sTagH}, v{D[i]}"), E(k, f"v_xor_b32 v{D[i+1]}, s{sTagH}, v{D[i+1]}"),
                        E(k, f"v_or3_b32 v{vT0}, v{D[i]}, v{D[i+1]}, {'0' if i == 0 else f'v{vT0}'}")]
            return out + [E(k, f"v_cmp_lt_u32 vcc, 0xffff, v{vT0}")]

        def chkP():
            out = []
            for c in range(4):
                out += [E(k, f"v_perm_b32 v{vCn}, v{PX+4*c+1}, v{PX+4*c}, s{sSel[2]}"),
                        E(k, f"v_xor_b32 v{vCn}, s{sTagH}, v{vCn}"),
                        E(k, f"v_or_b32 v{vT0}, {'0' if c == 0 else f'v{vT0}'}, v{vCn}")]
            return out + [E(k, f"v_cmp_ne_u32 vcc, 0, v{vT0}")]

        def retry(load, chk):
            k("s_cmp_lg_u64 vcc, 0")
            with k.if_("s_cbranch_scc0"):
                with k.loop([1, 2]) as lp:
                    load()
                    run([chk])
                    k(f"""
                    s_sub_u32 s{sCnt}, s{sCnt}, 1
                    s_cmp_lg_u64 vcc, 0
                    s_cselect_b32 s3, s{sCnt}, 0
                    s_cmp_gt_i32 s3, 0
                    """)
                    lp.back("s_cbranch_scc1")

        def mmO(g, ng):
            return [[E(k, f"{MFMA} {v(fac[t],16)}, {v(WOB[n]+4*t,4)}, {v(OFr+4*n,4)}, {'0' if n == 0 else v(fac[t],16)}")]
                    for n in range(2 * ng * g, 2 * ng * (g + 1)) for t in (1, 0)]

        uG, uSt, uPi, uBi = vLp, vIdx, vFd, vTc
        k(f"s_setprio {OPT.get('tprio', 0)}")
        nw0 = max(OPT.get("nw0", 16), nwr)
        wth = OPT.get("wth", 0)
        for i, f in enumerate(rdWO(range(nwr, nw0))):
            if wth and i % 2 == 0:
                k(f"s_waitcnt lgkmcnt({wth})")
            f()
        dstamp(4, 4)
        cnt_wait(5, 0x40000, vCn, vCv)
        k(f"s_setprio {OPT.get('uprio', 3)}")
        dstamp(4, 6)
        dstamp(5, 0)
        ng = OPT.get("ng", 2)
        na = OPT.get("na", 4)
        G = 8 // ng
        for hh in range(na):
            ldO(hh)
        k(f"buffer_load_dword v{uG}, v{vG}, {s(sWS,4)}, s{sGl} offen{SC}")
        for d, o in ((uSt, vSt), (uPi, vPi), (uBi, vBi)):
            k(f"v_mov_b32 v{d}, v{o}")
        run([rdWO(range(nw0, 16))])
        dstamp(4, 5)
        k(f"s_mov_b32 s{sCnt}, {SPIN}")
        todo = [(lambda hh=hh: ldO(hh)) for hh in range(na, 8)]
        pg = OPT.get("pg", G - 2)
        run([chkO(0, ng)])
        B, B2, P = OFr, OFr + 16, 48
        a = fac[0]
        for g in range(G):
            retry(lambda: [ldO(hh) for hh in range(ng * g, ng * g + ng)], chkO(g, ng))
            dstamp(5, 1 + 2 * g)
            mm = mmO(g, ng)
            h = len(mm) // 2
            if g < G - 1:
                spread(k, mm[:h], todo[:ng] + ([ldP] if g == pg else []))
                todo = todo[ng:]
                if g == G - 2:
                    k(f"ds_read_b32 v{vT2}, v{vCn}")
                spread(k, mm[h:], chkO(g + 1, ng))
        assert not todo
        if OPT.get("dbg") == 4:
            k(f"s_sub_u32 s3, {SPIN}, s{sCnt}")
            k(f"s_mul_i32 s3, s3, 100")
            k(f"s_add_u32 s{SST+2*3}, s{SST}, s3")
        m1, m0 = mm[0::2], mm[1::2]
        run(m1[:1])
        if pg == G - 1:
            ldP()
        run(m1[1:])
        wx = [E(k, f"ds_write_b128 v{vIn}, {v(fac[1]+4*i,4)} offset:{1024*i}", wr=["xch"]) for i in range(4)]
        run(m0[:2])
        spread(k, m0[2:], wx)
        k(f"v_readfirstlane_b32 s3, v{vT2}")
        k(f"s_cmp_lt_u32 s3, {LV(8)}")
        with k.if_("s_cbranch_scc0"):
            k(f"s_mov_b32 s{sT0}, s{sCnt}")
            k("s_setprio 0")
            cnt_wait(0, LV(8), vT1, vT2)
            k(f"s_mov_b32 s{sCnt}, s{sT0}")
        dstamp(5, 2)
        for c in range(4):
            for i in range(2):
                k(f"ds_read_b128 {v(B+16*i+4*c,4)}, v{uBi} offset:{8192*i+1024*c}")
        run([chkP()])
        retry(ldP, chkP())
        dstamp(5, 4)
        if OPT.get("dbg") == 4:
            k(f"s_sub_u32 s3, {SPIN}, s{sCnt}")
            k(f"s_mul_i32 s3, s3, 100")
            k(f"s_add_u32 s{SST+2*2}, s{SST}, s3")
        k(f"""
        v_sub_f32 v{vCn}, 1.0, v{uG}
        v_sub_f32 v{vCv}, 1.0, v{uG}
        v_mov_b32 v{vT1}, v{uG}
        v_mov_b32 v{vT2}, v{uG}
        """)
        for r in range(16):
            if r & 3 < 2:
                k(f"v_and_b32 v{PX+r}, 0xffffff00, v{PX+r}")
        stamp(11)
        k.need("xch")
        k("s_barrier")
        stamp(12)
        for i in range(4):
            k(f"ds_read_b128 {v(P+4*i,4)}, v{uPi} offset:{1024*i}")
        for r in range(0, 16, 2):
            k(f"v_pk_add_f32 {v(B+r,2)}, {v(B+r,2)}, {v(B2+r,2)}")
        for q in range(2):
            R = range(8 * q, 8 * q + 8, 2)
            for r in R:
                k(f"v_pk_add_f32 {v(PX+r,2)}, {v(PX+r,2)}, {v(B+r,2)}")
            for r in R:
                k(f"v_pk_mul_f32 {v(PX+r,2)}, {v(PX+r,2)}, {v(vCn,2)}")
            for r in R:
                k(f"v_pk_add_f32 {v(a+r,2)}, {v(a+r,2)}, {v(P+r,2)}")
            for r in R:
                k(f"v_pk_fma_f32 {v(a+r,2)}, {v(a+r,2)}, {v(vT1,2)}, {v(PX+r,2)}")
            for r in range(4):
                k(f"v_cvt_pk_bf16_f32 v{P+8*q+r}, v{a+8*q+2*r}, v{a+8*q+2*r+1}")
            k(f"v_permlane32_swap_b32 v{P+8*q}, v{P+8*q+2}")
            k(f"v_permlane32_swap_b32 v{P+8*q+1}, v{P+8*q+3}")
            k(f"buffer_store_dwordx4 {v(P+8*q,4)}, v{uSt}, {s(sOUT,4)}, 0 offen offset:{32*q}{OPT.get('ost', '')}")
        endpgm()

        role.else_()
        st_off[0] = 0
        acc = [128, 144, 160, 176]
        NS = 7
        W6 = [192 + 4 * i for i in range(NS)]
        tmp = 220
        BA, BZ = 224, 228
        vD, wr0, wr1, vGW, vFd = 6, 7, 8, 9, 10
        sJ, sSt, sKH, sR2, sCT = sA, 4, 5, 6, 7
        k("s_setprio 2")
        k(f"""
        s_lshl_b32 s{sT1}, s{sFS}, 6
        v_lshlrev_b32 v{BA+1}, 1, v{vL}
        v_add_u32 v{BA+1}, s{sT1}, v{BA+1}
        global_load_ushort v{BA}, v{BA+1}, s[14:15]
        s_lshl_b32 s3, s{sLong}, 7
        v_add_u32 v{BA+3}, s3, v{BA+1}
        global_load_ushort v{BA+2}, v{BA+3}, s[14:15]
        s_sub_u32 s{sEe}, {448*3584}, s{sT1}
        """)
        srd(k, sW, 12, 13, f"s{sT1}", f"s{sEe}")
        k(f"""
        v_subrev_u32 v{vX0}, {64*896}, v{vX0}
        v_subrev_u32 v{vX1}, {64*896}, v{vX1}
        v_subrev_u32 v{vQ0}, {32*2688}, v{vQ0}
        v_subrev_u32 v{vQ1}, {32*2688}, v{vQ1}
        v_lshrrev_b32 v{wa[1]}, 1, v{vT0}
        v_lshlrev_b32 v{wa[1]}, 6, v{wa[1]}
        v_lshl_add_u32 v{wa[1]}, v{vT1}, 3, v{wa[1]}
        v_lshl_add_u32 v{wa[0]}, v{vT2}, 7, v{wa[1]}
        v_add_u32 v{wa[0]}, {L_W1A}, v{wa[0]}
        v_lshrrev_b32 v{vT2}, 5, v{vL}
        v_lshl_add_u32 v{vT2}, v{vT2}, 2, v{vT0}
        v_lshl_add_u32 v{wr0}, v{vT2}, 7, v{wa[1]}
        v_xor_b32 v{wa[1]}, 64, v{wa[0]}
        v_add_u32 v{wr0}, s{sL2}, v{wr0}
        s_lshr_b32 s3, s{sJ}, 1
        s_lshl_b32 s3, s3, 6
        v_xor_b32 v{wr0}, s3, v{wr0}
        v_xor_b32 v{wr1}, 64, v{wr0}
        v_lshrrev_b32 v{vT0}, 3, v{vL}
        v_mul_u32_u24 v{vD}, 896, v{vT0}
        v_and_b32 v{vT0}, 127, v{vW}
        v_add_u32 v{vD}, v{vD}, v{vT0}
        s_cmp_eq_u32 s{sG}, 3
        """)
        with k.if_("s_cbranch_scc0"):
            srd(k, sW2, 18, 19, 0, 896)
            k(f"""
            s_add_u32 s3, s{sC}, 5
            s_lshl_b32 s3, s3, 7
            v_add_u32 v{vT0}, s3, v{vL16}
            v_subrev_u32 v{vT1}, 896, v{vT0}
            v_min_u32 v{vT0}, v{vT0}, v{vT1}
            v_subrev_u32 v{vT1}, 896, v{vT0}
            v_min_u32 v{vT0}, v{vT0}, v{vT1}
            s_lshr_b32 s3, s{sL2}, 1
            s_add_u32 m0, s3, {L_GW}
            v_lshrrev_b32 v{vGW}, 5, v{vL}
            v_lshlrev_b32 v{vGW}, 4, v{vGW}
            v_add_u32 v{vGW}, m0, v{vGW}
            """)
            k(f"buffer_load_dwordx4 v{vT0}, {s(sW2,4)}, 0 offen lds", wr=["gw"])
        k(f"""
        s_mul_i32 s{sSt}, s{sTT}, 56
        s_add_u32 s{sSt}, s{sSt}, s{sFS}
        s_lshl_b32 s{sSt}, s{sSt}, 11
        s_add_u32 s{sSt}, s{sSt}, {WS_ACT}
        {fmap(sR2, sKH)}
        s_lshr_b32 s{sCT}, s2, 5
        s_lshl_b32 s{sT0}, s{sKH}, 2
        s_add_u32 s{sT0}, s{sT0}, s{sJ}
        s_mul_i32 s{sT0}, s{sT0}, {224*896}
        s_lshl_b32 s3, s{sCT}, 7
        s_add_u32 s{sT0}, s{sT0}, s3
        s_sub_u32 s{sT1}, {224*896}, s3
        s_cmp_lt_u32 s2, 224
        s_cselect_b32 s{sT1}, s{sT1}, 0
        """)
        srd(k, sW2, 16, 17, f"s{sT0}", f"s{sT1}")
        k(f"""
        s_mul_i32 s{sT0}, s{sJ}, {16*896}
        s_add_u32 s{sT0}, s{sT0}, s3
        s_sub_u32 s{sT1}, {448*896}, s{sT0}
        s_cmp_lt_u32 s2, 224
        s_cselect_b32 s{sT1}, s{sT1}, 0
        """)
        srd(k, sWO, 8, 9, f"s{sT0}", f"s{sT1}")
        for r in range(10):
            k(f"v_mov_b32 v{BZ+r}, 0")
        k(f"""
        v_mov_b32 v{vT0}, 0x3f80
        v_cmp_gt_u32 vcc, 32, v{vL}
        v_cndmask_b32 v{BZ+2}, 0, v{vT0}, vcc
        v_cndmask_b32 v{BZ+6}, v{vT0}, v{BZ+6}, vcc
        v_mov_b32 v{BA+1}, 0
        v_mov_b32 v{BA+3}, 0
        """)

        W2ROW = [0, 1] + list(range(7, 19))

        TH = OPT.get("th", 4)

        def thr():
            f = E(k, f"s_waitcnt vmcnt({TH - 1})")
            f.thr = 1
            return [f] if TH else []

        def dma_rows(srdn, items, gstride, tag):
            out = []
            for st, row in items:
                out += [[E(k, f"s_add_u32 m0, s{sL2}, {8192*row}"), E(k, f"s_mov_b32 s{sSo}, {st*gstride}"), *thr(),
                         E(k, f"buffer_load_dwordx4 v{vD}, {s(srdn,4)}, s{sSo} offen lds", wr=[tag])],
                        [E(k, f"s_mov_b32 s{sSo}, {st*gstride+8*896-1024}"), *thr(),
                         E(k, f"buffer_load_dwordx4 v{vD}, {s(srdn,4)}, s{sSo} offen offset:1024 lds", wr=[tag])]]
            return out

        def dma_w2(sts, tag):
            return dma_rows(sW2, [(st, W2ROW[st]) for st in sts], 16 * 896, tag)

        st8 = dict(base=0)
        for c in range(7):
            if c == 0:
                k.need("ch0")
            else:
                k.need(f"rd{c-1}", f"ch{c}")
            k("s_barrier")
            if c in (0, 6):
                stamp(2 + c // 3)
            rdx = rebase(st8, c, xa) + [
                E(k, f"ds_read_b128 {v(X+16*c+4*st,4)}, v{xa[st]} offset:{SLOTS[c%3]-st8['base']}", wr=[f"rd{c}"]) for st in range(4)]
            if c <= 4:
                dm = dma_chunk(c + 2, (0, 1))
                run(dm[:2] + [rdx] + dm[2:])
            else:
                run([rdx])
                k(f"s_cmp_eq_u32 s{sLong}, 1")
                with k.if_("s_cbranch_scc0") as lg:
                    run(dma_w1(sW, L_W1A, range(4), "wa1") if c == 5 else dma_w1(sW, L_W1A, [4, 5, 6], "wa2"))
                    k.need("ch6" if c == 5 else "wa1")
                    if c == 5:
                        lg.else_()
                        k.need("ch6")
            if c == 1:
                make_tag()
            if c == 2:
                for t, w in enumerate((BZ + 2, BZ + 6, BZ, BZ + 4)):
                    k(f"{MFMA} {v(acc[t],16)}, {v(BA,4)}, {v(w,4)}, 0")

        def act_store(t):
            out = []
            for i in range(2):
                if OPT.get("ths", 1):
                    out += thr()
                out += [E(k, f"buffer_store_dwordx4 {v(acc[t]+4*i,4)}, v{vL16}, {s(sWS,4)}, s{sSt} offen offset:{1024*i}{SC}", wr=["act"])]
            return out + [E(k, f"s_add_u32 s{sSt}, s{sSt}, 2048")]

        D = 5

        def rd2(m):
            t, n = divmod(m, 28)
            j, st = n >> 2, n & 3
            return [E(k, f"ds_read_b64_tr_b16 {v(W6[m%NS]+2*e,2)}, v{wa[t%2]} offset:{8192*j+(16*st+4*e)*128}", wr=["wrd", f"w{m}"])
                    for e in range(2)]

        def tile(t, lim, fill, hooks={}):
            groups = []
            for n in range(28):
                m = 28 * t + n
                g = [E(k, f"{MFMA} {v(acc[t],16)}, {v(W6[m%NS],4)}, {v(X+4*n,4)}, {v(acc[t],16)}")]
                if n & 1 and m + 2 < lim:
                    g += [lambda m=m: k.need(f"w{m+2}")]
                if n in hooks:
                    g += [hooks[n]]
                if m + D < lim:
                    g += rd2(m + D)
                groups.append(g)
            run(groups[:2])
            spread(k, groups[2:26], fill)
            run(groups[26:])

        def mish(t):
            if not OPT.get("mpk", 10) >> t & 1:
                return mish_ops(k, acc[t], tmp)
            a, o = acc[t], []
            o += [E(k, f"s_mov_b32 s{sM}, {f32(LOG2E)}"), E(k, f"s_mov_b32 s{sM+1}, {f32(LOG2E)}")]
            for b in range(0, 16, 4):
                u, w = tmp, tmp + 4
                o += [E(k, f"v_pk_mul_f32 {v(u+r,2)}, {v(a+b+r,2)}, {s(sM,2)}") for r in (0, 2)]
                o += [E(k, f"v_exp_f32 v{u+r}, v{u+r}") for r in range(4)]
                o += [E(k, f"v_pk_fma_f32 {v(w+r,2)}, {v(u+r,2)}, 0.5, 1.0 op_sel_hi:[1,0,0]") for r in (0, 2)]
                o += [E(k, f"v_pk_fma_f32 {v(u+r,2)}, {v(u+r,2)}, {v(w+r,2)}, 1.0 op_sel_hi:[1,1,0]") for r in (0, 2)]
                o += [E(k, f"v_rcp_f32 v{u+r}, v{u+r}") for r in range(4)]
                o += [E(k, f"v_pk_fma_f32 {v(a+b+r,2)}, {v(a+b+r,2)}, {v(u+r,2)}, {v(a+b+r,2)} neg_lo:[1,0,0] neg_hi:[1,0,0]") for r in (0, 2)]
                o += [E(k, f"v_cvt_pk_bf16_f32 v{a+(b+r)//2}, v{a+b+r}, v{a+b+r+1}") for r in (0, 2)]
            return o

        def mark(*tags, val=1):
            k.need(*tags)
            cnt_add(0, vT0, vT1, val)

        k(f"s_cmp_eq_u32 s{sLong}, 1")
        with k.if_("s_cbranch_scc0") as lg:
            mark("wa1", "rd6")
            cnt_wait(0, LV(1), vT0, vT1)
            stamp(3)
            for m in range(D):
                run([rd2(m)])
            tile(0, 56, [],
                 {OPT.get("m2", 8): lambda: mark("wa2"), 16 - D: lambda: cnt_wait(0, LV(2), vT0, vT1)})
            dstamp(1, 7)
            tile(1, 56, mish_ops(k, acc[0], tmp))
            dstamp(1, 8)
            if OPT.get("m1e", 1):
                run([mish(1)])
            lg.else_()
            mark("rd6", val=2)
            stamp(3)
            k(f"s_cmp_eq_u32 s{sG}, 3")
            with k.if_("s_cbranch_scc0"):
                k.need("gw")
                rd = lambda n: k(f"ds_read_b128 {v(W6[n%6],4)}, v{vGW} offset:{32*n}")
                for n in range(4):
                    rd(n)
                a = acc[0]
                for n in range(28):
                    k(f"{MFMA} {v(a,16)}, {v(W6[n%6],4)}, {v(X+4*n,4)}, {'0' if n == 0 else v(a,16)}")
                    if n + 4 < 28:
                        rd(n + 4)
                k(f"""
                v_mul_f32 v{a}, {f32(-LOG2E)}, v{a}
                v_exp_f32 v{a}, v{a}
                v_add_f32 v{a}, 1.0, v{a}
                v_rcp_f32 v{a}, v{a}
                v_and_b32 v{a+1}, 31, v{vL}
                v_lshlrev_b32 v{a+1}, 2, v{a+1}
                """)
        for r in wa[:2]:
            k(f"v_subrev_u32 v{r}, {L_W1A - L_W1B}, v{r}")
        cnt_wait(1, 4, vT0, vT1, 0xff, prio=2)
        stamp(5)
        for m in range(56, 56 + D):
            run([rd2(m)])
        tile(2, 112, [] if OPT.get("m1e", 1) else mish_ops(k, acc[1], tmp), {16 - D: lambda: cnt_wait(1, 0x400, vT0, vT1, 0xff00)})
        dstamp(1, 9)
        tile(3, 112, mish_ops(k, acc[2], tmp))
        dstamp(1, 10)
        mark("wrd")
        run([mish(3)])
        dstamp(1, 11)
        cnt_wait(0, LV(3), vT0, vT1)
        cnt_wait(1, 0x40000, vT0, vT1)
        k("s_setprio 0")
        dstamp(1, 12)
        dstamp(2, 7)
        k(f"s_cmp_eq_u32 s{sLong}, 1")
        with k.if_("s_cbranch_scc0") as lg:
            run([act_store(0), act_store(1)])
            lg.else_()
            k(f"s_cmp_eq_u32 s{sG}, 3")
            with k.if_("s_cbranch_scc0"):
                k(f"""
                s_lshl_b32 s3, s{sTT}, 7
                s_add_u32 s{sT0}, s3, {WS_G}
                """)
                k(f"buffer_store_dword v{acc[0]}, v{acc[0]+1}, {s(sWS,4)}, s{sT0} offen{SC}", wr=["act"])
        run([act_store(2), act_store(3)])
        dstamp(2, 8)
        k(f"s_add_u32 s10, s10, {WS_FA}")
        k("s_setprio 2")
        k("s_cmp_ge_u32 s2, 224")
        with k.if_("s_cbranch_scc0"):
            k.need("act")
            k("s_setprio 2")
            flag_last(3, "s10", vT0, vT1)
            cnt_add(5, vT0, vT1)
            if OPT.get("fg", 14) < 16:
                k("s_barrier")
            k("s_lshl_b32 s3, s2, 2")
            k(f"s_add_u32 s3, s3, s{sJ}")
            k("s_cmp_eq_u32 s3, 1023")
            with k.if_("s_cbranch_scc0"):
                k(f"v_lshlrev_b32 v{vT0}, 9, v{vL}")
                k(f"v_add_u32 v{vT0}, {WS_FQ}, v{vT0}")
                poll(vT0, 192, -1, (0, 128, 256, 384))
                flag("0")
            endpgm(2)
        vTa = 250
        RING = 192
        sAo = [8, 9, 11, 12]
        sGl, sPxW, sSel = 15, 13, [14, 18]
        k(f"""
        s_lshl_b32 s{sT0}, s{sKH}, 2
        s_add_u32 s{sT0}, s{sT0}, s{sJ}
        s_mul_i32 s{sT0}, s{sT0}, 7
        s_mul_i32 s3, s{sR2}, 224
        s_add_u32 s3, s3, s{sT0}
        s_add_u32 s3, s3, s{sCT}
        s_lshl_b32 s3, s3, 11
        s_add_u32 s3, s3, {WS_ACT}
        v_lshrrev_b32 v{vT0}, 4, v{vL}
        v_mul_u32_u24 v{vT0}, {56*2048 - 2048}, v{vT0}
        v_lshl_add_u32 v{vT0}, v{vL}, 7, v{vT0}
        v_add_u32 v{vTa}, s3, v{vT0}
        s_lshl_b32 s3, s{sKH}, 7
        s_add_u32 s3, s3, s{sR2}
        s_lshl_b32 s3, s3, 7
        s_add_u32 s3, s3, {WS_FA}
        v_lshl_add_u32 v{vT2}, v{vL}, 11, s3
        s_lshl_b32 s3, s{sR2}, 7
        s_add_u32 s3, s3, {WS_FA + 48*128}
        v_writelane_b32 v{vT2}, s3, 8
        s_lshl_b32 s{sT1}, s{sR2}, 1
        s_add_u32 s{sT1}, s{sT1}, s{sKH}
        s_lshl_b32 s{sT1}, s{sT1}, 1
        s_and_b32 s3, s{sJ}, 1
        s_add_u32 s{sT1}, s{sT1}, s3
        s_xor_b32 s3, s{sT1}, 2
        s_mul_i32 s{sPxW}, s3, 7
        s_add_u32 s{sPxW}, s{sPxW}, s{sCT}
        s_lshl_b32 s{sPxW}, s{sPxW}, 1
        s_lshr_b32 s3, s{sJ}, 1
        s_add_u32 s{sPxW}, s{sPxW}, s3
        s_lshl_b32 s{sPxW}, s{sPxW}, 12
        s_add_u32 s{sPxW}, s{sPxW}, {WS_PX}
        s_mov_b32 s{sSel[0]}, 0x07060500
        s_mov_b32 s{sSel[1]}, 0x07060501
        """)
        for q in range(4):
            k(f"""
            s_xor_b32 s3, s{sT1}, {[3, 1, 2, 0][q]}
            s_mul_i32 s3, s3, 56
            s_add_u32 s3, s3, s{sT0}
            s_lshl_b32 s3, s3, 11
            s_add_u32 s{sAo[q]}, s3, {WS_ACT}
            """)
        vO = [11, 9, 0]
        for i in range(3):
            k(f"""
            s_xor_b32 s3, s{sJ}, {i}
            s_mul_i32 s3, s3, 12288
            s_add_u32 s3, s3, {L_FRED}
            v_add_u32 v{vO[i]}, s3, v{vL16}
            """)
        wr = [[wr0, wr1], [vTa + 1, vTa + 2], [vTa + 3, vTa + 4]]
        for i in (1, 2):
            for t in range(2):
                k(f"v_add_u32 v{wr[i][t]}, {65536*i}, v{wr[0][t]}")
        W2 = X
        k("s_setprio 0")
        nfa = OPT.get("nfa", 3)
        for p in range(nfa):
            run(dma_w2([p], f"w2{p}"))
        k.need("act")
        k("s_setprio 2")
        flag_last(3, "s10", vT0, vT1)
        k("s_setprio 0")
        stamp(6)
        if OPT.get("pw", 1):
            for r in range(4):
                k(f"v_not_b32 v{acc[0]+r}, v{vTag}")
            k(f"v_lshrrev_b32 v{acc[0]+1}, 8, v{acc[0]+1}")
            for c in range(4):
                run([thr()])
                k(f"buffer_store_dwordx4 {v(acc[0],4)}, v{vL16}, {s(sWS,4)}, s{sPxW} offen offset:{1024*c}{SC}", wr=["pw"])

        def rdw2(st):
            row = W2ROW[st]
            for t in range(2):
                for e in range(2):
                    k(f"ds_read_b64_tr_b16 {v(W2+8*st+4*t+2*e,2)}, v{wr[row // 8][t]} offset:{8192*(row % 8)+8*e*128}",
                      wr=["r0" if st < 2 else "r1"], rd=[f"w2{st}"])
        lag = OPT.get("lag", 3)
        done = 0
        for p in range(nfa, 21):
            if p < 14:
                run(dma_w2([p], f"w2{p}"))
            else:
                if p == 14:
                    dstamp(0, 7)
                    dstamp(2, 9)
                if p == 19:
                    k.need("r0")
                run(dma_rows(sWO, [((p - 12) % 7,) * 2], 64 * 896, "wo"))
            while done <= min(p - lag, 13):
                rdw2(done)
                done += 1
        assert done == 14
        k("s_setprio 2")
        dstamp(2, 12)
        vOne, vHun = 1, vTa + 1
        k(f"v_mov_b32 v{vT0}, {L_CNT}")
        k(f"v_mov_b32 v{vOne}, 1")

        def mark2(*tags, word=0, val=1):
            if val != 1:
                k(f"v_mov_b32 v{vHun}, {val}")
            k.need(*tags)
            k("s_mov_b64 exec, 1")
            k(f"ds_add_u32 v{vT0}, v{vOne if val == 1 else vHun} offset:{4*word}")
            k("s_mov_b64 exec, -1")

        k("s_mov_b64 exec, 0x1ff")
        k(f"buffer_load_dword v{vFd}, v{vT2}, {s(sWS,4)}, 0 offen{SC}")
        mark2("r0", "r1", "wo", word=5)
        k(f"v_cmp_ne_u32 vcc, s{sTag}, v{vFd}")
        k("s_and_b32 s3, vcc_lo, 0x1ff")
        with k.if_("s_cbranch_scc0"):
            poll(vT2, vFd, "0x1ff")
        dstamp(0, 8)

        def slot(f):
            return (acc[0] + 4 * f if f < 4 else acc[2] + 4 * (f - 4)) if f < 8 else RING + 4 * ((f - 8) % 16)

        npre = OPT.get("npre", 24)

        def ldA(f):
            q, st = divmod(f, 14)
            if st % 4 == 0:
                k(f"s_add_u32 s{sA}, s{sAo[q]}, {st*1024}")
            if f < npre:
                run([thr()])
            k(f"buffer_load_dwordx4 {v(slot(f),4)}, v{vL16}, {s(sWS,4)}, s{sA} offen offset:{(st%4)*1024}{['', SC][OPT.get('asc', 1)]}", wr=[f"a{f}"])

        k("s_setprio 0")
        if OPT.get("ta", 0):
            k(f"buffer_load_dword v{vFd}, v{vTa}, {s(sWS,4)}, 0 offen{SC}")
        for f in range(npre):
            ldA(f)
        k(f"v_mov_b32 v{vT2}, 0x10000")

        def peek(word=0):
            k(f"ds_read_b32 v{vT1}, v{vT0} offset:{4*word}")

        def check(lv, word=0, mask=None):
            k(f"v_readfirstlane_b32 s3, v{vT1}")
            if mask:
                k(f"s_and_b32 s3, s3, {mask}")
            k(f"s_cmp_lt_u32 s3, {lv}")
            with k.if_("s_cbranch_scc0"):
                cnt_wait(word, lv, vT0, vT1, mask)

        send = lambda i, to, sl: [E(k, f"ds_write_b128 v{vO[to]}, {v(acc[i]+4*c,4)} offset:{4096*sl+1024*c}", wr=["fw"]) for c in range(4)]
        recv = lambda i, sl: [E(k, f"ds_read_b128 {v(acc[i]+4*c,4)}, v{vO[0]} offset:{4096*sl+1024*c}", wr=["fr"]) for c in range(4)]
        dstamp(0, 9)
        if OPT.get("fg", 14) < 16:
            k("s_barrier")
        k(f"s_setprio {OPT.get('fprio', 2)}")
        dstamp(3, 5)
        ev = {}
        at = lambda m, fn: ev.setdefault(m, []).append(fn)

        def seq_at(m, fns, step=1, per=1):
            for i, fn in enumerate(fns):
                at(m + (i // per) * step, fn)
            return m + ((len(fns) - 1) // per) * step

        def sync(m, lv, d=OPT.get("sd", 3)):
            at(m, lambda: mark2("fw"))
            at(m + d - 2, peek)
            at(m + d, lambda: check(lv))
            return m + d
        fe, fe2 = OPT.get("fe", 6), OPT.get("fe2", 6)
        if OPT.get("fg", 14) >= 16:
            at(24, lambda: peek(5))
            at(27, lambda: check(4, 5, 0xff))
        sw, sw2, sw3 = OPT.get("sw", 2), OPT.get("sw2", 2), OPT.get("sw3", 2)
        m = seq_at(28, send(1, 1, 0) + send(3, 1, 1), sw)
        m = sync(m + 2, LV(4), OPT.get("sd1", 4))
        m = seq_at(m, recv(1, 0) + recv(3, 1), per=2)
        at(m + 3, lambda: mark2("fr"))
        assert m + 3 <= 55
        m = seq_at(56, send(0, 1, 2), sw2)
        at(m - 1, peek)
        at(m + 1, lambda: check(LV(5)))
        m = seq_at(m + sw2, send(2, 1, 0), sw2)
        m = sync(m + 2, LV(6), OPT.get("sd2", 3))
        m = seq_at(m, recv(2, 0) + recv(0, 2), per=2)
        assert m <= 85 - fe2
        m = seq_at(85 - fe2, send(3, 2, 1), sw3)
        m = sync(m + 2, LV(7))
        m = seq_at(m, recv(3, 1), per=2) + 2
        assert m >= 85
        for c in range(4):
            at(m + c, lambda c=c: run([padd(acc[1] + 4 * c, acc[1] + 4 * c, acc[3] + 4 * c, 4, pk=OPT.get("fpk", 0))]))
            at(m + c, lambda c=c: [k(f"v_perm_b32 v{acc[1]+4*c+i}, v{acc[1]+4*c+i}, v{vTag}, s{sSel[i]}") for i in range(2)])
            at(m + c, E(k, f"buffer_store_dwordx4 {v(acc[1]+4*c,4)}, v{vL16}, {s(sWS,4)}, s{sPxW} offen offset:{1024*c}{SC}", wr=["px"]))
        px0 = m
        seq_at(113 - fe, send(2, 2, 2), OPT.get("sw4", 1))

        def omark():
            k("s_mov_b64 exec, 1")
            k(f"ds_add_u32 v{vT0}, v{vT2} offset:20")
            k("s_mov_b64 exec, -1")
        at(OPT.get("om", 82), omark)
        il = lambda o, f0, sts, fr=True: [(ai, st, ai >> 1, f0 + st, fr and ai == o[-1]) for st in sts for ai in o]
        seq = il((1, 3), 0, range(14)) + il((0, 2), 14, range(14))
        seq += il((1, 3), 28, range(14 - fe2)) + il((3,), 28, range(14 - fe2, 14), False) + il((1,), 28, range(14 - fe2, 14))
        seq += il((2, 0), 42, range(14 - fe)) + il((2,), 42, range(14 - fe, 14), False) + il((0,), 42, range(14 - fe, 14))
        assert len(seq) == 112
        la, lr = OPT.get("la", 16), OPT.get("lr", 0)
        nxt_ = npre
        for m, (ai, st, t, f, free) in enumerate(seq):
            a = acc[ai]
            k(f"{MFMA} {v(a,16)}, {v(W2+8*st+4*t,4)}, {v(slot(f),4)}, {'0' if st == 0 and m < 56 else v(a,16)}")
            if m + 1 < 112:
                k.need(f"a{seq[m+1][3]}")
            if free:
                g_ = f
            if m and nxt_ < 56 and nxt_ <= g_ + (la if g_ < lr else 16):
                assert m < px0
                ldA(nxt_)
                nxt_ += 1
            for fn in ev.get(m, []):
                fn()
            if m % 16 == 15:
                dstamp(3, 6 + m // 16)
            if m == 55:
                dstamp(0, 10)
        assert nxt_ == 56 and max(ev) < 112
        dstamp(0, 11)
        run([send(0, 0, 0)])
        mark2("fw")
        dstamp(0, 12)
        k("s_barrier")
        endpgm(1)
    return k


def main():
    for a in sys.argv[2:]:
        kk, vv = a.split("=")
        try:
            vv = int(vv)
        except ValueError:
            vv = " " + vv.replace("+", " ")
        OPT[kk] = vv
    out = sys.argv[1]
    open(out, "w").write(build([(NAME + "_kernel", gen, 256, 512, 163840)]))


if __name__ == "__main__":
    main()
```

```python
import math, struct, sys, os
sys.path.insert(0, os.path.dirname(os.path.abspath(__file__)))
from asmlib import *
from gen import f32, MFMA, SMF, LOG2E, NAME, srd, spread, E, mish_ops, build

OPT = dict()
WS_FQ, WS_FA, WS_FO, WS_FP, WS_G = 0x8000, 0x10000, 0x20000, 0x40000, 0x60000
WS_QKV, WS_ACT, WS_OF, WS_PX, WS_DBG, WS_SIZE = 0x100000, 0x700000, 0xE00000, 0x1000000, 0x1400000, 0x1500000
SLOT = 32768
SLOTS = [0, 32768, 65536]
L_W1B = 32768
L_W1A, L_FRED, L_ORED, L_CNT, L_GW = 98304, 57344, 106496, 155648, 159744
SST = 74
SC = " sc1"
SPIN = 1 << 16


def gen(code_size):
    k = Prog("f5")
    sX, sQ, sW, sWS, sWA, sW2, sWO = 24, 28, 32, 36, 40, 44, 48
    sWv, sRB, sG, sTT, sFS, sLong, sO0, sT0, sT1, sL2, sL1, sC, sSo, sTag, sCnt, sA, sM, _, sB, sD, sEe, sF = range(52, 74)
    vL, vL16, vT0, vT1, vT2 = 1, 2, 3, 4, 5
    vX0, vX1, vQ0, vQ1, vW = 240, 241, 242, 243, 244
    xa = [245, 246, 247, 248]
    wa = [249, 250, 251]
    vPad, vE, vPF = 252, 253, 254
    X = 16
    vTag = 12

    st_off = [0]

    def bstamp():
        if OPT.get("blk"):
            st_off[0] = 1
            k("s_max_i32 s3, s9, 0")
            k("s_min_i32 m0, s3, 26")
            k("s_add_u32 s9, s9, 2")
            k(f"s_movreld_b32 s{SST}, s16")
            k(f"{'s_memtime' if OPT['stamp'] == 2 else 's_memrealtime'} s[16:17]")

    def dstamp(lvl, i):
        if OPT.get("dbg", 0) == lvl:
            stamp(i)

    def stamp(i):
        if OPT.get("amp") and i not in (0, 13, OPT.get("ps0", 13), OPT.get("ps1", 13)):
            return
        if OPT.get("blk") and st_off[0]:
            return
        if OPT.get("stamp") == 2:
            k(f"s_memtime {s(SST + 2 * i, 2)}")
        elif OPT.get("stamp"):
            k(f"s_memrealtime {s(SST + 2 * i, 2)}")

    def endpgm(role=0):
        if OPT.get("amp"):
            k("s_waitcnt vmcnt(0)")
            stamp(13)
            ps = OPT.get("ps%d" % role, 13 if "ps0" not in OPT and "ps1" not in OPT else 0)
            k(f"s_sub_u32 s3, s{SST + 2 * ps}, s{SST}")
            k(f"s_mul_i32 s3, s3, {OPT['amp']}")
            k(f"s_add_u32 s{SST}, s{SST}, s3")
            with k.loop([1, 2]) as lp:
                k(f"s_memrealtime {s(SST + 2, 2)}")
                k(f"s_sub_u32 s3, s{SST + 2}, s{SST}")
                k("s_cmp_lt_i32 s3, 0")
                lp.back("s_cbranch_scc1")
            k("s_endpgm")
            return
        if OPT.get("pad"):
            k("s_waitcnt vmcnt(0)")
            stamp(13)
            ps = OPT.get("ps%d" % role, 0)
            k(f"s_add_u32 s{SST}, s{SST + 2 * ps}, {OPT['pad'] * 100}")
            if "padwg" in OPT:
                k(f"s_cmp_eq_u32 s2, {OPT['padwg']}")
                k(f"s_cselect_b32 s{SST}, s{SST}, s{SST + 2 * ps}")
            with k.loop([1, 2]) as lp:
                k(f"s_memrealtime {s(SST + 2, 2)}")
                k(f"s_sub_u32 s3, s{SST + 2}, s{SST}")
                k("s_cmp_lt_i32 s3, 0")
                lp.back("s_cbranch_scc1")
            k("s_endpgm")
            return
        if OPT.get("stamp"):
            k("s_waitcnt vmcnt(0)")
            stamp(13)
            k(f"""
            s_lshl_b32 s3, s2, 3
            s_add_u32 s3, s3, s{sWv}
            s_lshl_b32 s3, s3, 6
            s_add_u32 s3, s3, {WS_DBG}
            v_mov_b32 v1, 0
            """)
            for i in range(14):
                k(f"v_mov_b32 v2, s{SST + 2 * i}")
                k(f"buffer_store_dword v2, v1, {s(sWS, 4)}, s3 offen offset:{4 * i}")
        k("s_endpgm")

    def poll(vA, vD, mask, offs=(0,), prio=None, req=None):
        k(f"s_mov_b32 s{sCnt}, {SPIN}")
        if prio is not None:
            k("s_setprio 0")
        k(f"s_mov_b64 exec, {mask}")
        with k.loop([1, 2]) as lp:
            for i, o in enumerate(offs):
                if OPT.get("pa"):
                    k(f"v_mov_b32 v{vD+i}, 0")
                    k(f"buffer_atomic_or v{vD+i}, v{vA}, {s(sWS,4)}, 0 offen offset:{o} sc0 sc1")
                else:
                    k(f"buffer_load_dword v{vD+i}, v{vA}, {s(sWS,4)}, 0 offen offset:{o}{OPT.get('pf', SC)}")
            k(f"s_sub_u32 s{sCnt}, s{sCnt}, 1")
            k(f"v_cmp_ne_u32 vcc, s{sTag}, v{vD}")
            for i in range(1, len(offs)):
                k(f"v_cmp_ne_u32 {s(sM,2)}, s{sTag}, v{vD+i}")
                k(f"s_or_b64 vcc, vcc, {s(sM,2)}")
            k(f"""
            {"s_cmp_lg_u64 vcc, 0" if req is None else f"s_and_b32 s3, vcc_lo, {req}"}
            s_cselect_b32 s3, s{sCnt}, 0
            s_cmp_lg_u32 s3, 0
            """)
            lp.back("s_cbranch_scc1")
        if prio is not None:
            k(f"s_setprio {prio}")
        k("s_mov_b64 exec, -1")

    def flag(so):
        k("s_mov_b64 exec, 0xff")
        k(f"buffer_store_dwordx4 {v(vTag,4)}, v{vL16}, {s(sWS,4)}, {so} offen{OPT.get('ff', SC)}")
        k("s_mov_b64 exec, -1")

    def flag_last(which, so, va, vb):
        k(f"v_mov_b32 v{va}, {L_CNT}")
        k(f"v_mov_b32 v{vb}, 1")
        k("s_mov_b64 exec, 1")
        k(f"ds_add_rtn_u32 v{vb}, v{va}, v{vb} offset:{4*which}")
        k("s_mov_b64 exec, -1")
        k(f"v_readfirstlane_b32 s3, v{vb}")
        k("s_cmp_eq_u32 s3, 3")
        with k.if_("s_cbranch_scc0"):
            flag(so)

    def cnt_add(which, va, vb, val=1):
        k(f"v_mov_b32 v{va}, {L_CNT}")
        k(f"v_mov_b32 v{vb}, {val}")
        k("s_mov_b64 exec, 1")
        k(f"ds_add_u32 v{va}, v{vb} offset:{4*which}")
        k("s_mov_b64 exec, -1")

    def cnt_wait(which, target, va, vb, mask=None, prio=None):
        k(f"v_mov_b32 v{va}, {L_CNT}")
        if prio is not None:
            k("s_setprio 0")
        k(f"s_mov_b32 s{sCnt}, {SPIN * 16}")
        with k.loop([1, 2]) as lp:
            k(f"""
            ds_read_b32 v{vb}, v{va} offset:{4*which}
            s_sub_u32 s{sCnt}, s{sCnt}, 1
            v_readfirstlane_b32 s3, v{vb}
            {f"s_and_b32 s3, s3, {mask}" if mask else ""}
            s_cmp_lt_u32 s3, {target}
            s_cselect_b32 s3, s{sCnt}, 0
            s_cmp_lg_u32 s3, 0
            """)
            lp.back("s_cbranch_scc1")
        if prio is not None:
            k(f"s_setprio {prio}")

    def padd(d, a, b, n=16, pk=False):
        if pk:
            return [E(k, f"v_pk_add_f32 {v(d+r,2)}, {v(a+r,2)}, {v(b+r,2)}") for r in range(0, n, 2)]
        return [E(k, f"v_add_f32 v{d+r}, v{a+r}, v{b+r}") for r in range(n)]

    def fmap(r2, kh):
        if OPT.get("loc", 1):
            return f"""s_and_b32 s{r2}, s2, 7
            s_lshl_b32 s{r2}, s{r2}, 1
            s_bfe_u32 s3, s2, 0x10003
            s_add_u32 s{r2}, s{r2}, s3
            s_bfe_u32 s{kh}, s2, 0x10004"""
        return f"""s_bfe_u32 s{r2}, s2, 0x20001
            s_lshl_b32 s{r2}, s{r2}, 2
            s_bfe_u32 s3, s2, 0x20003
            s_add_u32 s{r2}, s{r2}, s3
            s_and_b32 s{kh}, s2, 1"""

    def tr_parts(r, p):
        k(f"""
        v_bfe_u32 v{p}, v{vL}, 4, 1
        v_and_b32 v{r}, 3, v{vL}
        v_lshl_add_u32 v{p}, v{p}, 2, v{r}
        v_bfe_u32 v{r}, v{vL}, 2, 2
        """)

    k.label("KST")
    k("s_load_dwordx16 s[4:19], s[0:1], 0")
    k("s_load_dwordx2 s[20:21], s[0:1], 80")
    k("s_load_dwordx2 s[22:23], s[0:1], 64")
    k("s_cmp_ge_u32 s2, 256")
    with k.if_("s_cbranch_scc0"):
        k("s_endpgm")
    stamp(0)
    k(f"""
    v_lshrrev_b32 v{vT0}, 6, v0
    v_and_b32 v{vL}, 63, v0
    s_getpc_b64 {s(sM, 2)}
    v_readfirstlane_b32 s{sWv}, v{vT0}
    """)
    nl = code_size // 128 + 1
    per = (nl + 31) // 32
    assert per <= 64
    k(f"s_cmp_eq_u32 s{sWv}, 7")
    with k.if_("s_cbranch_scc0"):
        k(f"""
        s_lshr_b32 s3, s2, 3
        s_mul_i32 s3, s3, {per}
        v_min_u32 v{vPF}, {per - 1}, v{vL}
        v_add_u32 v{vPF}, s3, v{vPF}
        v_lshlrev_b32 v{vPF}, 7, v{vPF}
        v_min_u32 v{vPF}, {max(code_size - 64, 0) & ~3}, v{vPF}
        global_load_dword v{vPF}, v{vPF}, {s(sM, 2)}
        """)
    k(f"""
    s_and_b32 s3, s2, 4
    s_lshl_b32 s3, s3, 1
    s_bfe_u32 s{sRB}, s2, 0x30003
    s_add_u32 s{sRB}, s{sRB}, s3
    s_and_b32 s3, s2, 3
    s_lshl_b32 s3, s3, 2
    s_lshr_b32 s{sG}, s2, 6
    s_add_u32 s{sG}, s{sG}, s3
    s_add_u32 s{sC}, s{sRB}, s{sG}
    s_mul_i32 s3, s{sC}, 37
    s_lshr_b32 s3, s3, 8
    s_mul_i32 s3, s3, 7
    s_sub_u32 s{sC}, s{sC}, s3
    s_and_b32 s{sA}, s{sWv}, 3
    s_lshl_b32 s{sTT}, s{sRB}, 2
    s_add_u32 s{sTT}, s{sTT}, s{sA}
    s_lshl_b32 s{sL2}, s{sWv}, 11
    s_mul_i32 s{sT0}, s{sG}, 168
    s_bitcmp1_b32 0x1248, s{sG}
    s_cselect_b32 s{sLong}, 0, 1
    s_cselect_b32 s3, 15, 127
    s_and_b32 s{sO0}, s{sT0}, s3
    s_sub_u32 s{sT0}, s{sT0}, s{sO0}
    v_lshrrev_b32 v{vT0}, 3, v{vL}
    s_lshl_b32 s3, s{sWv}, 4
    v_add_u32 v{vT1}, s3, v{vT0}
    v_mul_u32_u24 v{vX0}, 896, v{vT1}
    v_lshrrev_b32 v{vT1}, 4, v{vL}
    v_and_b32 v{vT2}, 7, v{vL}
    v_xor_b32 v{vX1}, v{vT2}, v{vT1}
    v_lshl_add_u32 v{vQ0}, v{vX1}, 4, v{vX0}
    v_xor_b32 v{vX1}, 4, v{vX1}
    v_lshl_add_u32 v{vX1}, v{vX1}, 4, v{vX0}
    v_add_u32 v{vX1}, {8*896-1024}, v{vX1}
    v_mov_b32 v{vX0}, v{vQ0}
    s_lshl_b32 s3, s{sWv}, 3
    v_add_u32 v{vT0}, s3, v{vT1}
    v_mul_u32_u24 v{vQ0}, 2688, v{vT0}
    v_lshlrev_b32 v{vT0}, 2, v{vT1}
    v_and_b32 v{vT2}, 15, v{vL}
    v_xor_b32 v{vT0}, v{vT0}, v{vT2}
    v_lshl_add_u32 v{vQ0}, v{vT0}, 4, v{vQ0}
    v_add_u32 v{vQ1}, {4*2688-1024}, v{vQ0}
    v_mov_b32 v{vE}, 0
    s_mul_i32 s{sB}, s{sRB}, {128*896}
    s_sub_u32 s{sD}, {448*2688}, s{sT0}
    """)
    srd(k, sX, 4, 5, f"s{sB}", 128 * 896)
    srd(k, sQ, 6, 7, f"s{sT0}", f"s{sD}")

    def nxt():
        return [E(k, f"s_add_u32 s{sC}, s{sC}, 1"), E(k, f"s_cmp_eq_u32 s{sC}, 7"), E(k, f"s_cselect_b32 s{sC}, 0, s{sC}")]

    def dma_chunk(c, halves=(0,)):
        so = SLOTS[c % 3]
        t = dict(wr=[f"ch{c}"])
        out = []
        for hf in halves:
            out += [
                [E(k, f"s_add_u32 m0, s{sL2}, {so+8192*hf}"),
                 E(k, f"s_lshl_b32 s{sSo}, s{sC}, 7" if hf == 0 else f"s_add_u32 s{sSo}, s{sSo}, {64*896}"),
                 E(k, f"buffer_load_dwordx4 v{vX0}, {s(sX,4)}, s{sSo} offen lds", **t)],
                [E(k, f"buffer_load_dwordx4 v{vX1}, {s(sX,4)}, s{sSo} offen offset:1024 lds", **t)]]
        for hf in halves:
            out += [
                [E(k, f"s_add_u32 m0, s{sL2}, {so+16384+8192*hf}"),
                 E(k, f"s_mul_i32 s{sSo}, s{sC}, {64*2688}" if hf == 0 else f"s_add_u32 s{sSo}, s{sSo}, {32*2688}"),
                 E(k, f"buffer_load_dwordx4 v{vQ0}, {s(sQ,4)}, s{sSo} offen lds", **t)],
                [E(k, f"buffer_load_dwordx4 v{vQ1}, {s(sQ,4)}, s{sSo} offen offset:1024 lds", **t)]]
        out[-1] += nxt()
        return out

    def run(groups):
        for g in groups:
            for f in g:
                f()

    stamp(1)
    run(dma_chunk(0))
    k(f"global_load_dword v{vE}, v{vE}, s[20:21]{SC}")
    if OPT.get("t1", 1):
        k(f"s_cmp_eq_u32 s{sWv}, 5")
        with k.if_("s_cbranch_scc0"):
            k(f"""
            s_bfe_u32 s{sT0}, s2, 0x10002
            s_lshl_b32 s{sT0}, s{sT0}, 5
            s_lshr_b32 s3, s2, 3
            s_add_u32 s{sT0}, s{sT0}, s3
            s_mul_i32 s{sT0}, s{sT0}, {7*3584}
            s_and_b32 s3, s2, 3
            s_mul_i32 s3, s3, 896
            s_add_u32 s{sT0}, s{sT0}, s3
            v_min_u32 v{vT0}, 48, v{vL}
            v_mul_u32_u24 v{vT1}, 37, v{vT0}
            v_lshrrev_b32 v{vT1}, 8, v{vT1}
            v_mul_u32_u24 v{vT1}, {3584-896}, v{vT1}
            v_lshl_add_u32 v{vT0}, v{vT0}, 7, v{vT1}
            v_add_u32 v{vT0}, s{sT0}, v{vT0}
            global_load_dword v{vPF}, v{vT0}, s[12:13]
            """)
    k("s_barrier")
    run(dma_chunk(1))
    srd(k, sWS, 20, 21, 0, WS_SIZE)
    k(f"""
    v_lshlrev_b32 v{vL16}, 4, v{vL}
    v_mov_b32 v{vT0}, {L_CNT}
    v_mov_b32 v{vT1}, 0
    v_mov_b32 v{vT2}, 0
    s_lshl_b32 s{sF}, s{sG}, 4
    s_add_u32 s{sF}, s{sF}, s{sRB}
    s_lshl_b32 s10, s{sF}, 7
    """)
    k(f"ds_write_b64 v{vT0}, {v(vT1,2)}", wr=["ch0"])
    k(f"ds_write_b64 v{vT0}, {v(vT1,2)} offset:8", wr=["ch0"])
    k(f"ds_write_b64 v{vT0}, {v(vT1,2)} offset:16", wr=["ch0"])
    k(f"""
    v_and_b32 v{vT0}, 31, v{vL}
    s_lshl_b32 s3, s{sA}, 5
    v_add_u32 v{vT1}, s3, v{vT0}
    v_lshlrev_b32 v{vT1}, 7, v{vT1}
    v_bfe_u32 v{vT0}, v{vL}, 1, 3
    v_lshrrev_b32 v{vT2}, 5, v{vL}
    v_xor_b32 v{vT0}, v{vT0}, v{vT2}
    v_lshl_add_u32 v{xa[0]}, v{vT0}, 4, v{vT1}
    v_xor_b32 v{xa[1]}, 32, v{xa[0]}
    v_xor_b32 v{xa[2]}, 64, v{xa[0]}
    v_xor_b32 v{xa[3]}, 96, v{xa[0]}
    """)
    k(f"""
    s_bfm_b32 s3, s{sG}, 0
    s_and_b32 s3, s3, 0x1248
    s_bcnt1_i32_b32 s3, s3
    s_lshl_b32 s{sFS}, s{sG}, 1
    s_sub_u32 s{sFS}, s{sFS}, s3
    s_lshl_b32 s{sFS}, s{sFS}, 1
    s_lshl_b32 s{sL2}, s{sA}, 11
    v_bfe_u32 v{vT1}, v{vL}, 4, 1
    v_lshlrev_b32 v{vT1}, 2, v{vT1}
    v_and_b32 v{vT0}, 7, v{vL}
    v_xor_b32 v{vT1}, v{vT1}, v{vT0}
    v_lshrrev_b32 v{vT0}, 3, v{vL}
    s_lshl_b32 s3, s{sA}, 4
    v_add_u32 v{vT0}, s3, v{vT0}
    v_mul_u32_u24 v{vW}, 3584, v{vT0}
    v_lshl_add_u32 v{vW}, v{vT1}, 4, v{vW}
    """)
    tr_parts(vT0, vT1)
    k(f"v_lshl_add_u32 v{vT2}, v{vT2}, 3, v{vT0}")

    def dma_w1(srdn, base, js, tag):
        out = []
        for j in js:
            out += [[E(k, f"s_add_u32 m0, s{sL2}, {base+8192*j}"), E(k, f"s_mul_i32 s{sSo}, s{sC}, {64*3584}"),
                     E(k, f"buffer_load_dwordx4 v{vW}, {s(srdn,4)}, s{sSo} offen lds", wr=[tag])],
                    [E(k, f"s_add_u32 s{sSo}, s{sSo}, {8*3584-1024}"),
                     E(k, f"buffer_load_dwordx4 v{vW}, {s(srdn,4)}, s{sSo} offen offset:1024 lds", wr=[tag])] + nxt()]
        return out

    def make_tag():
        k(f"v_readfirstlane_b32 s{sTag}, v{vE}")
        k(f"s_mul_i32 s{sTag}, s{sTag}, 0x9E3779B1")
        k(f"s_add_u32 s{sTag}, s{sTag}, 0x7F4A7C15")
        for i in range(4):
            k(f"v_mov_b32 v{vTag+i}, s{sTag}")

    def rebase(st8, c, regs):
        out = []
        if SLOTS[c % 3] - st8["base"] not in (0, SLOT):
            nb = SLOT if SLOTS[c % 3] == 2 * SLOT else 0
            d = "v_add_u32" if nb > st8["base"] else "v_subrev_u32"
            out = [E(k, f"{d} v{r}, {SLOT}, v{r}") for r in regs]
            st8["base"] = nb
        return out

    LV = lambda n: 0x400 + 4 * n

    k(f"s_cmp_lt_u32 s{sWv}, 4")
    with k.if_("s_cbranch_scc0") as role:
        acc = [112, 128, 144]
        Xr = [16 + 4 * i for i in range(4)]
        Wf = [[32 + 16 * t + 4 * i for i in range(4)] for t in range(3)]
        sSc, sSt, sR, sOff, sQo = [4, 6, 14], 11, [12, 13, 18], 19, [sRB, sTT, sFS, sO0]
        sH, sQB, sIt, sOFs, sFO, sOFl, sGl, sHH = range(44, 52)
        sTo, sCT, sPx, sPxW, sTagH, sSel, sRot = sB, sD, sF, 4, 5, [6, 7, 15], 14
        vTc, vTd = 0, 255
        sK, sV, sOUT = sX, sQ, sW
        vLp, vIdx, vIn, vFd, vCn, vCv = 6, 7, 8, 9, 10, 11
        vOut, vPq = [240, 241, 242], 243
        wA, wB, wC, wD, vPo, vG, vSt, vPi, vBi = range(245, 254)
        Q = [16 + 8 * j for j in range(4)]
        KB = [48 + 8 * j for j in range(4)]
        VB = [80 + 8 * j for j in range(4)]
        S = [112 + 16 * j for j in range(4)]
        O = [176 + 16 * j for j in range(4)]
        k("s_setprio 3")
        k(f"""
        s_lshl_b32 s{sT1}, s{sFS}, 6
        s_lshl_b32 s3, s{sLong}, 7
        s_add_u32 s{sT1}, s{sT1}, s3
        s_sub_u32 s{sEe}, {448*3584}, s{sT1}
        s_add_u32 s{sC}, s{sC}, 5
        s_cmp_ge_u32 s{sC}, 7
        s_cselect_b32 s3, 7, 0
        s_sub_u32 s{sC}, s{sC}, s3
        """)
        srd(k, sWA, 12, 13, f"s{sT1}", f"s{sEe}")
        t2 = OPT.get("t2", 1)
        if t2 == 1:
            k(f"""
            s_lshr_b32 s3, s2, 1
            s_lshl_b32 s3, s3, 2
            s_add_u32 s{sT0}, s3, s{sWv}
            s_mul_i32 s{sT0}, s{sT0}, 49
            s_lshr_b32 s{sT0}, s{sT0}, 2
            s_and_b32 s3, s2, 1
            s_mul_i32 s3, s3, 6272
            s_add_u32 s{sT0}, s{sT0}, s3
            s_lshl_b32 s3, s2, 2
            s_add_u32 s{sT1}, s3, s{sWv}
            s_mul_i32 s{sT1}, s{sT1}, 49
            s_lshr_b32 s{sT1}, s{sT1}, 4
            """)
            n2, no = 13, 4
        else:
            k(f"""
            s_lshr_b32 s3, s2, 3
            s_lshl_b32 s3, s3, 2
            s_add_u32 s3, s3, s{sWv}
            s_mul_i32 s{sT1}, s3, 49
            s_and_b32 s3, s2, 1
            s_mul_i32 s3, s3, 6272
            s_add_u32 s{sT0}, s{sT1}, s3
            s_lshr_b32 s{sT1}, s{sT1}, 1
            """)
            n2, no = 49, 25
        k(f"""
        v_min_u32 v{vTc}, {n2-1}, v{vL}
        v_add_u32 v{vTc}, s{sT0}, v{vTc}
        v_lshlrev_b32 v{vTc}, 7, v{vTc}
        v_min_u32 v{vTd}, {no-1}, v{vL}
        v_add_u32 v{vTd}, s{sT1}, v{vTd}
        v_lshlrev_b32 v{vTd}, 7, v{vTd}
        """)
        k(f"""
        v_min_u32 v{wa[0]}, 6, v{vT1}
        v_lshlrev_b32 v{wa[0]}, 3, v{wa[0]}
        v_add_u32 v{wa[0]}, s{sO0}, v{wa[0]}
        v_add_u32 v{wa[1]}, 56, v{wa[0]}
        v_add_u32 v{wa[2]}, 112, v{wa[0]}
        v_lshlrev_b32 v{vT0}, 6, v{vT0}
        v_lshlrev_b32 v{vT2}, 8, v{vT2}
        v_add_u32 v{vT2}, 16384, v{vT2}
        v_xor_b32 v{wa[0]}, v{wa[0]}, v{vT0}
        v_xor_b32 v{wa[1]}, v{wa[1]}, v{vT0}
        v_xor_b32 v{wa[2]}, v{wa[2]}, v{vT0}
        v_add_u32 v{wa[0]}, v{wa[0]}, v{vT2}
        v_add_u32 v{wa[1]}, v{wa[1]}, v{vT2}
        v_add_u32 v{wa[2]}, v{wa[2]}, v{vT2}
        v_and_b32 v{vT0}, 31, v{vL}
        v_mov_b32 v{vT1}, 0x3f803f80
        v_cmp_eq_u32 vcc, 28, v{vT0}
        v_cndmask_b32 v{vPad}, 0, v{vT1}, vcc
        s_mul_i32 s{sT0}, s{sG}, 3
        """)
        for t in range(3):
            k(f"s_cmp_lt_u32 s{sT0}, {16 - t}")
            k(f"s_cselect_b32 s{sSc[t]}, {f32(28 ** -0.5 * LOG2E)}, 1.0")
            k(f"s_mov_b32 s{sSc[t]+1}, s{sSc[t]}")
        k(f"""
        s_lshl_b32 s{sT0}, s{sT0}, 6
        s_add_u32 s{sT0}, s{sT0}, s{sTT}
        s_lshl_b32 s{sSt}, s{sT0}, 11
        s_add_u32 s{sSt}, s{sSt}, {WS_QKV}
        s_add_u32 s10, s10, {WS_FQ}
        s_and_b32 s{sH}, s2, 7
        s_lshl_b32 s{sH}, s{sH}, 1
        s_bfe_u32 s3, s2, 0x10003
        s_add_u32 s{sH}, s{sH}, s3
        s_lshr_b32 s{sQB}, s2, 4
        v_and_b32 v{vT0}, 0x33, v{vL}
        v_bfe_u32 v{vT1}, v{vL}, 2, 1
        v_bfe_u32 v{vT2}, v{vL}, 3, 1
        v_lshl_or_b32 v{vT0}, v{vT1}, 3, v{vT0}
        v_lshl_or_b32 v{vT0}, v{vT2}, 2, v{vT0}
        v_lshlrev_b32 v{vLp}, 4, v{vT0}
        s_lshl_b32 s{sT0}, s{sH}, 17
        s_add_u32 s{sT0}, s{sT0}, {WS_QKV}
        s_lshl_b32 s{sT1}, s{sWv}, 15
        s_add_u32 s{sT1}, s{sT1}, s{sT0}
        s_add_u32 s3, s{sT1}, {16*64*2048}
        """)
        srd(k, sK, 20, 21, "s3", 32768)
        k(f"s_add_u32 s3, s{sT1}, {32*64*2048}")
        srd(k, sV, 20, 21, "s3", 32768)
        k(f"""
        v_lshrrev_b32 v{vT0}, 4, v{vL}
        v_add_u32 v{vT0}, 1, v{vT0}
        v_cmp_gt_u32 vcc, 32, v{vL}
        v_cndmask_b32 v{vT0}, 0, v{vT0}, vcc
        v_lshl_add_u32 v{vT0}, v{vT0}, 4, s{sH}
        v_mul_u32_u24 v{vT0}, 43, v{vT0}
        v_lshrrev_b32 v{vT0}, 7, v{vT0}
        v_and_b32 v{vT1}, 15, v{vL}
        v_mov_b32 v{vT2}, s{sQB}
        v_cndmask_b32 v{vT1}, v{vT2}, v{vT1}, vcc
        v_lshl_add_u32 v{vT0}, v{vT0}, 4, v{vT1}
        v_lshlrev_b32 v{vT0}, 7, v{vT0}
        v_add_u32 v{vPq}, {WS_FQ}, v{vT0}
        s_lshl_b32 s3, s{sQB}, 13
        s_add_u32 s{sT0}, s{sT0}, s3
        """)
        for j in range(4):
            for r in range(16):
                k(f"v_mov_b32 v{O[j]+r}, 0")
        for r in range(8, 16):
            k(f"v_mov_b32 v{S[3]+r}, 0")
        for r in range(4, 8):
            k(f"v_mov_b32 v{VB[3]+r}, 0")
        k(f"v_mov_b32 v{vIdx}, 0xdddd")
        k(f"v_mov_b32 v{vCn}, {L_CNT}")
        k(f"s_mov_b32 s{sIt}, 3")
        k(f"s_lshl_b32 s{sR[0]}, s{sQB}, 11")
        k(f"s_and_b32 s{sR[0]}, s{sR[0]}, {OPT.get('rot', 0) << 11}")
        prev = sR[0]
        for r in sR[1:] + [sOff]:
            k(f"s_add_u32 s{r}, s{prev}, 2048")
            k(f"s_and_b32 s{r}, s{r}, 0x7fff")
            prev = r
        for j in range(4):
            k(f"""
            s_add_u32 s3, s{sWv}, {1+j}
            s_and_b32 s3, s3, 3
            s_mul_i32 s{sT1}, s3, 12288
            s_add_u32 s{sT1}, s{sT1}, {L_ORED + 4096 * (j % 3)}
            v_add_u32 v{(vOut + [vIn])[j]}, s{sT1}, v{vL16}
            s_lshl_b32 s3, s3, 11
            s_add_u32 s{sQo[j]}, s3, s{sT0}
            """)
        k(f"""
        s_lshl_b32 s{sT0}, s{sQB}, 2
        s_add_u32 s{sT0}, s{sT0}, s{sWv}
        s_lshl_b32 s3, s{sT0}, 4
        s_add_u32 s3, s3, s{sH}
        s_lshl_b32 s{sOFs}, s3, 11
        s_add_u32 s{sOFs}, s{sOFs}, {WS_OF}
        s_lshr_b32 s{sHH}, s{sWv}, 1
        {fmap(sTo, 3)}
        s_lshl_b32 s{sTo}, s{sTo}, 1
        s_add_u32 s{sTo}, s{sTo}, s3
        s_lshl_b32 s{sTo}, s{sTo}, 1
        s_and_b32 s3, s{sWv}, 1
        s_add_u32 s{sTo}, s{sTo}, s3
        s_lshr_b32 s{sCT}, s2, 5
        s_lshl_b32 s3, s{sTo}, 7
        s_add_u32 s{sGl}, s3, {WS_G}
        s_lshl_b32 s{sOFl}, s{sTo}, 1
        s_add_u32 s{sOFl}, s{sOFl}, s{sHH}
        s_lshl_b32 s{sOFl}, s{sOFl}, 14
        s_add_u32 s{sOFl}, s{sOFl}, {WS_OF}
        s_mul_i32 s3, s{sTo}, {32*896}
        """)
        srd(k, sOUT, 22, 23, "s3", 32 * 896)
        if OPT.get("oq"):
            k(f"""
            s_mov_b32 s{sOFs}, s{sQo[3]}
            s_lshl_b32 s3, s{sHH}, 9
            s_add_u32 s3, s3, s{sTo}
            s_lshl_b32 s3, s3, 11
            s_add_u32 s{sOFl}, s3, {WS_QKV}
            """)

        nb0, nb1 = OPT.get("nb0", 0), OPT.get("nb1", 4)
        assert nb0 <= nb1 <= 4

        def p1_role0(swap):
            st8 = dict(base=0)

            def rdX(n):
                c, st = n >> 2, n & 3
                out = rebase(st8, c, xa + wa) if st == 0 else []
                return out + [E(k, f"ds_read_b128 {v(Xr[n%4],4)}, v{xa[st]} offset:{SLOTS[c%3]-st8['base']}", wr=[f"rd{c}"])]

            def rdW(n, t):
                c, st = n >> 2, n & 3
                return [E(k, f"ds_read_b64_tr_b16 {v(Wf[t][n%4]+2*e,2)}, v{wa[t]} offset:{SLOTS[c%3]-st8['base']+(16*st+4*e)*256}",
                          wr=[f"rd{c}"]) for e in range(2)]

            def reads(n):
                return rdX(n) + rdW(n, 0) + rdW(n, 1) + rdW(n, 2)

            def mm(n, t):
                a, b = v(Wf[t][n % 4], 4), v(Xr[n % 4], 4)
                if swap[t]:
                    a, b = b, a
                return [E(k, f"{MFMA} {v(acc[t],16)}, {a}, {b}, {'0' if n == 0 else v(acc[t],16)}")]

            def epi(t):
                a = acc[t]
                out = []
                if swap[t]:
                    if t == 0 or not swap[t - 1]:
                        out += [E(k, f"s_mov_b32 s{sM}, 0xf0000000"), E(k, f"s_mov_b32 s{sM+1}, 0xf0000000")]
                    for i in range(2):
                        R = range(4 * i, 4 * i + 4)
                        out += [E(k, f"v_cvt_pk_bf16_f32 v{a+r}, v{a+2*r}, v{a+2*r+1}") for r in R]
                        out += [E(k, f"v_cndmask_b32 v{a+r}, v{a+r}, v{vPad}, {s(sM,2)}") for r in R]
                        out += [E(k, f"buffer_store_dwordx4 {v(a+4*i,4)}, v{vL16}, {s(sWS,4)}, s{sSt} offen offset:{1024*i}{OPT.get('sq', SC)}", wr=["qkv"])]
                else:
                    if t == 0:
                        out += [E(k, f"s_mov_b32 s{sM}, 0"), E(k, f"s_mov_b32 s{sM+1}, -1")]
                    for i in range(2):
                        R = range(4 * i, 4 * i + 4)
                        if OPT.get("epk", 0) >> t & 1:
                            out += [E(k, f"v_pk_mul_f32 {v(a+2*r,2)}, {v(a+2*r,2)}, {s(sSc[t],2)}") for r in R]
                        else:
                            out += [E(k, f"v_mul_f32 v{a+r}, s{sSc[t]}, v{a+r}") for r in range(8 * i, 8 * i + 8)]
                        out += [E(k, f"v_cvt_pk_bf16_f32 v{a+r}, v{a+2*r}, v{a+2*r+1}") for r in R]
                        out += [E(k, f"v_cndmask_b32 v{a+r}, v{a+r}, 0, {s(sM,2)}") for r in R if r >= 6]
                        out += [E(k, f"buffer_store_dwordx4 {v(a+4*i,4)}, v{vL16}, {s(sWS,4)}, s{sSt} offen offset:{1024*i}{OPT.get('sq', SC)}", wr=["qkv"])]
                if t < 2:
                    out += [E(k, f"s_add_u32 s{sSt}, s{sSt}, {64*2048}")]
                return out

            k.need("ch0")
            k("s_barrier")
            stamp(2)
            run([reads(0), reads(1)])
            for n in range(24):
                ms = [mm(n, t) for t in range(3)]
                c = (n + 2) // 4
                if n >= 22:
                    run(ms)
                elif (n + 2) % 4 == 0:
                    run(ms)
                    k.need(f"rd{c-1}", f"ch{c}")
                    k("s_barrier")
                    if c == 3:
                        stamp(3)
                    run([reads(n + 2)])
                    if c == 1:
                        make_tag()
                else:
                    spread(k, ms, reads(n + 2))
            k.need("rd5")
            k("s_barrier")
            stamp(4)
            for n in range(24, 28):
                run([rdX(n), rdW(n, 0)])
            for t in (1, 2):
                for n in range(24, 28):
                    run([rdW(n, t)])
            run(dma_w1(sWA, L_W1B, range(nb0), "wb1"))
            run([mm(n, 0) for n in range(24, 28)] + [mm(24, 1), mm(25, 1)])
            spread(k, [mm(26, 1), mm(27, 1), mm(24, 2), mm(25, 2)], epi(0))
            k(f"v_mov_b32 v{vCv}, 0x100")
            spread(k, [mm(26, 2), mm(27, 2)], epi(1)[:4])
            k("s_mov_b64 exec, 1")
            k(f"ds_add_u32 v{vCn}, v{vCv}", rd=["rd6"])
            k("s_mov_b64 exec, -1")
            run([epi(1)[4:], epi(2)])
            assert st8["base"] == 0

        k(f"s_cmp_lt_u32 s{sG}, 10")
        with k.if_("s_cbranch_scc0") as v0:
            p1_role0([0, 0, 0])
            v0.else_()
            k(f"s_cmp_eq_u32 s{sG}, 10")
            with k.if_("s_cbranch_scc0") as v1:
                p1_role0([0, 0, 1])
                v1.else_()
                p1_role0([1, 1, 1])
        stamp(5)
        run(dma_w1(sWA, L_W1B, range(nb0, nb1), "wb1"))
        k.need("qkv")
        flag_last(2, "s10", vT0, vT1)
        stamp(6)
        run(dma_w1(sWA, L_W1B, range(nb1, 4), "wb1"))
        run(dma_w1(sWA, L_W1B, range(4, 7), "wb2"))

        def touch(pos):
            if t2 and OPT.get("tp", 1) == pos:
                k(f"global_load_dword v{vTc}, v{vTc}, s[16:17]")
                k(f"global_load_dword v{vTd}, v{vTd}, s[8:9]")
        touch(1)
        k.need("wb1")
        cnt_add(1, vT0, vT1)
        k("s_setprio 0")
        tr_parts(vT0, vT1)
        k(f"""
        s_mul_i32 s3, s{sHH}, {224*128 + 64}
        v_lshl_add_u32 v{wD}, v{vT1}, 3, s3
        v_lshrrev_b32 v{vT2}, 5, v{vL}
        v_lshl_add_u32 v{wA}, v{vT2}, 2, v{vT0}
        v_lshl_add_u32 v{wB}, v{vT2}, 1, v{vT0}
        v_add_u32 v{wB}, 16, v{wB}
        v_lshl_add_u32 v{wC}, v{vT2}, 2, 3
        v_cmp_gt_u32 vcc, 2, v{vT0}
        v_cndmask_b32 v{wB}, v{wC}, v{wB}, vcc
        """)
        for w in (wA, wB):
            k(f"""
            v_and_b32 v{vT1}, 2, v{w}
            v_lshlrev_b32 v{vT1}, 5, v{vT1}
            v_lshl_add_u32 v{w}, v{w}, 7, v{wD}
            v_xor_b32 v{w}, v{w}, v{vT1}
            """)
        k(f"""
        v_xor_b32 v{wC}, 64, v{wA}
        v_xor_b32 v{wD}, 64, v{wB}
        s_lshl_b32 s{sT0}, s{sCT}, 1
        s_add_u32 s{sT0}, s{sT0}, s{sHH}
        s_xor_b32 s3, s{sTo}, 2
        s_mul_i32 s{sPxW}, s3, 14
        s_add_u32 s{sPxW}, s{sPxW}, s{sT0}
        s_lshl_b32 s{sPxW}, s{sPxW}, 12
        s_add_u32 s{sPxW}, s{sPxW}, {WS_PX}
        s_lshl_b32 s{sTagH}, s{sTag}, 16
        s_mov_b32 s{sSel[0]}, 0x07060500
        s_mov_b32 s{sSel[1]}, 0x07060501
        s_mov_b32 s{sSel[2]}, 0x04000c0c
        s_mul_i32 s{sPx}, s{sTo}, 14
        s_add_u32 s{sPx}, s{sPx}, s{sT0}
        s_lshl_b32 s{sPx}, s{sPx}, 12
        s_add_u32 s{sPx}, s{sPx}, {WS_PX}
        v_and_b32 v{vT0}, 31, v{vL}
        v_lshlrev_b32 v{vG}, 2, v{vT0}
        v_mul_u32_u24 v{vSt}, 896, v{vT0}
        v_lshl_add_u32 v{vSt}, v{vT2}, 4, v{vSt}
        s_lshl_b32 s3, s{sT0}, 6
        v_add_u32 v{vSt}, s3, v{vSt}
        s_xor_b32 s3, s{sWv}, 2
        s_mul_i32 s3, s3, 12288
        s_add_u32 s3, s3, {L_ORED}
        v_add_u32 v{vPi}, s3, v{vL16}
        v_add_u32 v{vBi}, {L_FRED - L_ORED + (1 << 32)}, v{vIn}
        """)
        k("s_setprio 3")
        k.need("wb2")
        cnt_add(1, vT0, vT1, 0x100)
        dstamp(6, 3)
        k(f"s_cmp_eq_u32 s{sWv}, 0")
        with k.if_("s_cbranch_scc0") as pl:
            if not OPT.get("nopoll"):
                poll(vPq, vFd, -1)
                if OPT.get("dbg") == 6:
                    k(f"s_sub_u32 s3, {SPIN}, s{sCnt}")
                    k(f"s_mul_i32 s3, s3, 100")
                    k(f"s_add_u32 s{SST+2*2}, s{SST}, s3")
            cnt_add(4, vCn, vCv, 0x100)
            pl.else_()
            if not OPT.get("nopoll"):
                cnt_wait(4, 0x100, vCn, vCv, prio=3)
        stamp(7)

        KVS = {0: SC, 1: "", 2: " nt", 3: " sc0", 4: " sc1 nt"}[OPT.get("kv", 0)]

        def ldK(buf, so, hs=(0, 1)):
            for i in hs:
                k(f"buffer_load_dwordx4 {v(KB[buf]+4*i,4)}, v{vLp}, {s(sK,4)}, {so} offen offset:{1024*i}{KVS}")

        def ldV(buf, so, hs=(0, 1)):
            for i in hs:
                k(f"buffer_load_dwordx4 {v(VB[buf]+4*i,4)}, v{vL16}, {s(sV,4)}, {so} offen offset:{1024*i}{KVS}")

        def ldQ(j):
            for i in range(2):
                k(f"buffer_load_dwordx4 {v(Q[j]+4*i,4)}, v{vL16}, {s(sWS,4)}, s{sQo[j]} offen offset:{1024*i}{SC}")

        ldK(0, f"s{sR[0]}")
        ldQ(0)
        ldQ(1)
        ldQ(2)
        ldV(0, f"s{sR[0]}")
        ldQ(3)
        ldK(1, f"s{sR[1]}")
        ldV(1, f"s{sR[1]}")
        ldK(2, f"s{sR[2]}")
        ldV(2, f"s{sR[2]}")
        ldK(3, f"s{sOff}")
        touch(0)
        if OPT.get("tpx"):
            k(f"v_min_u32 v{vPq}, 31, v{vL}")
            k(f"v_lshlrev_b32 v{vPq}, 7, v{vPq}")
            k(f"buffer_load_dword v{vPq}, v{vPq}, {s(sWS,4)}, s{sPxW} offen")
        cnt_add(1, vT0, vT1, 0x10000)
        k(f"s_setprio {OPT.get('aprio', 1)}")

        def QK(u, half):
            j, t = u & 3, (u >> 2) & 3
            c = "0" if half == 0 else v(S[j], 16)
            k(f"{MFMA} {v(S[j],16)}, {v(KB[t]+4*half,4)}, {v(Q[j]+4*half,4)}, {c}")

        def PV(u, half):
            j, t = u & 3, (u >> 2) & 3
            k(f"{SMF} {v(O[j],16)}, {v(VB[t]+4*half,4)}, {v(S[j]+8*half,8)}, v{vIdx}")

        def EX(u, a, b):
            for r in range(a, b):
                k(f"v_exp_f32 v{S[u&3]+r}, v{S[u&3]+r}")

        def putO(j, i):
            k(f"ds_write_b128 v{vOut[j]}, {v(O[j]+4*i,4)} offset:{1024*i}", wr=["red"])

        gate = OPT.get("gate", 14)

        def unit(u, last):
            i, q = u >> 2, u & 3
            if last and u == gate:
                k("s_barrier")
                k("s_setprio 3")
            if not (last and u >= 14):
                QK(u + 2, 0)
            if q < 2 and (u < 2 or not last):
                ldV((i - 1) & 3, f"s{sOff}", (q,))
            if q >= 2 and not last:
                ldK(i, f"s{sOff}", (q - 2,))
            EX(u, 0, 4)
            if not (last and u >= 14):
                QK(u + 2, 1)
            else:
                PV(u - 1, 1)
            if q & 1 and (not last or u < 12):
                k(f"s_waitcnt vmcnt({10 if not last else 11 - u})")
            if last and u >= 14:
                for c in range(4):
                    EX(u, 4 + c, 5 + c)
                    putO(u - 14, c)
            else:
                EX(u, 4, 8)
                PV(u - 1, 1)
            if q == 1 and not last:
                k(f"s_add_u32 s{sOff}, s{sOff}, 2048")
                k(f"s_and_b32 s{sOff}, s{sOff}, 0x7fff")
            if last and u == 15:
                PV(u, 0)
                for c in range(4):
                    EX(u, 8 + 2 * c, 10 + 2 * c)
                    putO(2, c)
                PV(u, 1)
                return
            EX(u, 8, 12)
            PV(u, 0)
            if u == 15:
                k(f"s_sub_u32 s{sIt}, s{sIt}, 1")
                k(f"s_cmp_lg_u32 s{sIt}, 0")
            EX(u, 12, 16)

        assert gate <= 14
        for u in range(2):
            QK(u, 0)
            QK(u, 1)
        stamp(8)
        if OPT.get("blk"):
            k(f"s_mov_b32 s9, {-2 - 2 * OPT.get('b0', 0)}")
            k("s_mov_b32 s16, 0")
        bstamp()
        with k.loop(3, align=6) as lp:
            for u in range(16):
                if OPT.get("blk") and u % OPT["blk"] == OPT["blk"] - 1:
                    bstamp()
                unit(u, False)
                if OPT.get("it") and u == 3:
                    k(f"s_mov_b32 s{SST+8}, s{SST+10}")
                    k(f"s_mov_b32 s{SST+10}, s{SST+12}")
                    stamp(6)
            if OPT.get("it"):
                k(f"s_mov_b32 s{SST+2}, s{SST+4}")
                k(f"s_mov_b32 s{SST+4}, s{SST+6}")
                stamp(3)
            lp.back("s_cbranch_scc1")
        for u in range(16):
            if OPT.get("blk") and u % OPT["blk"] == OPT["blk"] - 1:
                bstamp()
            unit(u, True)
        bstamp()
        bstamp()
        stamp(9)
        k.need("red")
        cnt_add(4, vCn, vCv)
        cnt_wait(4, 0x104, vCn, vCv)
        for j in range(3):
            for i in range(4):
                k(f"ds_read_b128 {v(S[j]+4*i,4)}, v{vIn} offset:{4096*j+1024*i}")
        A = O[3]
        opk = OPT.get("opk", 0)
        for j in range(3):
            run([padd(A, A, S[j], pk=opk)])

        def get_l():
            k(f"""
            v_mov_b32 v{vT0}, v{A+12}
            v_mov_b32 v{vT1}, v{A+12}
            v_permlane32_swap_b32 v{vT0}, v{vT1}
            """)
        get_l()
        k(f"v_mul_f32 v{vCn}, v{A}, v{A+1}")
        k(f"v_mul_f32 v{vCv}, v{A+2}, v{A+3}")
        for r in range(4, 16, 2):
            k(f"v_fma_f32 v{vCn + (r >> 1 & 1)}, v{A+r}, v{A+r+1}, v{vCn + (r >> 1 & 1)}")
        k(f"""
        v_fma_f32 v{vT2}, v{vCn}, 0, v{vT1}
        v_fma_f32 v{vT2}, v{vCv}, 0, v{vT2}
        v_cmp_nlt_f32 vcc, {f32(2.0**-30)}, v{vT2}
        s_mov_b64 {s(sM,2)}, vcc
        v_cmp_ngt_f32 vcc, {f32(2.0**40)}, v{vT2}
        s_or_b64 {s(sM,2)}, {s(sM,2)}, vcc
        """)
        if OPT.get("force_fb"):
            k(f"s_mov_b64 {s(sM,2)}, -1")
        k(f"s_cmp_lg_u64 {s(sM,2)}, 0")
        with k.if_("s_cbranch_scc0"):
            k(f"s_lshl_b32 s{sT1}, s{sH}, 17")
            k(f"s_add_u32 s3, s{sT1}, {WS_QKV+16*64*2048}")
            srd(k, sK, 20, 21, "s3", 131072)
            k(f"s_add_u32 s3, s{sT1}, {WS_QKV+32*64*2048}")
            srd(k, sV, 20, 21, "s3", 131072)
            k(f"v_mov_b32 v{vT0}, 0xff800000")
            k(f"s_mov_b32 s{sOff}, 0")
            with k.loop(3) as l1:
                ldK(0, f"s{sOff}")
                QK(3, 0)
                QK(3, 1)
                for r in range(0, 16, 2):
                    k(f"v_max3_f32 v{vT0}, v{S[3]+r}, v{S[3]+r+1}, v{vT0}")
                k(f"s_add_u32 s{sOff}, s{sOff}, 2048")
                k(f"s_cmp_lt_u32 s{sOff}, 131072")
                l1.back("s_cbranch_scc1")
            k(f"""
            v_mov_b32 v{vT1}, v{vT0}
            v_permlane32_swap_b32 v{vT0}, v{vT1}
            v_max_f32 v{vT0}, v{vT0}, v{vT1}
            """)
            for r in range(16):
                k(f"v_mul_f32 v{S[0]+r}, -1.0, v{vT0}")
                k(f"v_mov_b32 v{A+r}, 0")
            k(f"s_mov_b32 s{sOff}, 0")
            with k.loop(3) as l2:
                ldK(0, f"s{sOff}")
                ldV(0, f"s{sOff}")
                k(f"{MFMA} {v(S[3],16)}, {v(KB[0],4)}, {v(Q[3],4)}, {v(S[0],16)}")
                QK(3, 1)
                EX(3, 0, 16)
                PV(3, 0)
                PV(3, 1)
                k(f"s_add_u32 s{sOff}, s{sOff}, 2048")
                k(f"s_cmp_lt_u32 s{sOff}, 131072")
                k("s_nop 4")
                l2.back("s_cbranch_scc1")
            get_l()
        k(f"v_rcp_f32 v{vT1}, v{vT1}")
        for i in range(2):
            for r in range(8 * i, 8 * i + 8):
                k(f"v_mul_f32 v{A+r}, v{A+r}, v{vT1}")
            if i == 0:
                k(f"v_cvt_pk_bf16_f32 v{vT0}, v{A+6}, v{A+7}")
                k(f"v_cvt_pk_bf16_f32 v{vT2}, v{A+7}, v{A+6}")
                for r in range(3):
                    k(f"v_cvt_pk_bf16_f32 v{A+r}, v{A+2*r}, v{A+2*r+1}")
                k(f"v_alignbit_b32 v{A+3}, v{vTag}, v{vT2}, 16")
            else:
                for r in (6, 7, 4, 5):
                    k(f"v_cvt_pk_bf16_f32 v{A+r}, v{A+2*r}, v{A+2*r+1}")
                k(f"v_permlane32_swap_b32 v{A+6}, v{A+7}")
                k(f"v_alignbit_b32 v{A+7}, v{vTag}, v{vT0}, 16")
            k(f"buffer_store_dwordx4 {v(A+4*i,4)}, v{vL16}, {s(sWS,4)}, s{sOFs} offen offset:{1024*i}{OPT.get('so', SC)}", wr=["o"])
        stamp(10)
        k("s_cmp_ge_u32 s2, 224")
        with k.if_("s_cbranch_scc0"):
            endpgm(2)
        WO = 16
        OFr = 144
        fac = [208, 224]

        wth = OPT.get("wth", 2)

        def rdWO(ns, th=None):
            for n in ns:
                hh, st = n >> 1, n & 1
                for t in range(2):
                    if th is not None:
                        k(f"s_waitcnt lgkmcnt({th})")
                    for e in range(2):
                        x = st == 1 and e == 1
                        a = [[wA, wB], [wC, wD]][t][x]
                        k(f"ds_read_b64_tr_b16 {v(WO+8*n+4*t+2*e,2)}, v{a} offset:{(28*hh+(8 if x else 16*st+8*e))*128}")

        def ldO(hh):
            k(f"s_add_u32 s3, s{sOFl}, {(131072 if OPT.get('oq') else 2048)*hh}")
            for i in range(2):
                k(f"buffer_load_dwordx4 {v(OFr+8*hh+4*i,4)}, v{vL16}, {s(sWS,4)}, s3 offen offset:{1024*i}{SC}")

        PX = 240

        def ldP(sc=SC):
            for c in range(4):
                k(f"buffer_load_dwordx4 {v(PX+4*c,4)}, v{vL16}, {s(sWS,4)}, s{sPx} offen offset:{1024*c}{sc}")

        def chkO(g, ng):
            D = [OFr + 8 * ng * g + 4 * i + 3 for i in range(2 * ng)]
            out = []
            for i in range(0, 2 * ng, 2):
                out += [E(k, f"v_xor_b32 v{D[i]}, s{sTagH}, v{D[i]}"), E(k, f"v_xor_b32 v{D[i+1]}, s{sTagH}, v{D[i+1]}"),
                        E(k, f"v_or3_b32 v{vT0}, v{D[i]}, v{D[i+1]}, {'0' if i == 0 else f'v{vT0}'}")]
            return out + [E(k, f"v_cmp_lt_u32 vcc, 0xffff, v{vT0}")]

        def chkP():
            out = []
            for c in range(4):
                out += [E(k, f"v_perm_b32 v{vCn}, v{PX+4*c+1}, v{PX+4*c}, s{sSel[2]}"),
                        E(k, f"v_xor_b32 v{vCn}, s{sTagH}, v{vCn}"),
                        E(k, f"v_or_b32 v{vT0}, {'0' if c == 0 else f'v{vT0}'}, v{vCn}")]
            return out + [E(k, f"v_cmp_ne_u32 vcc, 0, v{vT0}")]

        def retry(load, chk):
            k("s_cmp_lg_u64 vcc, 0")
            with k.if_("s_cbranch_scc0"):
                with k.loop([1, 2]) as lp:
                    load()
                    run([chk])
                    k(f"""
                    s_sub_u32 s{sCnt}, s{sCnt}, 1
                    s_cmp_lg_u64 vcc, 0
                    s_cselect_b32 s3, s{sCnt}, 0
                    s_cmp_gt_i32 s3, 0
                    """)
                    lp.back("s_cbranch_scc1")

        def mmO(g, ng):
            return [[E(k, f"{MFMA} {v(fac[t],16)}, {v(WO+8*n+4*t,4)}, {v(OFr+4*n,4)}, {'0' if n == 0 else v(fac[t],16)}")]
                    for n in range(2 * ng * g, 2 * ng * (g + 1)) for t in (1, 0)]

        nw0 = OPT.get("nw0", 12)
        PT = OFr
        uG, uSt, uPi, uBi = vLp, vIdx, vFd, vTc
        k(f"buffer_load_dword v{uG}, v{vG}, {s(sWS,4)}, s{sGl} offen{SC}")
        for d, o in ((uSt, vSt), (uPi, vPi), (uBi, vBi)):
            k(f"v_mov_b32 v{d}, v{o}")
        rdWO(range(nw0), wth)
        dstamp(4, 4)
        cnt_wait(0, LV(5), vCn, vCv)
        dstamp(4, 8)
        for c in range(4):
            for i in range(2):
                k(f"ds_read_b128 {v(PT+16*i+4*c,4)}, v{uBi} offset:{4096*i+1024*c}", wr=["pr"])
        k(f"v_mov_b32 v{vCv}, 0x100")
        for c in range(4):
            run([padd(PT + 4 * c, PT + 4 * c, PT + 16 + 4 * c, 4)])
            for i in range(2):
                k(f"v_perm_b32 v{PT+4*c+i}, v{PT+4*c+i}, v{vTag}, s{sSel[i]}")
        k("s_mov_b64 exec, 1")
        k(f"ds_add_u32 v{vCn}, v{vCv}")
        k("s_mov_b64 exec, -1")
        for c in range(4):
            k(f"buffer_store_dwordx4 {v(PT+4*c,4)}, v{vL16}, {s(sWS,4)}, s{sPxW} offen offset:{1024*c}{SC[:0 if OPT.get('pxl') else 9]}", wr=["px"])
        dstamp(4, 7)
        rdWO(range(nw0, 16))
        if OPT.get("om", 80):
            cnt_wait(5, 4, vCn, vCv)
        dstamp(4, 6)
        dstamp(5, 0)
        ng = OPT.get("ng", 2)
        na = OPT.get("na", 4)
        G = 8 // ng
        for hh in range(na):
            ldO(hh)
        dstamp(4, 5)
        k(f"s_mov_b32 s{sCnt}, {SPIN}")
        todo = [(lambda hh=hh: ldO(hh)) for hh in range(na, 8)] + [lambda: ldP("" if OPT.get("pxl") == 2 else SC)]
        run([chkO(0, ng)])
        for g in range(G):
            retry(lambda: [ldO(hh) for hh in range(ng * g, ng * g + ng)], chkO(g, ng))
            dstamp(5, 1 + 2 * g)
            mm = mmO(g, ng)
            h = len(mm) // 2
            spread(k, mm[:h], todo[:ng])
            dstamp(5, 2 + 2 * g)
            todo = todo[ng:]
            if g < G - 1:
                spread(k, mm[h:], chkO(g + 1, ng))
        assert not todo
        spread(k, mm[h:], chkP())
        stamp(11)
        for i in range(4):
            k(f"ds_write_b128 v{vIn}, {v(fac[1]+4*i,4)} offset:{1024*i}", wr=["xch"])
        retry(ldP, chkP())
        pre = [E(k, f"v_sub_f32 v{vCn}, 1.0, v{uG}"), E(k, f"v_sub_f32 v{vCv}, 1.0, v{uG}"),
               E(k, f"v_mov_b32 v{vT1}, v{uG}"), E(k, f"v_mov_b32 v{vT2}, v{uG}")]
        pre += [E(k, f"v_and_b32 v{PX+r}, 0xffffff00, v{PX+r}") for r in range(16) if r & 3 < 2]
        pre += [E(k, f"v_pk_mul_f32 {v(PX+r,2)}, {v(PX+r,2)}, {v(vCn,2)}") for r in range(0, 16, 2)]
        run([pre])
        if OPT.get("dbg") == 4:
            k(f"s_sub_u32 s3, {SPIN}, s{sCnt}")
            k(f"s_mul_i32 s3, s3, 100")
            k(f"s_add_u32 s{SST+2*3}, s{SST}, s3")
        a = fac[0]
        for r in range(0, 16, 2):
            k(f"v_pk_fma_f32 {v(a+r,2)}, {v(a+r,2)}, {v(vT1,2)}, {v(PX+r,2)}")
        k.need("xch")
        k("s_barrier")
        stamp(12)
        P, B, B2 = 48, 32, 64
        for i in range(4):
            k(f"ds_read_b128 {v(P+4*i,4)}, v{uPi} offset:{1024*i}")
            k(f"ds_read_b128 {v(B+4*i,4)}, v{uBi} offset:{1024*i}")
            k(f"ds_read_b128 {v(B2+4*i,4)}, v{uBi} offset:{4096+1024*i}")
        for q in range(2):
            for r in range(8 * q, 8 * q + 8, 2):
                k(f"v_pk_fma_f32 {v(a+r,2)}, {v(P+r,2)}, {v(vT1,2)}, {v(a+r,2)}")
            for r in range(8 * q, 8 * q + 8, 2):
                k(f"v_pk_add_f32 {v(B+r,2)}, {v(B+r,2)}, {v(B2+r,2)}")
            for r in range(8 * q, 8 * q + 8, 2):
                k(f"v_pk_add_f32 {v(a+r,2)}, {v(a+r,2)}, {v(B+r,2)}")
            for r in range(4):
                k(f"v_cvt_pk_bf16_f32 v{P+8*q+r}, v{a+8*q+2*r}, v{a+8*q+2*r+1}")
            k(f"v_permlane32_swap_b32 v{P+8*q}, v{P+8*q+2}")
            k(f"v_permlane32_swap_b32 v{P+8*q+1}, v{P+8*q+3}")
            k(f"buffer_store_dwordx4 {v(P+8*q,4)}, v{uSt}, {s(sOUT,4)}, 0 offen offset:{32*q}{OPT.get('ost', '')}")
        endpgm()

        role.else_()
        st_off[0] = 0
        acc = [128, 144, 160, 176]
        NS = 7
        W6 = [192 + 4 * i for i in range(NS)]
        tmp = 220
        BA, BZ = 224, 228
        vD, wr0, wr1, vGW, vFd = 6, 7, 8, 9, 10
        sJ, sSt, sKH, sR2, sCT = sA, 4, 5, 6, 7
        k("s_setprio 2")
        k(f"""
        s_lshl_b32 s{sT1}, s{sFS}, 6
        v_lshlrev_b32 v{BA+1}, 1, v{vL}
        v_add_u32 v{BA+1}, s{sT1}, v{BA+1}
        global_load_ushort v{BA}, v{BA+1}, s[14:15]
        s_lshl_b32 s3, s{sLong}, 7
        v_add_u32 v{BA+3}, s3, v{BA+1}
        global_load_ushort v{BA+2}, v{BA+3}, s[14:15]
        s_sub_u32 s{sEe}, {448*3584}, s{sT1}
        """)
        srd(k, sW, 12, 13, f"s{sT1}", f"s{sEe}")
        k(f"""
        v_subrev_u32 v{vX0}, {64*896}, v{vX0}
        v_subrev_u32 v{vX1}, {64*896}, v{vX1}
        v_subrev_u32 v{vQ0}, {32*2688}, v{vQ0}
        v_subrev_u32 v{vQ1}, {32*2688}, v{vQ1}
        v_lshrrev_b32 v{wa[1]}, 1, v{vT0}
        v_lshlrev_b32 v{wa[1]}, 6, v{wa[1]}
        v_lshl_add_u32 v{wa[1]}, v{vT1}, 3, v{wa[1]}
        v_lshl_add_u32 v{wa[0]}, v{vT2}, 7, v{wa[1]}
        v_add_u32 v{wa[0]}, {L_W1A}, v{wa[0]}
        v_lshrrev_b32 v{vT2}, 5, v{vL}
        v_lshl_add_u32 v{vT2}, v{vT2}, 2, v{vT0}
        v_lshl_add_u32 v{wr0}, v{vT2}, 7, v{wa[1]}
        v_xor_b32 v{wa[1]}, 64, v{wa[0]}
        v_add_u32 v{wr0}, s{sL2}, v{wr0}
        s_lshr_b32 s3, s{sJ}, 1
        s_lshl_b32 s3, s3, 6
        v_xor_b32 v{wr0}, s3, v{wr0}
        v_xor_b32 v{wr1}, 64, v{wr0}
        v_lshrrev_b32 v{vT0}, 3, v{vL}
        v_mul_u32_u24 v{vD}, 896, v{vT0}
        v_and_b32 v{vT0}, 127, v{vW}
        v_add_u32 v{vD}, v{vD}, v{vT0}
        s_cmp_eq_u32 s{sG}, 3
        """)
        with k.if_("s_cbranch_scc0"):
            srd(k, sW2, 18, 19, 0, 896)
            k(f"""
            s_add_u32 s3, s{sC}, 5
            s_lshl_b32 s3, s3, 7
            v_add_u32 v{vT0}, s3, v{vL16}
            v_subrev_u32 v{vT1}, 896, v{vT0}
            v_min_u32 v{vT0}, v{vT0}, v{vT1}
            v_subrev_u32 v{vT1}, 896, v{vT0}
            v_min_u32 v{vT0}, v{vT0}, v{vT1}
            s_lshr_b32 s3, s{sL2}, 1
            s_add_u32 m0, s3, {L_GW}
            v_lshrrev_b32 v{vGW}, 5, v{vL}
            v_lshlrev_b32 v{vGW}, 4, v{vGW}
            v_add_u32 v{vGW}, m0, v{vGW}
            """)
            k(f"buffer_load_dwordx4 v{vT0}, {s(sW2,4)}, 0 offen lds", wr=["gw"])
        k(f"""
        s_mul_i32 s{sSt}, s{sTT}, 56
        s_add_u32 s{sSt}, s{sSt}, s{sFS}
        s_lshl_b32 s{sSt}, s{sSt}, 11
        s_add_u32 s{sSt}, s{sSt}, {WS_ACT}
        {fmap(sR2, sKH)}
        s_lshr_b32 s{sCT}, s2, 5
        s_lshl_b32 s{sT0}, s{sKH}, 2
        s_add_u32 s{sT0}, s{sT0}, s{sJ}
        s_mul_i32 s{sT0}, s{sT0}, {224*896}
        s_lshl_b32 s3, s{sCT}, 7
        s_add_u32 s{sT0}, s{sT0}, s3
        s_sub_u32 s{sT1}, {224*896}, s3
        s_cmp_lt_u32 s2, 224
        s_cselect_b32 s{sT1}, s{sT1}, 0
        """)
        srd(k, sW2, 16, 17, f"s{sT0}", f"s{sT1}")
        k(f"""
        s_mul_i32 s{sT0}, s{sJ}, {16*896}
        s_add_u32 s{sT0}, s{sT0}, s3
        s_sub_u32 s{sT1}, {448*896}, s{sT0}
        s_cmp_lt_u32 s2, 224
        s_cselect_b32 s{sT1}, s{sT1}, 0
        """)
        srd(k, sWO, 8, 9, f"s{sT0}", f"s{sT1}")
        for r in range(10):
            k(f"v_mov_b32 v{BZ+r}, 0")
        k(f"""
        v_mov_b32 v{vT0}, 0x3f80
        v_cmp_gt_u32 vcc, 32, v{vL}
        v_cndmask_b32 v{BZ+2}, 0, v{vT0}, vcc
        v_cndmask_b32 v{BZ+6}, v{vT0}, v{BZ+6}, vcc
        v_mov_b32 v{BA+1}, 0
        v_mov_b32 v{BA+3}, 0
        """)

        W2ROW = [0, 1] + list(range(7, 19))

        TH = OPT.get("th", 5)

        def thr():
            return [E(k, f"s_waitcnt vmcnt({TH - 1})")] if TH else []

        def dma_rows(srdn, items, gstride, tag):
            out = []
            for st, row in items:
                out += [[E(k, f"s_add_u32 m0, s{sL2}, {8192*row}"), E(k, f"s_mov_b32 s{sSo}, {st*gstride}"), *thr(),
                         E(k, f"buffer_load_dwordx4 v{vD}, {s(srdn,4)}, s{sSo} offen lds", wr=[tag])],
                        [E(k, f"s_mov_b32 s{sSo}, {st*gstride+8*896-1024}"), *thr(),
                         E(k, f"buffer_load_dwordx4 v{vD}, {s(srdn,4)}, s{sSo} offen offset:1024 lds", wr=[tag])]]
            return out

        def dma_w2(sts, tag):
            return dma_rows(sW2, [(st, W2ROW[st]) for st in sts], 16 * 896, tag)

        st8 = dict(base=0)
        for c in range(7):
            if c == 0:
                k.need("ch0")
            else:
                k.need(f"rd{c-1}", f"ch{c}")
            k("s_barrier")
            if c in (0, 6):
                stamp(2 + c // 3)
            rdx = rebase(st8, c, xa) + [
                E(k, f"ds_read_b128 {v(X+16*c+4*st,4)}, v{xa[st]} offset:{SLOTS[c%3]-st8['base']}", wr=[f"rd{c}"]) for st in range(4)]
            if c <= 4:
                dm = dma_chunk(c + 2, (0, 1))
                run(dm[:2] + [rdx] + dm[2:])
            else:
                run([rdx])
                k(f"s_cmp_eq_u32 s{sLong}, 1")
                with k.if_("s_cbranch_scc0") as lg:
                    run(dma_w1(sW, L_W1A, range(4), "wa1") if c == 5 else dma_w1(sW, L_W1A, [4, 5, 6], "wa2"))
                    k.need("ch6" if c == 5 else "wa1")
                    if c == 5:
                        lg.else_()
                        k.need("ch6")
            if c == 1:
                make_tag()
            if c == 2:
                for t, w in enumerate((BZ + 2, BZ + 6, BZ, BZ + 4)):
                    k(f"{MFMA} {v(acc[t],16)}, {v(BA,4)}, {v(w,4)}, 0")

        def act_store(t):
            out = []
            for i in range(2):
                if OPT.get("ths", 1):
                    out += thr()
                out += [E(k, f"buffer_store_dwordx4 {v(acc[t]+4*i,4)}, v{vL16}, {s(sWS,4)}, s{sSt} offen offset:{1024*i}{SC}", wr=["act"])]
            return out + [E(k, f"s_add_u32 s{sSt}, s{sSt}, 2048")]

        D = 5

        def rd2(m):
            t, n = divmod(m, 28)
            j, st = n >> 2, n & 3
            return [E(k, f"ds_read_b64_tr_b16 {v(W6[m%NS]+2*e,2)}, v{wa[t%2]} offset:{8192*j+(16*st+4*e)*128}", wr=["wrd", f"w{m}"])
                    for e in range(2)]

        def tile(t, lim, fill, hooks={}):
            groups = []
            for n in range(28):
                m = 28 * t + n
                g = [E(k, f"{MFMA} {v(acc[t],16)}, {v(W6[m%NS],4)}, {v(X+4*n,4)}, {v(acc[t],16)}")]
                if n & 1 and m + 2 < lim:
                    g += [lambda m=m: k.need(f"w{m+2}")]
                if n in hooks:
                    g += [hooks[n]]
                if m + D < lim:
                    g += rd2(m + D)
                groups.append(g)
            run(groups[:2])
            spread(k, groups[2:26], fill)
            run(groups[26:])

        def mark(*tags, val=1):
            k.need(*tags)
            cnt_add(0, vT0, vT1, val)

        k(f"s_cmp_eq_u32 s{sLong}, 1")
        with k.if_("s_cbranch_scc0") as lg:
            mark("wa1", "rd6")
            cnt_wait(0, LV(1), vT0, vT1)
            stamp(3)
            for m in range(D):
                run([rd2(m)])
            tile(0, 56, [],
                 {OPT.get("m2", 8): lambda: mark("wa2"), 16 - D: lambda: cnt_wait(0, LV(2), vT0, vT1)})
            dstamp(1, 7)
            tile(1, 56, mish_ops(k, acc[0], tmp))
            dstamp(1, 8)
            lg.else_()
            mark("rd6", val=2)
            stamp(3)
            k(f"s_cmp_eq_u32 s{sG}, 3")
            with k.if_("s_cbranch_scc0"):
                k.need("gw")
                rd = lambda n: k(f"ds_read_b128 {v(W6[n%6],4)}, v{vGW} offset:{32*n}")
                for n in range(4):
                    rd(n)
                a = acc[0]
                for n in range(28):
                    k(f"{MFMA} {v(a,16)}, {v(W6[n%6],4)}, {v(X+4*n,4)}, {'0' if n == 0 else v(a,16)}")
                    if n + 4 < 28:
                        rd(n + 4)
                k(f"""
                v_mul_f32 v{a}, {f32(-LOG2E)}, v{a}
                v_exp_f32 v{a}, v{a}
                v_add_f32 v{a}, 1.0, v{a}
                v_rcp_f32 v{a}, v{a}
                v_and_b32 v{a+1}, 31, v{vL}
                v_lshlrev_b32 v{a+1}, 2, v{a+1}
                """)
        for r in wa[:2]:
            k(f"v_subrev_u32 v{r}, {L_W1A - L_W1B}, v{r}")
        cnt_wait(1, 4, vT0, vT1, 0xff, prio=2)
        stamp(5)
        for m in range(56, 56 + D):
            run([rd2(m)])
        tile(2, 112, mish_ops(k, acc[1], tmp), {16 - D: lambda: cnt_wait(1, 0x400, vT0, vT1, 0xff00)})
        dstamp(1, 9)
        tile(3, 112, mish_ops(k, acc[2], tmp))
        dstamp(1, 10)
        mark("wrd")
        run([mish_ops(k, acc[3], tmp)])
        dstamp(1, 11)
        cnt_wait(0, LV(3), vT0, vT1)
        cnt_wait(1, 0x40000, vT0, vT1)
        k("s_setprio 0")
        dstamp(1, 12)
        dstamp(2, 7)
        k(f"s_cmp_eq_u32 s{sLong}, 1")
        with k.if_("s_cbranch_scc0") as lg:
            run([act_store(0), act_store(1)])
            lg.else_()
            k(f"s_cmp_eq_u32 s{sG}, 3")
            with k.if_("s_cbranch_scc0"):
                k(f"""
                s_lshl_b32 s3, s{sTT}, 7
                s_add_u32 s{sT0}, s3, {WS_G}
                """)
                k(f"buffer_store_dword v{acc[0]}, v{acc[0]+1}, {s(sWS,4)}, s{sT0} offen{SC}", wr=["act"])
        run([act_store(2), act_store(3)])
        dstamp(2, 8)
        k(f"s_add_u32 s10, s10, {WS_FA}")
        k("s_setprio 2")
        k("s_cmp_ge_u32 s2, 224")
        with k.if_("s_cbranch_scc0"):
            k.need("act")
            k("s_setprio 2")
            flag_last(3, "s10", vT0, vT1)
            k("s_lshl_b32 s3, s2, 2")
            k(f"s_add_u32 s3, s3, s{sJ}")
            k("s_cmp_eq_u32 s3, 1023")
            with k.if_("s_cbranch_scc0"):
                k(f"v_lshlrev_b32 v{vT0}, 9, v{vL}")
                k(f"v_add_u32 v{vT0}, {WS_FQ}, v{vT0}")
                poll(vT0, 192, -1, (0, 128, 256, 384))
                flag("0")
            k("s_barrier")
            endpgm(2)
        vTa = 250
        RING = 192
        sAo = [8, 9, 11, 12]
        sGl = 15
        k(f"""
        s_lshl_b32 s{sT0}, s{sKH}, 2
        s_add_u32 s{sT0}, s{sT0}, s{sJ}
        s_mul_i32 s{sT0}, s{sT0}, 7
        s_mul_i32 s3, s{sR2}, 224
        s_add_u32 s3, s3, s{sT0}
        s_add_u32 s3, s3, s{sCT}
        s_lshl_b32 s3, s3, 11
        s_add_u32 s3, s3, {WS_ACT}
        v_lshrrev_b32 v{vT0}, 4, v{vL}
        v_mul_u32_u24 v{vT0}, {56*2048 - 2048}, v{vT0}
        v_lshl_add_u32 v{vT0}, v{vL}, 7, v{vT0}
        v_add_u32 v{vTa}, s3, v{vT0}
        s_lshl_b32 s3, s{sKH}, 7
        s_add_u32 s3, s3, s{sR2}
        s_lshl_b32 s3, s3, 7
        s_add_u32 s3, s3, {WS_FA}
        v_lshl_add_u32 v{vT2}, v{vL}, 11, s3
        s_lshl_b32 s3, s{sR2}, 7
        s_add_u32 s3, s3, {WS_FA + 48*128}
        v_writelane_b32 v{vT2}, s3, 8
        s_lshl_b32 s{sT1}, s{sR2}, 1
        s_add_u32 s{sT1}, s{sT1}, s{sKH}
        s_lshl_b32 s{sT1}, s{sT1}, 1
        s_and_b32 s3, s{sJ}, 1
        s_add_u32 s{sT1}, s{sT1}, s3
        s_lshl_b32 s{sGl}, s{sT1}, 7
        s_add_u32 s{sGl}, s{sGl}, {WS_G}
        """)
        for q in range(4):
            k(f"""
            s_xor_b32 s3, s{sT1}, {3-q}
            s_mul_i32 s3, s3, 56
            s_add_u32 s3, s3, s{sT0}
            s_lshl_b32 s3, s3, 11
            s_add_u32 s{sAo[q]}, s3, {WS_ACT}
            """)
        vO = [11, 9, 0, 1]
        for i in range(4):
            k(f"""
            s_xor_b32 s3, s{sJ}, {i}
            s_mul_i32 s3, s3, 12288
            s_add_u32 s3, s3, {L_FRED + 4096*max(i-1, 0)}
            v_add_u32 v{vO[i]}, s3, v{vL16}
            """)
        wr = [[wr0, wr1], [vTa + 1, vTa + 2], [vTa + 3, vTa + 4]]
        for i in (1, 2):
            for t in range(2):
                k(f"v_add_u32 v{wr[i][t]}, {65536*i}, v{wr[0][t]}")
        W2 = X
        k("s_setprio 0")
        nfa = OPT.get("nfa", 3)
        for p in range(nfa):
            run(dma_w2([p], f"w2{p}"))
        k.need("act")
        k("s_setprio 2")
        flag_last(3, "s10", vT0, vT1)
        k("s_setprio 0")
        stamp(6)

        def rdw2(st):
            row = W2ROW[st]
            for t in range(2):
                for e in range(2):
                    k(f"ds_read_b64_tr_b16 {v(W2+8*st+4*t+2*e,2)}, v{wr[row // 8][t]} offset:{8192*(row % 8)+8*e*128}",
                      wr=["r0" if st < 2 else "r1"], rd=[f"w2{st}"])
        lag = OPT.get("lag", 3)
        for p in range(nfa, 21):
            if p < 14:
                run(dma_w2([p], f"w2{p}"))
            else:
                if p == 14:
                    dstamp(0, 7)
                    dstamp(2, 9)
                if p == 19:
                    k.need("r0")
                run(dma_rows(sWO, [((p - 12) % 7,) * 2], 64 * 896, "wo"))
            if p == nfa:
                for st in range(p - lag):
                    rdw2(st)
            if 0 <= p - lag < 14:
                rdw2(p - lag)
        if OPT.get("ct", 0):
            k(f"s_cmp_eq_u32 s{sWv}, 7")
            with k.if_("s_cbranch_scc0"):
                k.label("CT0")
                k(f"""
                s_getpc_b64 {s(sM, 2)}
                s_sub_u32 s{sM}, s{sM}, CT0+4-KST
                s_subb_u32 s{sM+1}, s{sM+1}, 0
                s_lshr_b32 s3, s2, 3
                s_mul_i32 s3, s3, {per + 2}
                v_lshrrev_b32 v{vFd}, 4, v{vL16}
                v_min_u32 v{vFd}, {per + 1}, v{vFd}
                v_add_u32 v{vFd}, s3, v{vFd}
                v_lshlrev_b32 v{vFd}, 7, v{vFd}
                v_min_u32 v{vFd}, {max(code_size - 64, 0) & ~3}, v{vFd}
                global_load_dword v{vFd}, v{vFd}, {s(sM, 2)}
                """)
        k("s_setprio 2")
        dstamp(2, 12)
        poll(vT2, vFd, "0x1ff")
        dstamp(0, 8)

        def slot(f):
            return (acc[0] + 4 * f if f < 4 else acc[2] + 4 * (f - 4)) if f < 8 else RING + 4 * ((f - 8) % 16)

        def ldA(f):
            q, st = divmod(f, 14)
            if st % 4 == 0:
                k(f"s_add_u32 s{sA}, s{sAo[q]}, {st*1024}")
            if f < 24:
                run([thr()])
            k(f"buffer_load_dwordx4 {v(slot(f),4)}, v{vL16}, {s(sWS,4)}, s{sA} offen offset:{(st%4)*1024}{['', SC][OPT.get('asc', 1)]}", wr=[f"a{f}"])

        def send(i):
            return [E(k, f"ds_write_b128 v{vO[i]}, {v(acc[i]+4*c,4)} offset:{1024*c}", wr=["fw"]) for c in range(4)]

        k("s_setprio 0")
        if OPT.get("ta", 1):
            k(f"buffer_load_dword v{vFd}, v{vTa}, {s(sWS,4)}, 0 offen{SC}")
        for f in range(24):
            ldA(f)
        k.need("wo", "r1")
        dstamp(0, 9)
        k("s_barrier")
        k(f"s_setprio {OPT.get('fprio', 2)}")
        dstamp(0, 10)
        dstamp(3, 5)
        k(f"v_mov_b32 v{vT0}, {L_CNT}")
        k(f"v_mov_b32 v{vT2}, 1")

        def mark2(*tags, word=0):
            k.need(*tags)
            k("s_mov_b64 exec, 1")
            k(f"ds_add_u32 v{vT0}, v{vT2} offset:{4*word}")
            k("s_mov_b64 exec, -1")

        def peek():
            k(f"ds_read_b32 v{vT1}, v{vT0}")

        def check(lv):
            k(f"v_readfirstlane_b32 s3, v{vT1}")
            k(f"s_cmp_lt_u32 s3, {lv}")
            with k.if_("s_cbranch_scc0"):
                cnt_wait(0, lv, vT0, vT1)

        def recv(i, c):
            k(f"ds_read_b128 {v(acc[i]+4*c,4)}, v{vO[0]} offset:{4096*(i-1)+1024*c}", wr=["fr"])

        ev = {}
        at = lambda m, fn: ev.setdefault(m, []).append(fn)
        quad = lambda d, a, c: (lambda: run([padd(acc[d] + 4 * c, acc[d] + 4 * c, acc[a] + 4 * c, 4)]))
        fe = OPT.get("fe", 6)

        def xfer(m, sw, lv):
            for i in (1, 3):
                for fn in send(i):
                    at(m, fn)
                    m += sw
            m += 2 - sw
            at(m, lambda: mark2("fw"))
            at(m + 1, peek)
            m += 3
            at(m, lambda: check(lv))
            for i in (1, 3):
                for c in range(4):
                    at(m, lambda i=i, c=c: recv(i, c))
                    m += c & 1
            for c in range(4):
                at(m + 1 + c, quad(1, 3, c))
            return m + 5
        assert xfer(28, OPT.get("sw", 2), LV(4)) <= 56
        for c in range(4):
            at(57 + c // 2, quad(0, 1, c))
        w1 = OPT.get("w1", 1)
        for i, fn in enumerate(send(2) + send(0)):
            at(56 + w1 * i, fn)
        at(58 + w1 * 7, lambda: mark2("fw"))
        om = OPT.get("om", 80)
        if om:
            at(om, lambda: mark2(word=5))
        c1 = OPT.get("c1", 86)
        at(c1 - 2, peek)
        at(c1, lambda: check(0x800))
        m = xfer(c1, OPT.get("sw1", 1), 0x400 + LV(6))
        scale = lambda i, c: (lambda: [k(f"v_mul_f32 v{acc[i]+r}, v{acc[i]+r}, v{vFd}") for r in range(4 * c, 4 * c + 4)])
        for c in range(4):
            at(m - 4 + c, scale(1, c))
        assert m <= 113 - fe
        for c, fn in enumerate(send(2)):
            at(113 - fe + c, scale(2, c))
            at(113 - fe + c, fn)

        def ldG():
            k(f"v_bfe_u32 v{vFd}, v{vL16}, 2, 7")
            k(f"buffer_load_dword v{vFd}, v{vFd}, {s(sWS,4)}, s{sGl} offen{SC}")
        at(2, ldG)
        at(70, lambda: k(f"v_sub_f32 v{vFd}, 1.0, v{vFd}"))
        il = lambda o, f0, sts: [(ai, st, ai >> 1, f0 + st, ai == o[-1]) for st in sts for ai in o]
        hold = lambda l: [x[:4] + (False,) for x in l]
        seq = il((1, 3), 0, range(14)) + il((2, 0), 14, range(14))
        seq += hold(il((3,), 28, range(3))) + il((1,), 28, range(3)) + il((1, 3), 28, range(3, 14))
        seq += il((2, 0), 42, range(14 - fe)) + il((2,), 42, range(14 - fe, 14)) + il((0,), 42, range(14 - fe, 14))
        assert len(seq) == 112
        for m, (ai, st, t, f, free) in enumerate(seq):
            a = acc[ai]
            k(f"{MFMA} {v(a,16)}, {v(W2+8*st+4*t,4)}, {v(slot(f),4)}, {'0' if st == 0 else v(a,16)}")
            if m + 1 < 112:
                k.need(f"a{seq[m+1][3]}")
            if free and 24 <= f + 16 < 56:
                ldA(f + 16)
            for fn in ev.get(m, []):
                fn()
            if m % 16 == 15:
                dstamp(3, 6 + m // 16)
            d0, dn = OPT.get("d0", 55), OPT.get("dn", 4)
            if m >= d0 and (m - d0) % dn == 0 and (m - d0) // dn < 8:
                dstamp(4, 5 + (m - d0) // dn)
        dstamp(0, 11)
        for m in sorted(ev):
            if m >= 112:
                for fn in ev[m]:
                    fn()
        for c in range(4):
            for r in range(4 * c, 4 * c + 4):
                k(f"v_fma_f32 v{acc[0]+r}, v{acc[0]+r}, v{vFd}, v{acc[1]+r}")
            send(0)[c]()
        k.need("fw")
        dstamp(0, 12)
        k("s_barrier")
        endpgm(1)
    return k


def main():
    for a in sys.argv[2:]:
        kk, vv = a.split("=")
        try:
            vv = int(vv)
        except ValueError:
            vv = " " + vv.replace("+", " ")
        OPT[kk] = vv
    out = sys.argv[1]
    open(out, "w").write(build([(NAME + "_kernel", gen, 256, 512, 163840)]))


if __name__ == "__main__":
    main()
```
